```python
import torch

def _softmax(x, axis=-1):
    return torch.softmax(x, dim=axis)

def _gelu(x):
    return torch.nn.functional.gelu(x, approximate='tanh')

def _silu(x):
    return torch.nn.functional.silu(x)

def _sigmoid(x):
    return torch.sigmoid(x)

def _layernorm(x, axis=-1, eps=1e-05):
    m = x.mean(dim=axis, keepdim=True)
    v = x.var(dim=axis, keepdim=True, unbiased=False)
    return (x - m) / torch.sqrt(v + eps)

def _scatter_add(tgt, idx, src, axis=0):
    return tgt.clone().index_add_(axis, idx, src)

def _segment_sum(src, seg, n):
    out = torch.zeros((n,) + src.shape[1:], dtype=src.dtype)
    return out.index_add_(0, seg, src)

def _pad(x, pw):
    flat = tuple((v for pair in reversed(pw) for v in pair))
    return torch.nn.functional.pad(x, flat)
kernel_name = 'adaLN_cond__sliding_block_cached__glu_gated_glu__decode'

def setup_inputs():

    _w = lambda a: (lambda t: t.to(torch.bfloat16) if t.is_floating_point() else t)(torch.as_tensor(a))

    def _A_setup():
        B, Sq, D = (8, 1, 448)
        Hq, Hkv, Sk, Dh = (16, 8, 8192, 256)
        assert Hq % Hkv == 0, (Hq, Hkv)
        return {'x': _w((lambda *s: torch.randn(*s, dtype=torch.bfloat16) * 0.05)(B, Sq, D)), 'k_cache': _w((lambda *s: torch.randn(*s, dtype=torch.bfloat16) * 3.2)(B, Hkv, Sk, Dh)), 'v_cache': _w((lambda *s: torch.randn(*s, dtype=torch.bfloat16) * 0.4)(B, Hkv, Sk, Dh)), 'wq': _w((lambda *s: torch.randn(*s, dtype=torch.bfloat16) * 3.2)(D, Hq * Dh) * D ** (-0.5)), 'wo': _w((lambda *s: torch.randn(*s, dtype=torch.bfloat16) * 0.4)(Hq * Dh, D) * (Hq * Dh) ** (-0.5))}
    _A_in = _A_setup()

    def _B_setup():
        B, S, D, F = (8, 1, 448, 1792)
        return {'x': _w((lambda *s: torch.randn(*s, dtype=torch.bfloat16) * 0.05)(B, S, D)), 'w_gate': _w((lambda *s: torch.randn(*s, dtype=torch.bfloat16) * 0.05)(D, F)), 'w_up': _w((lambda *s: torch.randn(*s, dtype=torch.bfloat16) * 0.05)(D, F)), 'w_down': _w((lambda *s: torch.randn(*s, dtype=torch.bfloat16) * 0.05)(F, D))}
    _B_in = _B_setup()
    return {'A_x': _A_in['x'], 'A_k_cache': _A_in['k_cache'], 'A_v_cache': _A_in['v_cache'], 'A_wq': _A_in['wq'], 'A_wo': _A_in['wo'], 'B_x': _B_in['x'], 'B_w_gate': _B_in['w_gate'], 'B_w_up': _B_in['w_up'], 'B_w_down': _B_in['w_down'], 'c': _w((lambda *s: torch.randn(*s, dtype=torch.bfloat16) * 0.1)(8, 448) * 8.0), 'w_mod': _w((lambda *s: torch.randn(*s, dtype=torch.bfloat16) * 0.1)(448, 6 * 448) * 448 ** (-0.5) * 8.0)}

def reference(A_x, A_k_cache, A_v_cache, A_wq, A_wo, B_x, B_w_gate, B_w_up, B_w_down, c, w_mod):

    def _A_ref(x, k_cache, v_cache, wq, wo):
        B, Sq, D = x.shape
        Hq, Dh = (16, 256)
        Hkv, Sk = (k_cache.shape[1], k_cache.shape[2])
        W = min(4096, max(256, Sk // 4))
        rep = Hq // Hkv
        q = (lambda x, *d: x.permute(*d))((x @ wq).reshape(B, Sq, Hq, Dh), 0, 2, 1, 3)
        k = (lambda x, n, axis: torch.repeat_interleave(x, n, dim=axis))(k_cache[:, :, Sk - W:, :], rep, axis=1)
        v = (lambda x, n, axis: torch.repeat_interleave(x, n, dim=axis))(v_cache[:, :, Sk - W:, :], rep, axis=1)
        scores = torch.einsum('bhqd,bhkd->bhqk', q, k) * Dh ** (-0.5)
        p = _softmax(scores, axis=-1)
        o = torch.einsum('bhqk,bhkd->bhqd', p, v)
        return (lambda x, *d: x.permute(*d))(o, 0, 2, 1, 3).reshape(B, Sq, Hq * Dh) @ wo

    def _B_ref(x, w_gate, w_up, w_down):
        g = torch.einsum('bsd,df->bsf', x, w_gate)
        u = torch.einsum('bsd,df->bsf', x, w_up)
        h = _sigmoid(g) * u
        return torch.einsum('bsf,fd->bsd', h, w_down)
    x = A_x
    mod = (_silu(c) @ w_mod).reshape(c.shape[0], 6, 1, -1)
    sa, ca, ga, sb, cb, gb = (mod[:, 0].clone(), mod[:, 1].clone(), mod[:, 2].clone(), mod[:, 3].clone(), mod[:, 4].clone(), mod[:, 5].clone())
    h = _layernorm(x, axis=-1) * (1 + ca) + sa
    x = x + ga * _A_ref(h, A_k_cache, A_v_cache, A_wq, A_wo)
    h = _layernorm(x, axis=-1) * (1 + cb) + sb
    x = x + gb * _B_ref(h, B_w_gate, B_w_up, B_w_down)
    return x
```

```python
import re

TRANS = ("v_exp_f32", "v_log_f32", "v_rcp_f32", "v_rsq_f32", "v_sqrt_f32", "v_sin_f32", "v_cos_f32")


def regs_of(tok):
    tok = tok.strip()
    neg = tok.lstrip("-")
    m = re.fullmatch(r"abs\((.*)\)", neg)
    if m:
        neg = m.group(1)
    m = re.fullmatch(r"([vsa])(\d+)", neg)
    if m:
        return {(m.group(1), int(m.group(2)))}
    m = re.fullmatch(r"([vsa])\[(\d+):(\d+)\]", neg)
    if m:
        return {(m.group(1), i) for i in range(int(m.group(2)), int(m.group(3)) + 1)}
    if neg == "vcc":
        return {("s", "vcc")}
    if neg == "exec":
        return {("s", "exec")}
    if neg == "m0":
        return {("s", "m0")}
    return set()


class Ins:
    def __init__(self, text):
        self.text = text
        t = text.split(";")[0].strip()
        self.is_label = t.endswith(":")
        self.is_dir = t.startswith(".") or t == ""
        self.op = ""
        self.w, self.r = set(), set()
        self.srcc = set()
        self.ab = set()
        self.kind = "other"
        self.states = 1
        if self.is_label or self.is_dir:
            self.states = 0
            return
        parts = t.split(None, 1)
        op = parts[0]
        self.op = op
        rest = parts[1] if len(parts) > 1 else ""
        ops = [o.strip() for o in rest.split(",")]
        mods = ""
        if ops:
            last = ops[-1].split(None, 1)
            if len(last) > 1:
                ops[-1] = last[0]
                mods = last[1]
        self.mods = mods
        self.dpp = ("_dpp" in op) or any(k in mods for k in ("quad_perm", "row_sh", "row_ro", "row_mirror", "row_half_mirror", "row_bcast", "row_newbcast"))
        R = [regs_of(o) for o in ops]
        base = re.sub(r"_(e32|e64|dpp|sdwa)$", "", op)
        self.base = base
        if op == "s_nop":
            self.kind = "nop"
            self.states = int(ops[0], 0) + 1
        elif op.startswith("v_mfma"):
            self.kind = "mfma"
            self.w = R[0]
            self.ab = R[1] | R[2]
            self.srcc = R[3]
            self.r = self.ab | self.srcc
        elif op.startswith("v_cmp"):
            self.kind = "valu"
            self.w = R[0]
            self.r = set().union(*R[1:])
            if op.startswith("v_cmpx"):
                self.w |= {("s", "exec")}
        elif base in ("v_readfirstlane_b32", "v_readlane_b32"):
            self.kind = "valu"
            self.w = R[0]
            self.r = set().union(*R[1:])
        elif base.startswith("v_permlane") and "swap" in base:
            self.kind = "valu"
            self.w = R[0] | R[1]
            self.r = R[0] | R[1]
        elif op.startswith("v_"):
            self.kind = "valu"
            self.w = R[0]
            self.r = set().union(*R[1:]) if len(R) > 1 else set()
            if base in ("v_fmac_f32", "v_dot2c_f32_bf16", "v_writelane_b32") or self.dpp:
                self.r |= R[0]
            if base == "v_cndmask_b32" and len(ops) == 3:
                self.r |= {("s", "vcc")}
            if base in ("v_add_co_u32", "v_addc_co_u32", "v_sub_co_u32"):
                self.w = R[0] | R[1]
                self.r = set().union(*R[2:])
        elif op.startswith("ds_"):
            self.kind = "ds"
            if op.startswith("ds_read") or "permute" in op or "swizzle" in op or "_rtn" in op:
                self.w = R[0]
                self.r = set().union(*R[1:])
                if "d16" in op:
                    self.r |= R[0]
            else:
                self.r = set().union(*R)
        elif op.startswith(("buffer_", "global_")):
            self.kind = "vmem"
            lds = bool(re.search(r"\blds\b", mods)) or "_lds_" in op
            self.ldsdma = lds
            if "load" in op and not lds:
                self.w = R[0]
                self.r = set().union(*R[1:])
                if "d16" in op:
                    self.r |= R[0]
            else:
                self.r = set().union(*R)
                if lds:
                    self.r |= {("s", "m0")}
            self.wide_store = ("store" in op) and ("x3" in op or "x4" in op)
            if self.wide_store:
                self.sdata = R[0] if op.startswith("buffer_") else R[1]
        elif op.startswith("s_"):
            self.kind = "salu"
            if op.startswith(("s_cmp", "s_cbranch", "s_branch", "s_waitcnt", "s_barrier", "s_endpgm", "s_sleep", "s_setprio", "s_bitcmp")):
                self.r = set().union(*R) if R else set()
            else:
                self.w = R[0] if R else set()
                self.r = set().union(*R[1:]) if len(R) > 1 else set()
                if "saveexec" in op:
                    self.w |= {("s", "exec")}
                    self.r |= {("s", "exec")}


def vset(s):
    return {x for x in s if x[0] in ("v", "a")}


def sset(s):
    return {x for x in s if x[0] == "s"}


def need(p, c):
    n = 0
    pv, ps = vset(p.w), sset(p.w)
    if p.kind == "valu":
        if c.kind == "valu":
            if c.dpp and (pv & vset(c.r)):
                n = max(n, 2)
            if c.base.startswith("v_permlane") and (pv & vset(c.r)):
                n = max(n, 2)
            if c.base in ("v_readlane_b32", "v_readfirstlane_b32") and (pv & vset(c.r)):
                n = max(n, 1)
            if p.base in TRANS and c.base not in TRANS and (pv & vset(c.r)):
                n = max(n, 1)
            if ps & sset(c.r):
                n = max(n, 4 if c.base in ("v_readlane_b32", "v_writelane_b32") else 2)
            if ("s", "exec") in ps:
                n = max(n, 5 if c.dpp else (4 if c.base.startswith(("v_readlane", "v_readfirstlane", "v_writelane", "v_permlane")) else 0))
            if p.base.startswith("v_dot2") and c.base != p.base and (pv & (vset(c.r) | vset(c.w))):
                n = max(n, 3)
            if p.base.startswith("v_dot2") and c.base == p.base and (pv & (vset(c.r) - vset(c.w))):
                n = max(n, 3)
        if c.kind == "mfma":
            if pv & vset(c.r):
                n = max(n, 3 if p.base.startswith("v_dot2") else 2)
            if ("s", "exec") in ps:
                n = max(n, 4)
        if c.kind == "vmem" and (ps & sset(c.r)):
            n = max(n, 5)
        if c.kind in ("vmem", "ds") and p.base in TRANS and (pv & vset(c.r)):
            n = max(n, 1)
        if c.kind in ("vmem", "ds") and p.base.startswith("v_dot2") and (pv & vset(c.r)):
            n = max(n, 3)
        if c.kind == "salu" and (ps & sset(c.r)):
            n = max(n, 1)
    if p.kind == "mfma":
        if c.kind == "mfma":
            if pv & c.ab:
                n = max(n, 8)
            if (pv & c.srcc) and pv != c.srcc:
                n = max(n, 6)
            if (pv & vset(c.w)) and pv != c.srcc:
                n = max(n, 6)
        elif c.kind in ("valu", "vmem", "ds"):
            if pv & (vset(c.r) | vset(c.w)):
                n = max(n, 8)
            if c.kind == "valu" and (p.srcc & vset(c.w)):
                n = max(n, 3)
    if p.kind == "salu" and ("s", "m0") in ps and c.kind == "vmem" and getattr(c, "ldsdma", False):
        n = max(n, 1)
    if p.kind == "vmem" and getattr(p, "wide_store", False) and (p.sdata & vset(c.w)):
        n = max(n, 2 if c.kind == "valu" else 1)
    if p.kind == "ds" and p.op in ("ds_write_b128", "ds_write_b96", "ds_write2_b64") and c.kind == "valu" and (vset(p.r) & vset(c.w)):
        n = max(n, 1)
    return n


class Asm:
    def __init__(self):
        self.lines = []

    def __call__(self, text):
        for ln in text.split("\n"):
            ln = ln.rstrip()
            if ln.strip() == "":
                continue
            self.lines.append(ln if (ln.strip().endswith(":") or ln.startswith((";", "."))) else "  " + ln.strip())

    def finish(self):
        out = []
        hist = []
        npad = 0
        for ln in self.lines:
            if ln.startswith(";"):
                out.append(ln)
                continue
            c = Ins(ln)
            if c.is_label or c.is_dir:
                out.append(ln)
                continue
            req = 0
            dist = 0
            for p in reversed(hist):
                k = need(p, c)
                if k > dist:
                    req = max(req, k - dist)
                dist += p.states
                if dist >= 12:
                    break
            if req > 0:
                nop = Ins(f"  s_nop {req - 1}")
                out.append(nop.text + "   ; pad")
                hist.append(nop)
                npad += 1
            out.append(ln)
            hist.append(c)
            if c.op in ("s_branch", "s_endpgm"):
                hist = []
            hist = hist[-16:]
        self.npad = npad
        return "\n".join(out) + "\n"
```

```python
import sys, os
sys.path.insert(0, os.path.dirname(os.path.abspath(__file__)))
from asmlib import Asm

NAME = "adaLN_cond__sliding_block_cached__glu_gated_glu__decode"

WS_H, WS_G, WS_Q, WS_ML, WS_OA, WS_Y, WS_C = 0x1000, 0x5000, 0x14000, 0x34000, 0x40000, 0x140000, 0x1C0000
WS_SIZE = 0x2C0000
L_CNT1, L_CNT2, L_FL, L_ST1, L_MLL, L_ST2 = 0, 4, 32, 64, 128, 192
L_QL, L_GU, L_X1, L_XR, L_MD, L_SC, L_OB, L_W1, L_W2 = 256, 1280, 3328, 4224, 5120, 8704, 16384, 24576, 38912
LDS_BYTES = 53248
SC_RS = 912
LOG2E = 1.4426950408889634


def f2u(x):
    import struct
    return struct.unpack("<I", struct.pack("<f", x))[0]


def gen(DK=8, RV=6, W=6, stamps=0, wpol="", spol="nt", fpol="", ppol="", rot=4096, pref=1, pref2=1):
    A = Asm()
    NSLOT = 56
    slot = lambda n: 32 + 4 * n
    vr = lambda r, n=4: f"v[{r}:{r + n - 1}]"
    nst = [0]

    def stamp(i):
        if stamps:
            A(f"s_memrealtime s[{86 + 2 * i}:{87 + 2 * i}]")

    uid = [0]

    def spin_fail():
        A("s_sub_u32 s84, s84, 1")
        A("s_cbranch_scc1 L_fin")

    def rnd2(a, b, t):
        A(f"v_cvt_pk_bf16_f32 v{t}, v{a}, v{b}")
        A(f"v_lshlrev_b32 v{a}, 16, v{t}")
        A(f"v_and_b32 v{b}, s46, v{t}")

    def rnd1(a):
        A(f"v_cvt_pk_bf16_f32 v{a}, v{a}, v{a}")
        A(f"v_and_b32 v{a}, s46, v{a}")

    def tagcheck(bases, acc, lab_ok_fallthrough_fail):
        first = True
        for k, r in enumerate(bases):
            if first:
                A(f"v_xor_b32 v{acc}, s45, v{r + 1}")
                A(f"v_xor_b32 v{acc + 1}, s45, v{r + 3}")
                first = False
            else:
                A(f"v_bitop3_b32 v{acc}, v{acc}, v{r + 1}, s45 bitop3:0xf6")
                A(f"v_bitop3_b32 v{acc + 1}, v{acc + 1}, v{r + 3}, s45 bitop3:0xf6")
        A(f"v_or_b32 v{acc}, v{acc}, v{acc + 1}")
        A(f"v_cmp_ne_u32 vcc, 0, v{acc}")
        A(f"s_cbranch_vccz {lab_ok_fallthrough_fail}")

    def masks(r0, t0):
        A(f"v_and_b32 v{t0}, 1, v1")
        A(f"v_lshlrev_b32 v{t0}, 4, v{t0}")
        A(f"v_mov_b32 v{t0 + 1}, 0xffff")
        A(f"v_lshlrev_b32 v{t0}, v{t0}, v{t0 + 1}")
        A(f"v_bfe_u32 v{t0 + 1}, v1, 1, 2")
        for r in range(4):
            A(f"v_cmp_eq_u32 vcc, {r}, v{t0 + 1}")
            A(f"v_cndmask_b32 v{r0 + r}, 0, v{t0}, vcc")

    def abuild_bcast(dst, P, Psw, x, m0):
        for r in range(4):
            src = P if (x >> 2) == (r >> 1) else Psw
            q = x & 3
            A(f"v_and_b32_dpp v{dst + r}, v{src}, v{m0 + r} quad_perm:[{q},{q},{q},{q}] row_mask:0xf bank_mask:0xf")

    def quadswap(dst, src):
        A(f"v_mov_b32_dpp v{dst}, v{src} row_shl:4 row_mask:0xf bank_mask:0x5")
        A(f"v_mov_b32_dpp v{dst}, v{src} row_shr:4 row_mask:0xf bank_mask:0xa")

    def fold_tiles(d0, d1):
        for r in range(4):
            A(f"v_permlane32_swap_b32 v{d0 + r}, v{d1 + r}")
        for r in range(4):
            A(f"v_add_f32_dpp v{d0 + r}, v{d1 + r}, v{d0 + r} row_ror:8 row_mask:0xf bank_mask:0xf")

    hdr = open(os.path.join(os.path.dirname(os.path.abspath(__file__)), "header.txt")).read().rstrip("\n")
    A(hdr)
    A(f"; @launch grid=(256,1,1) block=(512,1,1) lds={LDS_BYTES}")
    A('.amdgcn_target "amdgcn-amd-amdhsa--gfx950"')
    A(".text")
    A(f".globl {NAME}_kernel")
    A(".p2align 8")
    A(f".type {NAME}_kernel,@function")
    A(f"{NAME}_kernel:")
    A("L_start:")
    A("s_cmp_ge_u32 s2, 256")
    A("s_cbranch_scc1 L_end")
    stamp(0)
    A("s_load_dwordx16 s[16:31], s[0:1], 0")
    A("s_load_dwordx8 s[32:39], s[0:1], 64")
    A("s_load_dwordx4 s[40:43], s[0:1], 96")
    A("v_lshrrev_b32 v2, 6, v0")
    A("v_and_b32 v1, 63, v0")
    A("v_readfirstlane_b32 s3, v2")
    A("s_lshr_b32 s4, s2, 5")
    A("s_bfe_u32 s5, s2, 0x20003")
    A("s_and_b32 s6, s2, 7")
    A("s_lshl_b32 s7, s6, 2")
    A("s_add_u32 s7, s7, s5")
    A("s_mov_b32 s46, 0xffff0000")
    A("s_mov_b32 s84, 0x10000")
    A("s_cmp_ge_u32 s3, 4")
    A("s_cbranch_scc1 L_helper")

    A("; ---------------- streamer ----------------")
    A("v_bfe_u32 v2, v1, 3, 1")
    A("v_lshlrev_b32 v2, 9, v2")
    A("v_and_b32 v3, 7, v1")
    A("v_lshl_add_u32 v2, v3, 4, v2")
    A("v_lshrrev_b32 v3, 4, v1")
    A("v_lshl_add_u32 v2, v3, 7, v2")
    A("s_lshl_b32 s68, s4, 3")
    A("s_add_u32 s68, s68, s6")
    A("s_lshl_b32 s68, s68, 22")
    A("s_lshl_b32 s69, s5, 18")
    A("s_add_u32 s68, s68, s69")
    A(f"s_add_u32 s68, s68, {6144 * 512}")
    A(f"s_mul_i32 s70, s2, {rot}")
    A("s_lshl_b32 s69, s3, 12")
    A("s_add_u32 s70, s70, s69")
    A("s_and_b32 s70, s70, 0x3ffff")
    A("s_mov_b32 s71, s70")
    A("s_mov_b32 s54, 0x40000")
    A("s_mov_b32 s55, 0x20000")
    A("s_waitcnt lgkmcnt(0)")
    A("s_load_dword s44, s[42:43], 0")
    A("s_add_u32 s52, s18, s68")
    A("s_addc_u32 s53, s19, 0")
    issued = [0]

    def k_issue(n, sl):
        A(f"buffer_load_dwordx4 {vr(slot(sl))}, v2, s[52:55], s70 offen offset:{(n % 4) * 1024} {spol}")
        if n % 4 == 3 and n < 63:
            A("s_add_u32 s70, s70, 0x4000")
            A("s_and_b32 s70, s70, 0x3ffff")
        issued[0] += 1
        return issued[0] - 1

    def v_issue(n):
        sl = 8 + n % (2 * RV)
        A(f"buffer_load_dwordx4 {vr(slot(sl))}, v3, s[56:59], s71 offen offset:{[0, 256, 2048, 2304][n % 4]} {spol}")
        if n % 4 == 3 and n < 63:
            A("s_add_u32 s71, s71, 0x4000")
            A("s_and_b32 s71, s71, 0x3ffff")
        issued[0] += 1
        return issued[0] - 1

    def wait_for(idx):
        A(f"s_waitcnt vmcnt({min(63, issued[0] - 1 - idx)})")

    kidx, vidx = {}, {}
    for n in range(DK):
        kidx[n] = k_issue(n, n)
    A("s_add_u32 s56, s20, s68")
    A("s_addc_u32 s57, s21, 0")
    A("s_mov_b32 s58, 0x40000")
    A("s_mov_b32 s59, 0x20000")
    A("v_and_b32 v4, 1, v3")
    A("v_lshlrev_b32 v4, 10, v4")
    A("v_lshrrev_b32 v5, 1, v3")
    A("v_lshl_add_u32 v4, v5, 9, v4")
    A("v_and_b32 v5, 15, v1")
    A("v_lshl_add_u32 v30, v5, 4, v4")
    A("v_bfe_u32 v4, v1, 3, 1")
    A("v_and_b32 v5, 7, v1")
    A("v_min_u32 v5, 6, v5")
    A("v_lshlrev_b32 v5, 4, v5")
    A("v_lshl_add_u32 v6, v4, 5, v3")
    A("v_mul_u32_u24 v6, 3584, v6")
    A("v_add_u32 v28, v6, v5")
    A("v_mul_u32_u24 v6, 24, v4")
    A("v_add3_u32 v6, v6, v3, 64")
    A("v_mul_u32_u24 v6, 3584, v6")
    A("v_add_u32 v29, v6, v5")
    A("v_mov_b32 v3, v30")
    masks(16, 4)
    A("s_mov_b32 s60, s28"); A("s_mov_b32 s61, s29"); A(f"s_mov_b32 s62, {448 * 3584}"); A("s_mov_b32 s63, 0x20000")
    A("s_mov_b32 s64, s30"); A("s_mov_b32 s65, s31"); A(f"s_mov_b32 s66, {448 * 3584}"); A("s_mov_b32 s67, 0x20000")
    A("s_mov_b32 s48, s42"); A("s_mov_b32 s49, s43"); A(f"s_mov_b32 s50, {WS_SIZE}"); A("s_mov_b32 s51, 0x20000")
    A(f"s_mul_i32 s72, s3, {112 * 3584}")
    A("s_mul_i32 s69, s7, 112")
    A("s_add_u32 s72, s72, s69")
    A("s_mov_b32 s73, s72")
    A("s_mov_b32 s80, 0xcccccccc"); A("s_mov_b32 s81, 0xcccccccc")
    A("s_mov_b32 s82, 0xf0f0f0f0"); A("s_mov_b32 s83, 0xf0f0f0f0")
    A("v_lshlrev_b32 v31, 4, v1")
    A("s_waitcnt lgkmcnt(0)")
    A("s_add_u32 s44, s44, 1")
    A("s_and_b32 s45, s44, 0xbfffbfff")
    A("s_barrier")
    for n in range(DK, NSLOT):
        A(f"s_waitcnt vmcnt({DK - 1})")
        kidx[n] = k_issue(n, n)
    stamp(1)
    A("s_barrier")
    A(f"ds_read_b128 v[4:7], v31 offset:{L_QL}")
    A("s_mov_b32 vcc_lo, 0xaaaaaaaa")
    A("s_mov_b32 vcc_hi, 0xaaaaaaaa")
    A("s_waitcnt lgkmcnt(0)")
    stamp(2)
    kslot = lambda n: n if n < NSLOT else n - NSLOT
    dreg = lambda n: 20 if n == 0 else slot(kslot(n - 1))
    nv = 0
    for m in range(8):
        wait_for(kidx[8 * m + 7])
        for n in range(8 * m, 8 * m + 8):
            A(f"v_mfma_f32_16x16x32_bf16 {vr(dreg(n))}, {vr(slot(kslot(n)))}, v[4:7], 0")
        D = [dreg(n) for n in range(8 * m, 8 * m + 8)]
        for d in D:
            A(f"v_cndmask_b32 v{d}, v{d}, v{d + 1}, vcc")
            A(f"v_cndmask_b32 v{d + 2}, v{d + 2}, v{d + 3}, vcc")
        for d in D:
            A(f"v_cndmask_b32 v{d}, v{d}, v{d + 2}, s[80:81]")
        for p in range(4):
            A(f"v_permlane16_swap_b32 v{D[2 * p]}, v{D[2 * p + 1]}")
        for p in range(4):
            A(f"v_cndmask_b32 v{D[2 * p]}, v{D[2 * p]}, v{D[2 * p + 1]}, s[82:83]")
        y = [D[0], D[2], D[4], D[6]]
        z0, z1 = D[0] + 1, D[2] + 1
        A(f"v_add_f32_dpp v{z0}, v{y[0]}, v{y[0]} row_shl:4 row_mask:0xf bank_mask:0x5")
        A(f"v_add_f32_dpp v{z1}, v{y[1]}, v{y[1]} row_shl:4 row_mask:0xf bank_mask:0x5")
        A(f"v_add_f32_dpp v{z0}, v{y[2]}, v{y[2]} row_shr:4 row_mask:0xf bank_mask:0xa")
        A(f"v_add_f32_dpp v{z1}, v{y[3]}, v{y[3]} row_shr:4 row_mask:0xf bank_mask:0xa")
        t0, t1 = D[0] + 2, D[2] + 2
        A(f"v_cndmask_b32 v{t1}, v{z1}, v{z0}, s[80:81]")
        A(f"v_cndmask_b32 v{t0}, v{z0}, v{z1}, s[80:81]")
        pend = []
        if m < 4:
            pend = [("k", NSLOT + 2 * m), ("k", NSLOT + 2 * m + 1)]
        else:
            cnt = (2 * RV) // 4 + (1 if (m - 4) < (2 * RV) % 4 else 0)
            pend = [("v", nv + c) for c in range(cnt)]
            nv += cnt
        A(f"v_add_f32_dpp v{t0}, v{t1}, v{t0} quad_perm:[2,3,0,1] row_mask:0xf bank_mask:0xf")
        A(f"v_add_f32_dpp v{8 + m}, v{t0}, v{t0} quad_perm:[1,0,3,2] row_mask:0xf bank_mask:0xf")
        rnd1(8 + m)
        for kind, n in pend:
            if kind == "k":
                A(f"s_waitcnt vmcnt({DK - 1})")
                kidx[n] = k_issue(n, kslot(n))
            else:
                A(f"s_waitcnt vmcnt({max(DK, 2 * RV) - 1})")
                vidx[n] = v_issue(n)
    assert nv == 2 * RV
    A("v_max3_f32 v20, v8, v9, v10")
    A("v_max3_f32 v21, v11, v12, v13")
    A("v_max3_f32 v20, v20, v14, v15")
    A("v_max_f32 v20, v20, v21")
    A("v_max_f32_dpp v20, v20, v20 quad_perm:[2,3,0,1] row_mask:0xf bank_mask:0xf")
    A("v_max_f32_dpp v20, v20, v20 row_half_mirror row_mask:0xf bank_mask:0xf")
    A("v_mov_b32 v21, v20")
    A("v_permlane16_swap_b32 v20, v21")
    A("v_max_f32 v20, v20, v21")
    A("v_mov_b32 v21, v20")
    A("v_permlane32_swap_b32 v20, v21")
    A("v_max_f32 v20, v20, v21")
    A(f"s_mov_b32 s69, {f2u(LOG2E / 16):#x}")
    A("v_mul_f32 v22, s69, v20")
    for m in range(8):
        A(f"v_fma_f32 v{8 + m}, v{8 + m}, s69, -v22")
    for m in range(8):
        A(f"v_exp_f32 v{8 + m}, v{8 + m}")
    A("v_add_f32 v21, v8, v9")
    A("v_add_f32 v22, v10, v11")
    A("v_add_f32 v23, v12, v13")
    A("v_add_f32 v24, v14, v15")
    A("v_add_f32 v21, v21, v22")
    A("v_add_f32 v23, v23, v24")
    A("v_add_f32 v21, v21, v23")
    for m in range(8):
        A(f"v_cvt_pk_bf16_f32 v{8 + m}, v{8 + m}, v{8 + m}")
    A("v_add_f32_dpp v21, v21, v21 quad_perm:[2,3,0,1] row_mask:0xf bank_mask:0xf")
    A("v_add_f32_dpp v21, v21, v21 row_half_mirror row_mask:0xf bank_mask:0xf")
    A("v_mov_b32 v22, v21")
    A("v_permlane16_swap_b32 v21, v22")
    A("v_add_f32 v21, v21, v22")
    A("v_mov_b32 v22, v21")
    A("v_permlane32_swap_b32 v21, v22")
    A("v_add_f32 v21, v21, v22")
    A("s_lshl_b32 s69, s3, 4")
    A("v_add_u32 v22, s69, v1")
    A("v_mov_b32 v23, 0")
    A("v_mov_b32 v24, 1")
    A("s_mov_b64 exec, 0x101")
    A(f"ds_write_b64 v22, v[20:21] offset:{L_MLL}")
    A("s_mov_b64 exec, 1")
    A(f"ds_add_u32 v23, v24 offset:{L_CNT2}")
    A("s_mov_b64 exec, -1")
    stamp(3)
    AB = [slot(48), slot(49)]

    def pv_abuild(gm):
        m, x = gm >> 2, gm & 3
        for r in range(4):
            sh = 2 * (x - r)
            d = AB[gm & 1] + r
            if sh == 0:
                A(f"v_and_b32 v{d}, v{8 + m}, v{16 + r}")
            elif sh > 0:
                A(f"v_and_b32_dpp v{d}, v{8 + m}, v{16 + r} row_shl:{sh} row_mask:0xf bank_mask:0xf bound_ctrl:0")
            else:
                A(f"v_and_b32_dpp v{d}, v{8 + m}, v{16 + r} row_shr:{-sh} row_mask:0xf bank_mask:0xf bound_ctrl:0")

    wcount = [0]

    def gu_issue():
        n = wcount[0]
        t, mat = n >> 1, n & 1
        A(f"buffer_load_dwordx4 {vr(slot(20 + n))}, v{28 if t < 8 else 29}, s[{60 + 4 * mat}:{63 + 4 * mat}], s72 offen {fpol}")
        if mat == 1:
            if t == 7:
                A("s_mov_b32 s72, s73")
            elif t < 13:
                A(f"s_add_u32 s72, s72, {4 * 3584}")
        issued[0] += 1
        wcount[0] += 1

    pv_abuild(0)
    for gm in range(32):
        if gm + 1 < 32:
            pv_abuild(gm + 1)
        wait_for(vidx[2 * gm + 1])
        s0, s1 = slot(8 + (2 * gm) % (2 * RV)), slot(8 + (2 * gm + 1) % (2 * RV))
        c0, c1 = ("0", "0") if gm == 0 else ("v[20:23]", "v[24:27]")
        A(f"v_mfma_f32_16x16x32_bf16 v[20:23], {vr(AB[gm & 1])}, {vr(s0)}, {c0}")
        A(f"v_mfma_f32_16x16x32_bf16 v[24:27], {vr(AB[gm & 1])}, {vr(s1)}, {c1}")
        if wcount[0] < 28 and gm < 26:
            gu_issue()
            if gm < 2:
                gu_issue()
        if nv < 64:
            vidx[nv] = v_issue(nv); nv += 1
            vidx[nv] = v_issue(nv); nv += 1
        if gm == 26:
            assert wcount[0] == 28
            A("v_lshrrev_b32 v4, 4, v1")
            A("v_lshlrev_b32 v4, 11, v4")
            A("v_and_b32 v5, 15, v1")
            A("v_lshl_add_u32 v28, v5, 4, v4")
            A("v_bfe_u32 v5, v1, 3, 1")
            A("v_mul_u32_u24 v5, 6, v5")
            A("v_and_b32 v6, 7, v1")
            A("v_min_u32 v7, 5, v6")
            A("v_add3_u32 v5, v5, v7, 16")
            A("v_lshl_add_u32 v29, v5, 4, v4")
            A("s_mul_i32 s69, s3, 112")
            A("v_lshrrev_b32 v4, 4, v1")
            A("v_add_u32 v4, s69, v4")
            A("v_lshl_add_u32 v5, v5, 2, v4")
            A("v_lshlrev_b32 v253, 1, v5")
            A("v_and_b32 v5, 15, v1")
            A("v_lshl_add_u32 v5, v5, 2, v4")
            A("v_lshlrev_b32 v252, 1, v5")
            A("v_cmp_gt_u32 s[74:75], 6, v6")
            A("v_bfe_u32 v4, v1, 2, 1")
            A("v_lshlrev_b32 v4, 4, v4")
            A("v_mov_b32 v5, 0x3f80")
            A("v_lshlrev_b32 v4, v4, v5")
            A("v_and_b32 v5, 11, v1")
            A("v_cmp_eq_u32 vcc, 0, v5")
            A("v_cndmask_b32 v232, 0, v4, vcc")
            A("v_cmp_eq_u32 vcc, 8, v5")
            A("v_cndmask_b32 v234, 0, v4, vcc")
            A("v_cmp_eq_u32 vcc, 1, v5")
            A("v_cndmask_b32 v236, 0, v4, vcc")
            A("v_cmp_eq_u32 vcc, 9, v5")
            A("v_cndmask_b32 v238, 0, v4, vcc")
            for r in (233, 235, 237, 239):
                A(f"v_mov_b32 v{r}, 0")
            for r in range(244, 252):
                A(f"v_mov_b32 v{r}, 0")
            A("s_lshl_b32 s76, s4, 16")
            A("s_mul_i32 s69, s3, 448")
            A("s_add_u32 s76, s76, s69")
            A(f"s_add_u32 s76, s76, {WS_Y}")
            A("s_lshl_b32 s69, s3, 11")
            A("v_add_u32 v30, s69, v31")
    A(f"ds_write_b128 v30, v[20:23] offset:{L_OB}")
    A(f"ds_write_b128 v30, v[24:27] offset:{L_OB + 1024}")
    A("s_waitcnt lgkmcnt(0)")
    A("s_barrier")
    stamp(4)
    for k, (va, off) in enumerate([(252, L_XR), (253, L_XR), (252, L_MD), (253, L_MD), (252, L_MD + 896), (253, L_MD + 896), (252, L_MD + 1792), (253, L_MD + 1792)]):
        A(f"ds_read_u16_d16_hi v{244 + k}, v{va} offset:{off}")
    A("L_pollY:")
    A("s_mov_b32 s77, s76")
    for i in range(8):
        A(f"buffer_load_dwordx4 {vr(slot(2 * i))}, v28, s[48:51], s77 offen sc1")
        A(f"buffer_load_dwordx4 {vr(slot(2 * i + 1))}, v29, s[48:51], s77 offen sc1")
        if i < 7:
            A("s_add_u32 s77, s77, 0x2000")
    A("s_waitcnt vmcnt(0)")
    tagcheck([slot(n) for n in range(16)], 4, "L_gotY")
    spin_fail()
    A("s_branch L_pollY")
    A("L_gotY:")
    for i in range(8):
        A(f"v_mfma_f32_16x16x32_bf16 v[240:243], v[232:235], {vr(slot(2 * i))}, {'0' if i == 0 else 'v[240:243]'}")
        A(f"v_mfma_f32_16x16x32_bf16 v[240:243], v[236:239], {vr(slot(2 * i + 1))}, v[240:243]")
    stamp(5)
    A("s_waitcnt lgkmcnt(0)")
    A("v_add_f32 v250, 1.0, v250")
    A("v_add_f32 v251, 1.0, v251")
    rnd2(250, 251, 4)
    rnd2(240, 241, 4)
    A("v_mul_f32 v240, v246, v240")
    A("v_mul_f32 v241, v247, v241")
    rnd2(240, 241, 4)
    A("v_add_f32 v240, v244, v240")
    A("v_add_f32 v241, v245, v241")
    rnd2(240, 241, 4)
    A("v_cndmask_b32 v5, 0, v241, s[74:75]")
    A("v_add_f32 v6, v240, v5")
    A("v_mul_f32 v7, v240, v240")
    A("v_fmac_f32 v7, v5, v5")
    A(f"ds_write_b16 v252, v4 offset:{L_X1}")
    A(f"ds_write_b16_d16_hi v253, v4 offset:{L_X1}")
    for ctl in ("quad_perm:[1,0,3,2] row_mask:0xf", "quad_perm:[2,3,0,1] row_mask:0xf", "row_half_mirror row_mask:0xf", "row_mirror row_mask:0xf",
                "row_bcast:15 row_mask:0xa", "row_bcast:31 row_mask:0xc"):
        A(f"v_add_f32_dpp v6, v6, v6 {ctl} bank_mask:0xf")
        A(f"v_add_f32_dpp v7, v7, v7 {ctl} bank_mask:0xf")
    A("s_lshl_b32 s69, s3, 3")
    A("v_mov_b32 v5, s69")
    A("s_mov_b32 exec_lo, 0")
    A("s_mov_b32 exec_hi, 0x80000000")
    A(f"ds_write_b64 v5, v[6:7] offset:{L_ST2}")
    A("s_mov_b64 exec, -1")
    A("v_mov_b32 v5, 0")
    A("s_waitcnt lgkmcnt(0)")
    A("s_barrier")
    A(f"ds_read_b128 v[8:11], v5 offset:{L_ST2}")
    A(f"ds_read_b128 v[12:15], v5 offset:{L_ST2 + 16}")
    A(f"s_mov_b32 s69, {f2u(1.0 / 448):#x}")
    A("s_waitcnt lgkmcnt(0)")
    A("v_add_f32 v8, v8, v10")
    A("v_add_f32 v9, v9, v11")
    A("v_add_f32 v12, v12, v14")
    A("v_add_f32 v13, v13, v15")
    A("v_add_f32 v8, v8, v12")
    A("v_add_f32 v9, v9, v13")
    A("v_mul_f32 v8, s69, v8")
    A("v_mul_f32 v9, s69, v9")
    A("v_fma_f32 v9, -v8, v8, v9")
    A("v_max_f32 v9, 0, v9")
    rnd2(8, 9, 4)
    A(f"v_add_f32 v9, {f2u(1e-5):#x}, v9")
    A("v_sub_f32 v240, v240, v8")
    A("v_sub_f32 v241, v241, v8")
    rnd1(9)
    rnd2(240, 241, 4)
    A("v_sqrt_f32 v9, v9")
    rnd1(9)
    A("v_rcp_f32 v9, v9")
    A("v_mul_f32 v240, v240, v9")
    A("v_mul_f32 v241, v241, v9")
    rnd2(240, 241, 4)
    A("v_mul_f32 v240, v240, v250")
    A("v_mul_f32 v241, v241, v251")
    rnd2(240, 241, 4)
    A("v_add_f32 v240, v240, v248")
    A("v_add_f32 v241, v241, v249")
    A("v_cvt_pk_bf16_f32 v8, v240, v240")
    A("v_cvt_pk_bf16_f32 v10, v241, v241")
    quadswap(9, 8)
    quadswap(11, 10)
    abuild_bcast(AB[0], 8, 9, 0, 16)
    for t in range(14):
        if t + 1 < 14:
            t1 = t + 1
            abuild_bcast(AB[t1 & 1], 8 if t1 < 8 else 10, 9 if t1 < 8 else 11, t1 if t1 < 8 else t1 - 8, 16)
        c0, c1 = ("0", "0") if t == 0 else ("v[20:23]", "v[24:27]")
        A(f"v_mfma_f32_16x16x32_bf16 v[20:23], {vr(AB[t & 1])}, {vr(slot(20 + 2 * t))}, {c0}")
        A(f"v_mfma_f32_16x16x32_bf16 v[24:27], {vr(AB[t & 1])}, {vr(slot(21 + 2 * t))}, {c1}")
    A("v_lshrrev_b32 v4, 5, v1")
    A("v_lshlrev_b32 v4, 8, v4")
    A("v_and_b32 v5, 7, v1")
    A("v_lshl_add_u32 v4, v5, 5, v4")
    A("v_bfe_u32 v5, v1, 4, 1")
    A("v_lshl_add_u32 v4, v5, 4, v4")
    A("s_lshl_b32 s69, s3, 9")
    A("v_add_u32 v4, s69, v4")
    fold_tiles(20, 24)
    A("s_mov_b32 exec_lo, 0x00ff00ff")
    A("s_mov_b32 exec_hi, 0x00ff00ff")
    A(f"ds_write_b128 v4, v[20:23] offset:{L_GU}")
    A("s_mov_b64 exec, -1")
    A("s_waitcnt lgkmcnt(0)")
    A("s_barrier")
    stamp(6)
    A("s_branch L_fin")

    A("; ---------------- helper ----------------")
    A("L_helper:")
    A("s_sub_u32 s8, s3, 4")
    A("s_mov_b32 s9, 0")
    A("s_mov_b32 s10, 0")
    A("s_mov_b32 s11, 0")
    A("s_mov_b32 s12, 16")
    A("s_lshr_b32 s13, s2, 3")
    A("s_cmp_ge_u32 s2, 64")
    A("s_cbranch_scc1 L_role2")
    A("s_cmp_ge_u32 s6, 7")
    A("s_cbranch_scc1 L_roled")
    A("s_mov_b32 s9, 1")
    A("s_lshl_b32 s10, s6, 3")
    A("s_add_u32 s10, s10, s13")
    A("s_lshl_b32 s11, s10, 4")
    A("s_mov_b32 s12, 896")
    A("s_branch L_roled")
    A("L_role2:")
    A("s_cmp_ge_u32 s2, 192")
    A("s_cbranch_scc1 L_roled")
    A("s_sub_u32 s13, s13, 8")
    A("s_lshr_b32 s14, s13, 2")
    A("s_lshl_b32 s14, s14, 3")
    A("s_add_u32 s14, s14, s6")
    A("s_cmp_ge_u32 s14, 28")
    A("s_cbranch_scc1 L_roled")
    A("s_mov_b32 s9, 2")
    A("s_and_b32 s13, s13, 3")
    A("s_lshl_b32 s10, s14, 2")
    A("s_add_u32 s10, s10, s13")
    A("s_lshl_b32 s11, s10, 5")
    A("s_add_u32 s11, s11, 1792")
    A("L_roled:")
    A("v_lshlrev_b32 v2, 4, v1")
    A("v_lshrrev_b32 v3, 4, v1")
    A("v_and_b32 v4, 15, v1")
    A("s_mul_i32 s13, s8, 1792")
    A("v_add_u32 v5, s13, v2")
    A("s_mov_b32 s50, %d" % WS_SIZE); A("s_mov_b32 s51, 0x20000")
    A("s_mov_b32 s54, %d" % (448 * 5376)); A("s_mov_b32 s55, 0x20000")
    A("s_mov_b32 s58, %d" % (448 * 8192)); A("s_mov_b32 s59, 0x20000")
    A("s_waitcnt lgkmcnt(0)")
    A("s_load_dword s44, s[42:43], 0")
    A("s_mov_b32 s48, s42"); A("s_mov_b32 s49, s43")
    A("s_mov_b32 s52, s36"); A("s_mov_b32 s53, s37")
    A("s_mov_b32 s56, s22"); A("s_mov_b32 s57, s23")
    A("s_cmp_eq_u32 s9, 0")
    A("s_cbranch_scc1 L_noc")
    A("global_load_dwordx4 v[8:11], v5, s[34:35]")
    A("s_mov_b32 exec_hi, 0xffff")
    A("global_load_dwordx4 v[12:15], v5, s[34:35] offset:1024")
    A("s_mov_b32 exec_hi, -1")
    A("L_noc:")
    A("s_cmp_eq_u32 s8, 1"); A("s_cbranch_scc1 L_h1a")
    A("s_cmp_eq_u32 s8, 2"); A("s_cbranch_scc1 L_h2a")
    A("s_cmp_eq_u32 s8, 3"); A("s_cbranch_scc1 L_h3a")

    def tagwait_barrier():
        A("s_waitcnt lgkmcnt(0)")
        A("s_add_u32 s44, s44, 1")
        A("s_and_b32 s45, s44, 0xbfffbfff")
        A("s_barrier")

    A("v_mov_b32 v6, 0"); A("v_mov_b32 v7, 0")
    A(f"ds_write_b64 v6, v[6:7] offset:{L_CNT1}")
    A("s_cmp_eq_u32 s9, 0")
    A("s_cbranch_scc1 L_h0b")
    A("v_and_b32 v16, 7, v1")
    A("v_mul_u32_u24 v16, 896, v16")
    A("v_and_b32 v17, 1, v3")
    A("v_lshl_add_u32 v16, v17, 3, v16")
    A("s_cmp_eq_u32 s9, 1")
    A("s_cselect_b32 s13, s11, 0")
    A("v_add_u32 v16, s13, v16")
    A("global_load_dwordx2 v[18:19], v16, s[16:17]")
    A("v_lshrrev_b32 v16, 1, v1")
    A("v_mul_u32_u24 v16, 5376, v16")
    A("v_and_b32 v17, 1, v1")
    A("v_mul_lo_u32 v17, v17, s12")
    A("v_add_u32 v16, v16, v17")
    A("s_mov_b32 s13, s11")
    for t in range(14):
        A(f"s_mov_b32 m0, {L_W1 + 1024 * t}")
        A(f"buffer_load_dwordx4 v16, s[52:55], s13 offen lds {ppol}")
        if t < 13:
            A(f"s_add_u32 s13, s13, {32 * 5376}")
    A("L_h0b:")
    tagwait_barrier()
    A("s_waitcnt vmcnt(15)")
    A("s_branch L_silu")
    A("L_h1a:")
    A("v_lshrrev_b32 v16, 1, v1")
    A("v_lshlrev_b32 v16, 13, v16")
    A("v_and_b32 v17, 1, v1")
    A("v_lshl_add_u32 v16, v17, 4, v16")
    A("s_lshl_b32 s13, s6, 10")
    A("s_lshr_b32 s14, s2, 3")
    A("s_lshl_b32 s14, s14, 5")
    A("s_add_u32 s13, s13, s14")
    for t in range(14):
        A(f"s_mov_b32 m0, {L_W2 + 1024 * t}")
        A(f"buffer_load_dwordx4 v16, s[56:59], s13 offen lds {ppol}")
        if t < 13:
            A(f"s_add_u32 s13, s13, {32 * 8192}")
    tagwait_barrier()
    A("s_waitcnt vmcnt(14)")
    A("s_branch L_silu")
    A("L_h2a:")
    A("v_lshrrev_b32 v16, 3, v1")
    A("v_mul_u32_u24 v16, 896, v16")
    A("v_and_b32 v17, 7, v1")
    A("v_lshl_add_u32 v16, v17, 4, v16")
    for t in range(7):
        A(f"global_load_dwordx4 {vr(72 + 4 * t)}, v16, s[16:17] offset:{128 * t}")
    tagwait_barrier()
    A("s_waitcnt vmcnt(7)")
    A("s_branch L_silu")
    A("L_h3a:")
    A("s_getpc_b64 s[14:15]")
    A("L_pc:")
    A("s_sub_u32 s14, s14, L_pc-L_start")
    A("s_subb_u32 s15, s15, 0")
    NPF = 20
    if pref:
        A("v_mov_b32 v16, v2")
        for t in range(NPF):
            A(f"global_load_dwordx4 v[68:71], v16, s[14:15] offset:{(t % 4) * 1024}")
            if t % 4 == 3:
                A("v_add_u32 v16, 0x1000, v16")
    tagwait_barrier()
    A(f"s_waitcnt vmcnt({NPF if pref else 0})")
    A("L_silu:")
    A("s_cmp_eq_u32 s9, 0")
    A("s_cbranch_scc1 L_nosilu")
    A(f"s_mov_b32 s13, {f2u(-LOG2E):#x}")
    for k in range(8):
        d = 8 + k
        a, b_ = 20 + 4 * k, 21 + 4 * k
        A(f"v_lshlrev_b32 v{a}, 16, v{d}")
        A(f"v_and_b32 v{b_}, s46, v{d}")
        A(f"v_mul_f32 v{a + 2}, s13, v{a}")
        A(f"v_mul_f32 v{a + 3}, s13, v{b_}")
        A(f"v_exp_f32 v{a + 2}, v{a + 2}")
        A(f"v_exp_f32 v{a + 3}, v{a + 3}")
    for k in range(8):
        a = 20 + 4 * k
        A(f"v_add_f32 v{a + 2}, 1.0, v{a + 2}")
        A(f"v_add_f32 v{a + 3}, 1.0, v{a + 3}")
        A(f"v_rcp_f32 v{a + 2}, v{a + 2}")
        A(f"v_rcp_f32 v{a + 3}, v{a + 3}")
    for k in range(8):
        a = 20 + 4 * k
        A(f"v_mul_f32 v{a}, v{a}, v{a + 2}")
        A(f"v_mul_f32 v{a + 1}, v{a + 1}, v{a + 3}")
        A(f"v_cvt_pk_bf16_f32 v{8 + k}, v{a}, v{a + 1}")
    A(f"s_mul_i32 s13, s8, {2 * SC_RS}")
    A("v_add_u32 v16, s13, v2")
    A("v_add_u32 v17, 16, v16")
    A("v_cmp_le_u32 vcc, 56, v1")
    A("v_cndmask_b32 v16, v16, v17, vcc")
    A(f"ds_write_b128 v16, v[8:11] offset:{L_SC}")
    A("s_mov_b32 exec_hi, 0xffff")
    A(f"ds_write_b128 v17, v[12:15] offset:{L_SC + 1024}")
    A("s_mov_b32 exec_hi, -1")
    A("s_cmp_lg_u32 s8, 2")
    A("s_cbranch_scc1 L_siluflag")
    A("s_waitcnt vmcnt(0)")
    A("v_mov_b32 v20, 0"); A("v_mov_b32 v21, 0"); A("v_mov_b32 v22, 0"); A("v_mov_b32 v23, 0")
    A("v_mov_b32 v24, 0x3f803f80")
    for k in range(28):
        A(f"v_dot2c_f32_bf16 v{20 + 2 * (k & 1)}, v{72 + k}, v24")
        A(f"v_dot2c_f32_bf16 v{21 + 2 * (k & 1)}, v{72 + k}, v{72 + k}")
    A("v_add_f32 v20, v20, v22")
    A("v_add_f32 v21, v21, v23")
    for ctl in ("quad_perm:[1,0,3,2]", "quad_perm:[2,3,0,1]", "row_half_mirror"):
        A(f"v_add_f32_dpp v20, v20, v20 {ctl} row_mask:0xf bank_mask:0xf")
        A(f"v_add_f32_dpp v21, v21, v21 {ctl} row_mask:0xf bank_mask:0xf")
    A(f"s_mov_b32 s13, {f2u(1.0 / 448):#x}")
    A("v_mul_f32 v20, s13, v20")
    A("v_mul_f32 v21, s13, v21")
    A("v_fma_f32 v21, -v20, v20, v21")
    A("v_max_f32 v21, 0, v21")
    rnd2(20, 21, 22)
    A(f"v_add_f32 v21, {f2u(1e-5):#x}, v21")
    rnd1(21)
    A("v_sqrt_f32 v21, v21")
    rnd1(21)
    A("v_rcp_f32 v21, v21")
    A("v_and_b32 v22, 0x38, v1")
    A(f"ds_write_b64 v22, v[20:21] offset:{L_ST1}")
    A("L_siluflag:")
    A("v_mov_b32 v16, 0"); A("v_mov_b32 v17, 1")
    A("s_mov_b64 exec, 1")
    A(f"ds_add_u32 v16, v17 offset:{L_CNT1}")
    A("s_mov_b64 exec, -1")
    A("s_cmp_lg_u32 s8, 0")
    A("s_cbranch_scc1 L_nosilu")
    A("L_spin1:")
    A(f"ds_read_b32 v17, v16 offset:{L_CNT1}")
    A("s_waitcnt lgkmcnt(0)")
    A("v_readfirstlane_b32 s13, v17")
    A("s_cmp_ge_u32 s13, 4")
    A("s_cbranch_scc1 L_spin1d")
    spin_fail()
    A("s_branch L_spin1")
    A("L_spin1d:")
    A("v_and_b32 v16, 7, v1")
    A(f"v_mul_u32_u24 v17, {SC_RS}, v16")
    A("v_lshl_add_u32 v17, v3, 3, v17")
    A("v_lshlrev_b32 v20, 3, v16")
    A(f"ds_read_b64 v[22:23], v20 offset:{L_ST1}")
    A(f"v_add_u32 v17, {L_SC}, v17")
    for kb in range(14):
        A(f"ds_read2_b64 {vr(128 + 4 * kb)}, v17 offset0:{8 * kb} offset1:{8 * kb + 4}")
    A("v_lshlrev_b32 v16, 3, v1")
    A("s_waitcnt vmcnt(0)")
    for kb in range(14):
        A(f"ds_read_b64_tr_b16 {vr(72 + 4 * kb, 2)}, v16 offset:{L_W1 + 1024 * kb}")
        A(f"ds_read_b64_tr_b16 {vr(74 + 4 * kb, 2)}, v16 offset:{L_W1 + 1024 * kb + 512}")
    A("s_waitcnt lgkmcnt(0)")
    for kb in range(14):
        A(f"v_mfma_f32_16x16x32_bf16 v[24:27], {vr(72 + 4 * kb)}, {vr(128 + 4 * kb)}, {'0' if kb == 0 else 'v[24:27]'}")
    A("v_mov_b32 v29, s45")
    A("v_mov_b32 v31, s45")
    A("v_cvt_pk_bf16_f32 v28, v24, v25")
    A("v_cvt_pk_bf16_f32 v30, v26, v27")
    A("s_cmp_eq_u32 s9, 1")
    A("s_cbranch_scc1 L_hepi")
    A("v_lshlrev_b32 v16, 6, v4")
    A("v_lshl_add_u32 v16, v3, 4, v16")
    A("s_lshl_b32 s13, s10, 9")
    A(f"s_add_u32 s13, s13, {WS_G}")
    A("s_mov_b32 exec_lo, 0x00ff00ff"); A("s_mov_b32 exec_hi, 0x00ff00ff")
    A("buffer_store_dwordx4 v[28:31], v16, s[48:51], s13 offen sc1")
    A("s_mov_b64 exec, -1")
    A("s_branch L_nosilu")
    A("L_hepi:")
    A("v_mov_b32 v32, v28")
    A("v_mov_b32 v33, v30")
    A("v_permlane32_swap_b32 v28, v32")
    A("v_permlane32_swap_b32 v30, v33")
    A("v_lshlrev_b32 v34, 16, v18"); A("v_and_b32 v35, s46, v18"); A("v_lshlrev_b32 v36, 16, v19"); A("v_and_b32 v37, s46, v19")
    A("v_lshlrev_b32 v38, 16, v32"); A("v_and_b32 v39, s46, v32"); A("v_lshlrev_b32 v40, 16, v33"); A("v_and_b32 v41, s46, v33")
    A("v_lshlrev_b32 v42, 16, v28"); A("v_and_b32 v43, s46, v28"); A("v_lshlrev_b32 v44, 16, v30"); A("v_and_b32 v45, s46, v30")
    for r in range(4):
        A(f"v_sub_f32 v{34 + r}, v{34 + r}, v22")
        A(f"v_add_f32 v{38 + r}, 1.0, v{38 + r}")
    rnd2(34, 35, 46); rnd2(36, 37, 47); rnd2(38, 39, 48); rnd2(40, 41, 49)
    for r in range(4):
        A(f"v_mul_f32 v{34 + r}, v{34 + r}, v23")
    rnd2(34, 35, 46); rnd2(36, 37, 47)
    for r in range(4):
        A(f"v_mul_f32 v{34 + r}, v{34 + r}, v{38 + r}")
    rnd2(34, 35, 46); rnd2(36, 37, 47)
    for r in range(4):
        A(f"v_add_f32 v{34 + r}, v{34 + r}, v{42 + r}")
    A("v_cvt_pk_bf16_f32 v28, v34, v35")
    A("v_cvt_pk_bf16_f32 v30, v36, v37")
    A("v_lshlrev_b32 v16, 5, v4")
    A("v_lshl_add_u32 v16, v3, 4, v16")
    A("s_lshl_b32 s13, s10, 8")
    A(f"s_add_u32 s13, s13, {WS_H}")
    A("s_mov_b32 exec_lo, 0x00ff00ff"); A("s_mov_b32 exec_hi, 0")
    A("buffer_store_dwordx4 v[28:31], v16, s[48:51], s13 offen sc1")
    A("s_mov_b64 exec, -1")
    A("L_nosilu:")
    stamp(1)
    A("s_cmp_lg_u32 s8, 1")
    A("s_cbranch_scc1 L_bq")
    A("v_lshlrev_b32 v16, 3, v1")
    A("v_bfe_u32 v17, v1, 3, 1")
    A("v_lshlrev_b32 v17, 9, v17")
    A("v_lshrrev_b32 v18, 5, v1")
    A("v_lshl_add_u32 v17, v18, 8, v17")
    A("v_and_b32 v18, 7, v1")
    A("v_lshl_add_u32 v17, v18, 5, v17")
    A("v_and_b32 v18, 1, v3")
    A("v_lshl_add_u32 v17, v18, 4, v17")
    A("s_waitcnt vmcnt(0)")
    for kb in range(14):
        A(f"ds_read_b64_tr_b16 {vr(72 + 4 * kb, 2)}, v16 offset:{L_W2 + 1024 * kb}")
        A(f"ds_read_b64_tr_b16 {vr(74 + 4 * kb, 2)}, v16 offset:{L_W2 + 1024 * kb + 512}")
    A("L_pollH:")
    A(f"s_mov_b32 s13, {WS_H}")
    for kb in range(14):
        A(f"buffer_load_dwordx4 {vr(128 + 4 * kb)}, v17, s[48:51], s13 offen offset:{(kb % 4) * 1024} sc1")
        if kb % 4 == 3:
            A("s_add_u32 s13, s13, 0x1000")
    A("s_waitcnt vmcnt(0)")
    tagcheck([128 + 4 * kb for kb in range(14)], 20, "L_gotH")
    spin_fail()
    A("s_branch L_pollH")
    A("L_gotH:")
    stamp(2)
    for kb in range(14):
        a = 128 + 4 * kb
        A(f"v_mov_b32 v{a + 1}, v{a + 2}")
        A(f"v_mov_b32_dpp v{a + 3}, v{a + 2} row_ror:8 row_mask:0xf bank_mask:0xf")
        A(f"v_mov_b32_dpp v{a + 2}, v{a} row_ror:8 row_mask:0xf bank_mask:0xf")
    A("s_waitcnt lgkmcnt(0)")
    for kb in range(14):
        A(f"v_mfma_f32_16x16x32_bf16 v[24:27], {vr(72 + 4 * kb)}, {vr(128 + 4 * kb)}, {'0' if kb == 0 else 'v[24:27]'}")
    A("v_mov_b32 v29, s45")
    A("v_mov_b32 v31, s45")
    A("v_lshlrev_b32 v16, 11, v4")
    A("v_lshl_add_u32 v16, v3, 4, v16")
    A("s_lshl_b32 s13, s6, 14")
    A(f"s_add_u32 s13, s13, {WS_Q}")
    A("s_lshr_b32 s14, s2, 3")
    A("s_lshl_b32 s14, s14, 6")
    A("s_add_u32 s14, s14, s13")
    A("s_lshl_b32 s15, s4, 11")
    A("s_add_u32 s13, s13, s15")
    A("v_bfe_u32 v17, v1, 3, 1")
    A("v_lshlrev_b32 v17, 10, v17")
    A("v_and_b32 v18, 7, v1")
    A("v_lshl_add_u32 v17, v18, 5, v17")
    A("v_lshl_add_u32 v17, v3, 8, v17")
    A("v_cvt_pk_bf16_f32 v28, v24, v25")
    A("v_cvt_pk_bf16_f32 v30, v26, v27")
    A("s_mov_b32 exec_lo, 0x00ff00ff"); A("s_mov_b32 exec_hi, 0x00ff00ff")
    A("buffer_store_dwordx4 v[28:31], v16, s[48:51], s14 offen sc1")
    A("s_mov_b64 exec, -1")
    A("L_pollQ:")
    A("buffer_load_dwordx4 v[32:35], v17, s[48:51], s13 offen sc1")
    A("buffer_load_dwordx4 v[36:39], v17, s[48:51], s13 offen offset:16 sc1")
    A("s_waitcnt vmcnt(0)")
    tagcheck([32, 36], 20, "L_gotQ")
    spin_fail()
    A("s_branch L_pollQ")
    A("L_gotQ:")
    A("v_mov_b32 v33, v34")
    A("v_mov_b32 v34, v36")
    A("v_mov_b32 v35, v38")
    A(f"ds_write_b128 v2, v[32:35] offset:{L_QL}")
    A("s_waitcnt lgkmcnt(0)")
    A("L_bq:")
    stamp(3)
    A("s_barrier")
    A("s_cmp_lg_u32 s8, 2")
    A("s_cbranch_scc1 L_wts")
    A("s_mul_i32 s13, s4, 896")
    A("v_min_u32 v16, 55, v1")
    A("v_lshlrev_b32 v16, 4, v16")
    A("v_add_u32 v17, s13, v16")
    A("global_load_dwordx4 v[20:23], v17, s[16:17]")
    A("v_lshrrev_b32 v17, 2, v1")
    A("v_lshlrev_b32 v17, 9, v17")
    A("v_and_b32 v18, 3, v1")
    A("v_lshl_add_u32 v17, v18, 4, v17")
    A("s_lshl_b32 s14, s4, 6")
    A(f"s_add_u32 s14, s14, {WS_G}")
    A("L_pollG:")
    A("s_mov_b32 s13, s14")
    for t in range(7):
        A(f"buffer_load_dwordx4 {vr(24 + 4 * t)}, v17, s[48:51], s13 offen sc1")
        if t < 6:
            A("s_add_u32 s13, s13, 0x2000")
    A("s_waitcnt vmcnt(0)")
    tagcheck([24 + 4 * t for t in range(7)], 18, "L_gotG")
    spin_fail()
    A("s_branch L_pollG")
    A("L_gotG:")
    A(f"ds_write_b128 v16, v[20:23] offset:{L_XR}")
    A("v_lshlrev_b32 v17, 3, v1")
    for t in range(7):
        A(f"v_mov_b32 v{25 + 4 * t}, v{26 + 4 * t}")
    for t in range(7):
        A(f"ds_write_b64 v17, {vr(24 + 4 * t, 2)} offset:{L_MD + 512 * t}")
    A("L_wts:")
    A("s_mov_b32 s60, s24"); A("s_mov_b32 s61, s25"); A(f"s_mov_b32 s62, {4096 * 896}"); A("s_mov_b32 s63, 0x20000")
    A("s_mov_b32 s64, s32"); A("s_mov_b32 s65, s33"); A(f"s_mov_b32 s66, {1792 * 896}"); A("s_mov_b32 s67, 0x20000")
    A("v_bfe_u32 v16, v1, 3, 1")
    A("v_and_b32 v17, 7, v1")
    A("v_lshrrev_b32 v18, 1, v3")
    A("v_lshlrev_b32 v18, 8, v18")
    A("v_and_b32 v19, 1, v3")
    A("v_lshl_add_u32 v18, v19, 5, v18")
    A("v_lshl_add_u32 v18, v16, 4, v18")
    A("v_mul_u32_u24 v18, 896, v18")
    A("v_lshl_add_u32 v18, v17, 4, v18")
    A("v_lshl_add_u32 v19, v16, 2, v3")
    A("v_mul_u32_u24 v19, 896, v19")
    A("v_lshl_add_u32 v19, v17, 4, v19")
    A("s_lshl_b32 s68, s6, 3")
    A("s_add_u32 s68, s68, s5")
    A(f"s_mul_i32 s68, s68, {64 * 896}")
    A("s_lshl_b32 s69, s8, 8")
    A("s_add_u32 s68, s68, s69")
    A(f"s_mul_i32 s70, s7, {56 * 896}")
    A("s_add_u32 s70, s70, s69")
    WO = lambda tau, t: 72 + 4 * (16 * tau + t)
    WD = lambda tau, t: 200 + 4 * (7 * tau + t)
    cnt = 0
    for tau in range(2):
        if tau == 1:
            A("s_cmp_eq_u32 s8, 3")
            A("s_cbranch_scc1 L_ml")
        A("s_mov_b32 s13, s68")
        for t in range(16):
            if cnt >= W:
                A(f"s_waitcnt vmcnt({W - 1})")
            A(f"buffer_load_dwordx4 {vr(WO(tau, t))}, v18, s[60:63], s13 offen offset:{(t % 4) * 896 + tau * 128} {wpol}")
            cnt += 1
            if t % 4 == 3 and t < 15:
                A("s_add_u32 s13, s13, 3584")
        A("s_mov_b32 s13, s70")
        for t in range(7):
            A(f"s_waitcnt vmcnt({W - 1})")
            A(f"buffer_load_dwordx4 {vr(WD(tau, t))}, v19, s[64:67], s13 offen offset:{tau * 128} {wpol}")
            if t < 6:
                A("s_add_u32 s13, s13, 7168")
    A("s_branch L_pre_x")
    A("L_ml:")
    A("v_mov_b32 v16, 0")
    A("L_spin2:")
    A(f"ds_read_b32 v17, v16 offset:{L_CNT2}")
    A("s_waitcnt lgkmcnt(0)")
    A("v_readfirstlane_b32 s13, v17")
    A("s_cmp_ge_u32 s13, 4")
    A("s_cbranch_scc1 L_spin2d")
    spin_fail()
    A("s_branch L_spin2")
    A("L_spin2d:")
    A("v_lshrrev_b32 v17, 5, v1")
    A("v_lshlrev_b32 v16, 3, v17")
    A(f"v_add_u32 v16, {L_MLL}, v16")
    A("ds_read2_b64 v[20:23], v16 offset0:0 offset1:2")
    A("ds_read2_b64 v[24:27], v16 offset0:4 offset1:6")
    A(f"s_mov_b32 s15, {f2u(LOG2E / 16):#x}")
    A("s_lshl_b32 s13, s4, 3")
    A("s_add_u32 s13, s13, s6")
    A("s_lshl_b32 s13, s13, 7")
    A(f"s_add_u32 s13, s13, {WS_ML}")
    A("s_lshl_b32 s14, s5, 5")
    A("s_add_u32 s14, s14, s13")
    A("v_lshlrev_b32 v17, 4, v17")
    A("s_waitcnt lgkmcnt(0)")
    A("v_max3_f32 v28, v20, v22, v24")
    A("v_max_f32 v28, v28, v26")
    for w in range(4):
        A(f"v_sub_f32 v{32 + w}, v{20 + 2 * w}, v28")
        A(f"v_mul_f32 v{32 + w}, s15, v{32 + w}")
        A(f"v_exp_f32 v{32 + w}, v{32 + w}")
    A("v_mul_f32 v30, v32, v21")
    A("v_fmac_f32 v30, v33, v23")
    A("v_fmac_f32 v30, v34, v25")
    A("v_fmac_f32 v30, v35, v27")
    A("v_mov_b32 v29, s45")
    A("v_mov_b32 v31, s45")
    A("s_mov_b32 exec_lo, 1"); A("s_mov_b32 exec_hi, 1")
    A("buffer_store_dwordx4 v[28:31], v17, s[48:51], s14 offen sc1")
    A("s_mov_b64 exec, -1")
    A("L_pollM:")
    for k in range(4):
        A(f"buffer_load_dwordx4 {vr(36 + 4 * k)}, v17, s[48:51], s13 offen offset:{32 * k} sc1")
    A("s_waitcnt vmcnt(0)")
    tagcheck([36 + 4 * k for k in range(4)], 52, "L_gotM")
    spin_fail()
    A("s_branch L_pollM")
    A("L_gotM:")
    A("v_max3_f32 v52, v36, v40, v44")
    A("v_max_f32 v52, v52, v48")
    for k in range(4):
        A(f"v_sub_f32 v{36 + 4 * k}, v{36 + 4 * k}, v52")
        A(f"v_mul_f32 v{36 + 4 * k}, s15, v{36 + 4 * k}")
        A(f"v_exp_f32 v{36 + 4 * k}, v{36 + 4 * k}")
    A("v_sub_f32 v28, v28, v52")
    A("v_mul_f32 v28, s15, v28")
    A("v_exp_f32 v28, v28")
    A("v_mul_f32 v53, v36, v38")
    A("v_fmac_f32 v53, v40, v42")
    A("v_fmac_f32 v53, v44, v46")
    A("v_fmac_f32 v53, v48, v50")
    A("v_rcp_f32 v53, v53")
    A("v_mul_f32 v28, v28, v53")
    for w in range(4):
        A(f"v_mul_f32 v{32 + w}, v{32 + w}, v28")
    A(f"ds_write_b128 v17, v[32:35] offset:{L_FL}")
    if pref2:
        A("s_getpc_b64 s[14:15]")
        A("L_pc2:")
        A("s_sub_u32 s14, s14, L_pc2-L_start")
        A("s_subb_u32 s15, s15, 0")
        A("v_mov_b32 v16, v2")
        for t in range(NPF):
            A(f"global_load_dwordx4 v[68:71], v16, s[14:15] offset:{(t % 4) * 1024}")
            if t % 4 == 3:
                A("v_add_u32 v16, 0x1000, v16")
    A("L_pre_x:")
    masks(8, 12)
    A("v_lshrrev_b32 v12, 5, v1")
    A("v_lshlrev_b32 v14, 4, v12")
    A("v_lshlrev_b32 v12, 9, v12")
    A("v_bfe_u32 v13, v1, 1, 1")
    A("v_lshl_add_u32 v12, v13, 8, v12")
    A("v_bfe_u32 v13, v1, 2, 3")
    A("v_lshl_add_u32 v12, v13, 4, v12")
    A("v_and_b32 v13, 1, v1")
    A("v_lshl_add_u32 v12, v13, 3, v12")
    A("s_lshr_b32 s13, s8, 1")
    A("s_lshl_b32 s13, s13, 10")
    A("s_and_b32 s14, s8, 1")
    A("s_lshl_b32 s14, s14, 7")
    A("s_add_u32 s13, s13, s14")
    A("v_add_u32 v12, s13, v12")
    A("s_lshl_b32 s71, s4, 3")
    A("s_add_u32 s71, s71, s6")
    A("s_lshl_b32 s71, s71, 14")
    A(f"s_add_u32 s71, s71, {WS_OA}")
    A("s_lshl_b32 s13, s8, 12")
    A("s_lshl_b32 s14, s5, 10")
    A("s_add_u32 s72, s71, s13")
    A("s_add_u32 s72, s72, s14")
    A("s_lshl_b32 s13, s5, 12")
    A("s_add_u32 s71, s71, s13")
    A("v_lshrrev_b32 v15, 1, v3")
    A("v_lshlrev_b32 v15, 6, v15")
    A("v_and_b32 v13, 7, v1")
    A("v_lshl_add_u32 v15, v13, 3, v15")
    A("v_and_b32 v13, 1, v3")
    A("v_lshl_add_u32 v15, v13, 2, v15")
    A("s_lshl_b32 s13, s8, 7")
    A("v_add_u32 v15, s13, v15")
    A("v_lshlrev_b32 v16, 3, v15")
    A("v_lshlrev_b32 v15, 2, v15")
    A("s_lshl_b32 s13, s4, 5")
    A("s_add_u32 s13, s13, s7")
    A("s_lshl_b32 s73, s13, 11")
    A(f"s_add_u32 s73, s73, {WS_Y}")
    A("s_lshl_b32 s74, s13, 12")
    A(f"s_add_u32 s74, s74, {WS_C}")
    A("s_cmp_eq_u32 s8, 3")
    A("s_cselect_b32 s79, 0, 0x00ff00ff")
    A("s_mov_b32 s78, 0x00ff00ff")
    A("v_and_b32 v13, 7, v1")
    A("v_lshlrev_b32 v17, 3, v13")
    A("v_bfe_u32 v13, v1, 3, 1")
    A("v_lshl_add_u32 v17, v13, 2, v17")
    A("v_add_u32 v17, v17, v3")
    A("v_lshlrev_b32 v17, 2, v17")
    A(f"v_add_u32 v17, {L_GU}, v17")
    A("v_lshrrev_b32 v18, 3, v1")
    A("v_lshlrev_b32 v18, 12, v18")
    A("v_and_b32 v13, 7, v1")
    A("v_lshl_add_u32 v18, v13, 4, v18")
    A("s_lshl_b32 s75, s4, 17")
    A("s_lshl_b32 s13, s7, 7")
    A("s_add_u32 s75, s75, s13")
    A(f"s_add_u32 s75, s75, {WS_C}")
    A("s_lshl_b32 s13, s7, 5")
    A("v_lshl_add_u32 v19, v13, 2, s13")
    A("v_mov_b32 v21, s45")
    A("v_mov_b32 v23, s45")
    A("s_waitcnt vmcnt(0) lgkmcnt(0)")
    stamp(4)
    A("s_barrier")
    A(f"ds_read_b128 v[24:27], v14 offset:{L_FL}")
    for w in range(4):
        A(f"ds_read_b64 {vr(28 + 2 * w, 2)}, v12 offset:{L_OB + 2048 * w}")
    A("s_waitcnt lgkmcnt(0)")
    A("v_mul_f32 v20, v24, v28")
    A("v_mul_f32 v22, v24, v29")
    for w in range(1, 4):
        A(f"v_fmac_f32 v20, v{24 + w}, v{28 + 2 * w}")
        A(f"v_fmac_f32 v22, v{24 + w}, v{29 + 2 * w}")
    A("buffer_store_dwordx4 v[20:23], v2, s[48:51], s72 offen sc1")
    A("L_pollA:")
    for k in range(4):
        A(f"buffer_load_dwordx4 {vr(24 + 4 * k)}, v2, s[48:51], s71 offen offset:{1024 * k} sc1")
    A("s_waitcnt vmcnt(0)")
    tagcheck([24 + 4 * k for k in range(4)], 40, "L_gotA")
    spin_fail()
    A("s_branch L_pollA")
    A("L_gotA:")
    A("v_add_f32 v24, v24, v28")
    A("v_add_f32 v26, v26, v30")
    A("v_add_f32 v32, v32, v36")
    A("v_add_f32 v34, v34, v38")
    A("v_add_f32 v24, v24, v32")
    A("v_add_f32 v26, v26, v34")
    A("v_cvt_pk_bf16_f32 v40, v24, v24")
    A("v_cvt_pk_bf16_f32 v42, v26, v26")
    quadswap(41, 40)
    quadswap(43, 42)
    HB = [44, 48]
    abuild_bcast(HB[0], 40, 41, 0, 8)
    for t in range(16):
        if t + 1 < 16:
            t1 = t + 1
            abuild_bcast(HB[t1 & 1], 40 + 2 * (t1 & 1), 41 + 2 * (t1 & 1), t1 >> 1, 8)
        c0, c1 = ("0", "0") if t == 0 else ("v[52:55]", "v[56:59]")
        A(f"v_mfma_f32_16x16x32_bf16 v[52:55], {vr(HB[t & 1])}, {vr(WO(0, t))}, {c0}")
        A(f"v_mfma_f32_16x16x32_bf16 v[56:59], {vr(HB[t & 1])}, {vr(WO(1, t))}, {c1}")
    fold_tiles(52, 56)
    A("v_cvt_pk_bf16_f32 v20, v52, v53")
    A("v_cvt_pk_bf16_f32 v22, v54, v55")
    A("s_mov_b64 exec, s[78:79]")
    A("buffer_store_dwordx4 v[20:23], v15, s[48:51], s73 offen sc1")
    A("s_mov_b64 exec, -1")
    stamp(5)
    A("s_barrier")
    A("s_barrier")
    for w in range(4):
        A(f"ds_read2st64_b32 {vr(24 + 2 * w, 2)}, v17 offset0:{2 * w} offset1:{2 * w + 1}")
    A(f"ds_read_b32 v60, v19 offset:{L_X1}")
    A(f"ds_read_b32 v61, v19 offset:{L_MD + 2688}")
    A(f"s_mov_b32 s13, {f2u(-LOG2E):#x}")
    A("s_waitcnt lgkmcnt(0)")
    A("v_add_f32 v24, v24, v26")
    A("v_add_f32 v25, v25, v27")
    A("v_add_f32 v28, v28, v30")
    A("v_add_f32 v29, v29, v31")
    A("v_add_f32 v24, v24, v28")
    A("v_add_f32 v25, v25, v29")
    rnd2(24, 25, 26)
    A("v_mul_f32 v24, s13, v24")
    A("v_exp_f32 v24, v24")
    A("v_add_f32 v24, 1.0, v24")
    A("v_rcp_f32 v24, v24")
    rnd1(24)
    A("v_mul_f32 v24, v24, v25")
    A("v_cvt_pk_bf16_f32 v40, v24, v24")
    quadswap(41, 40)
    abuild_bcast(HB[0], 40, 41, 0, 8)
    for t in range(7):
        if t + 1 < 7:
            abuild_bcast(HB[(t + 1) & 1], 40, 41, t + 1, 8)
        c0, c1 = ("0", "0") if t == 0 else ("v[52:55]", "v[56:59]")
        A(f"v_mfma_f32_16x16x32_bf16 v[52:55], {vr(HB[t & 1])}, {vr(WD(0, t))}, {c0}")
        A(f"v_mfma_f32_16x16x32_bf16 v[56:59], {vr(HB[t & 1])}, {vr(WD(1, t))}, {c1}")
    A("v_mov_b32 v25, s45")
    A("v_mov_b32 v27, s45")
    fold_tiles(52, 56)
    A("v_mov_b32 v20, v52")
    A("v_mov_b32 v22, v53")
    A("v_mov_b32 v24, v54")
    A("v_mov_b32 v26, v55")
    A("s_mov_b64 exec, s[78:79]")
    A("buffer_store_dwordx4 v[20:23], v16, s[48:51], s74 offen sc1")
    A("buffer_store_dwordx4 v[24:27], v16, s[48:51], s74 offen offset:16 sc1")
    A("s_mov_b64 exec, -1")
    stamp(6)
    A("s_cmp_lg_u32 s8, 0")
    A("s_cbranch_scc1 L_fin")
    A("s_cmp_ge_u32 s7, 28")
    A("s_cbranch_scc1 L_fin")
    A("s_mul_i32 s14, s4, 896")
    A("v_add_u32 v19, s14, v19")
    A("L_pollC:")
    A("s_mov_b32 s13, s75")
    for t in range(4):
        A(f"buffer_load_dwordx4 {vr(28 + 4 * t)}, v18, s[48:51], s13 offen sc1")
        if t < 3:
            A("s_add_u32 s13, s13, 0x8000")
    A("s_waitcnt vmcnt(0)")
    tagcheck([28 + 4 * t for t in range(4)], 44, "L_gotC")
    spin_fail()
    A("s_branch L_pollC")
    A("L_gotC:")
    A("v_add_f32 v28, v28, v32")
    A("v_add_f32 v30, v30, v34")
    A("v_add_f32 v36, v36, v40")
    A("v_add_f32 v38, v38, v42")
    A("v_add_f32 v28, v28, v36")
    A("v_add_f32 v30, v30, v38")
    A("v_add_f32_dpp v28, v28, v28 row_ror:8 row_mask:0xf bank_mask:0xf")
    A("v_add_f32_dpp v30, v30, v30 row_ror:8 row_mask:0xf bank_mask:0xf")
    A("v_mov_b32 v29, v28")
    A("v_mov_b32 v31, v30")
    A("v_permlane16_swap_b32 v28, v29")
    A("v_permlane16_swap_b32 v30, v31")
    A("v_add_f32 v28, v28, v29")
    A("v_add_f32 v30, v30, v31")
    A("v_mov_b32 v29, v28")
    A("v_mov_b32 v31, v30")
    A("v_permlane32_swap_b32 v28, v29")
    A("v_permlane32_swap_b32 v30, v31")
    A("v_add_f32 v28, v28, v29")
    A("v_add_f32 v30, v30, v31")
    rnd2(28, 30, 29)
    A("v_lshlrev_b32 v32, 16, v61"); A("v_and_b32 v33, s46, v61")
    A("v_mul_f32 v28, v28, v32")
    A("v_mul_f32 v30, v30, v33")
    rnd2(28, 30, 29)
    A("v_lshlrev_b32 v32, 16, v60"); A("v_and_b32 v33, s46, v60")
    A("v_add_f32 v28, v28, v32")
    A("v_add_f32 v30, v30, v33")
    A("v_cvt_pk_bf16_f32 v28, v28, v30")
    A("s_mov_b64 exec, 0xff")
    A("global_store_dword v19, v28, s[38:39]")
    A("s_cmp_lg_u32 s2, 0")
    A("s_cbranch_scc1 L_fin")
    A("s_mov_b64 exec, 1")
    A("v_mov_b32 v28, 0")
    A("v_mov_b32 v29, s44")
    A("buffer_store_dword v29, v28, s[48:51], 0 offen sc1")
    A("L_fin:")
    if stamps:
        A("s_mov_b64 exec, 1")
        A("s_memrealtime s[100:101]")
        A("s_lshl_b32 s13, s2, 3")
        A("s_add_u32 s13, s13, s3")
        A("s_lshl_b32 s13, s13, 6")
        A(f"s_add_u32 s42, s42, {512 << 20}")
        A("s_addc_u32 s43, s43, 0")
        A("s_waitcnt lgkmcnt(0)")
        A("v_mov_b32 v2, s13")
        for k in range(16):
            A(f"v_mov_b32 v{4 + k}, s{86 + k}")
        for k in range(4):
            A(f"global_store_dwordx4 v2, {vr(4 + 4 * k)}, s[42:43] offset:{16 * k}")
    A("L_end:")
    A("s_endpgm")
    A("L_codeend:")
    A(f".fill ({NPF * 1024} - (L_codeend - L_start)) / 4, 4, 0xbf800000")
    A('.section .rodata,"a"')
    A(".p2align 6")
    A(f".amdhsa_kernel {NAME}_kernel")
    A("  .amdhsa_next_free_vgpr 256")
    A("  .amdhsa_next_free_sgpr 102")
    A("  .amdhsa_accum_offset 256")
    A("  .amdhsa_group_segment_fixed_size 0")
    A("  .amdhsa_kernarg_size 112")
    A("  .amdhsa_user_sgpr_count 2")
    A("  .amdhsa_user_sgpr_kernarg_segment_ptr 1")
    A("  .amdhsa_system_sgpr_workgroup_id_x 1")
    A(".end_amdhsa_kernel")
    txt = A.finish()
    return txt, A.npad


if __name__ == "__main__":
    out = sys.argv[1]
    kw = {}
    for a in sys.argv[2:]:
        k, v = a.split("=")
        kw[k] = int(v) if v.lstrip("-").isdigit() else v.replace("+", " ")
    txt, npad = gen(**kw)
    open(out, "w").write(txt)
    print(out, "lines", txt.count("\n"), "pads", npad)
```

```python
import sys, os
sys.path.insert(0, os.path.dirname(os.path.abspath(__file__)))
from asmlib import Asm

NAME = "adaLN_cond__sliding_block_cached__glu_gated_glu__decode"

WS_H, WS_G, WS_Q, WS_ML, WS_OA, WS_Y, WS_C = 0x1000, 0x5000, 0x14000, 0x34000, 0x40000, 0x140000, 0x1C0000
WS_SIZE = 0x2C0000
L_CNT1, L_CNT2, L_FL, L_ST1, L_MLL, L_ST2 = 0, 4, 32, 64, 128, 192
L_QL, L_GU, L_X1, L_XR, L_MD, L_SC, L_OB, L_W1, L_W2 = 256, 1280, 3328, 4224, 5120, 8704, 16384, 24576, 38912
LDS_BYTES = 53248
SC_RS = 912
LOG2E = 1.4426950408889634


def f2u(x):
    import struct
    return struct.unpack("<I", struct.pack("<f", x))[0]


def gen(DK=8, RV=6, W=6, stamps=0, wpol="", spol="nt", fpol="", ppol="", rot=4096, pref=1, pref2=1, dbg=0):
    A = Asm()
    NSLOT = 56
    slot = lambda n: 32 + 4 * n
    vr = lambda r, n=4: f"v[{r}:{r + n - 1}]"
    nst = [0]

    def stamp(i):
        if stamps or dbg:
            A(f"s_memrealtime s[{86 + 2 * i}:{87 + 2 * i}]")

    uid = [0]

    def spin_fail():
        A("s_sub_u32 s84, s84, 1")
        A("s_cbranch_scc1 L_fin")

    def rnd2(a, b, t):
        A(f"v_cvt_pk_bf16_f32 v{t}, v{a}, v{b}")
        A(f"v_lshlrev_b32 v{a}, 16, v{t}")
        A(f"v_and_b32 v{b}, s46, v{t}")

    def rnd1(a):
        A(f"v_cvt_pk_bf16_f32 v{a}, v{a}, v{a}")
        A(f"v_and_b32 v{a}, s46, v{a}")

    def tagcheck(bases, acc, lab_ok_fallthrough_fail):
        first = True
        for k, r in enumerate(bases):
            if first:
                A(f"v_xor_b32 v{acc}, s45, v{r + 1}")
                A(f"v_xor_b32 v{acc + 1}, s45, v{r + 3}")
                first = False
            else:
                A(f"v_bitop3_b32 v{acc}, v{acc}, v{r + 1}, s45 bitop3:0xf6")
                A(f"v_bitop3_b32 v{acc + 1}, v{acc + 1}, v{r + 3}, s45 bitop3:0xf6")
        A(f"v_or_b32 v{acc}, v{acc}, v{acc + 1}")
        A(f"v_cmp_ne_u32 vcc, 0, v{acc}")
        A(f"s_cbranch_vccz {lab_ok_fallthrough_fail}")

    def masks(r0, t0):
        A(f"v_and_b32 v{t0}, 1, v1")
        A(f"v_lshlrev_b32 v{t0}, 4, v{t0}")
        A(f"v_mov_b32 v{t0 + 1}, 0xffff")
        A(f"v_lshlrev_b32 v{t0}, v{t0}, v{t0 + 1}")
        A(f"v_bfe_u32 v{t0 + 1}, v1, 1, 2")
        for r in range(4):
            A(f"v_cmp_eq_u32 vcc, {r}, v{t0 + 1}")
            A(f"v_cndmask_b32 v{r0 + r}, 0, v{t0}, vcc")

    def abuild_bcast(dst, P, Psw, x, m0):
        for r in range(4):
            src = P if (x >> 2) == (r >> 1) else Psw
            q = x & 3
            A(f"v_and_b32_dpp v{dst + r}, v{src}, v{m0 + r} quad_perm:[{q},{q},{q},{q}] row_mask:0xf bank_mask:0xf")

    def quadswap(dst, src):
        A(f"v_mov_b32_dpp v{dst}, v{src} row_shl:4 row_mask:0xf bank_mask:0x5")
        A(f"v_mov_b32_dpp v{dst}, v{src} row_shr:4 row_mask:0xf bank_mask:0xa")

    def fold_tiles(d0, d1):
        for r in range(4):
            A(f"v_permlane32_swap_b32 v{d0 + r}, v{d1 + r}")
        for r in range(4):
            A(f"v_add_f32_dpp v{d0 + r}, v{d1 + r}, v{d0 + r} row_ror:8 row_mask:0xf bank_mask:0xf")

    hdr = open(os.path.join(os.path.dirname(os.path.abspath(__file__)), "header.txt")).read().rstrip("\n")
    A(hdr)
    A(f"; @launch grid=(256,1,1) block=(512,1,1) lds={LDS_BYTES}")
    A('.amdgcn_target "amdgcn-amd-amdhsa--gfx950"')
    A(".text")
    A(f".globl {NAME}_kernel")
    A(".p2align 8")
    A(f".type {NAME}_kernel,@function")
    A(f"{NAME}_kernel:")
    A("L_start:")
    A("s_cmp_ge_u32 s2, 256")
    A("s_cbranch_scc1 L_end")
    stamp(0)
    A("s_load_dwordx16 s[16:31], s[0:1], 0")
    A("s_load_dwordx8 s[32:39], s[0:1], 64")
    A("s_load_dwordx4 s[40:43], s[0:1], 96")
    A("v_lshrrev_b32 v2, 6, v0")
    A("v_and_b32 v1, 63, v0")
    A("v_readfirstlane_b32 s3, v2")
    A("s_lshr_b32 s4, s2, 5")
    A("s_bfe_u32 s5, s2, 0x20003")
    A("s_and_b32 s6, s2, 7")
    A("s_lshl_b32 s7, s6, 2")
    A("s_add_u32 s7, s7, s5")
    A("s_mov_b32 s46, 0xffff0000")
    A("s_mov_b32 s84, 0x10000")
    A("s_cmp_ge_u32 s3, 4")
    A("s_cbranch_scc1 L_helper")

    A("; ---------------- streamer ----------------")
    A("v_bfe_u32 v2, v1, 3, 1")
    A("v_lshlrev_b32 v2, 9, v2")
    A("v_and_b32 v3, 7, v1")
    A("v_lshl_add_u32 v2, v3, 4, v2")
    A("v_lshrrev_b32 v3, 4, v1")
    A("v_lshl_add_u32 v2, v3, 7, v2")
    A("s_lshl_b32 s68, s4, 3")
    A("s_add_u32 s68, s68, s6")
    A("s_lshl_b32 s68, s68, 22")
    A("s_lshl_b32 s69, s5, 18")
    A("s_add_u32 s68, s68, s69")
    A(f"s_add_u32 s68, s68, {6144 * 512}")
    A(f"s_mul_i32 s70, s2, {rot}")
    A("s_lshl_b32 s69, s3, 12")
    A("s_add_u32 s70, s70, s69")
    A("s_and_b32 s70, s70, 0x3ffff")
    A("s_mov_b32 s71, s70")
    A("s_mov_b32 s54, 0x40000")
    A("s_mov_b32 s55, 0x20000")
    A("s_waitcnt lgkmcnt(0)")
    A("s_load_dword s44, s[42:43], 0")
    A("s_add_u32 s52, s18, s68")
    A("s_addc_u32 s53, s19, 0")
    issued = [0]

    def k_issue(n, sl):
        A(f"buffer_load_dwordx4 {vr(slot(sl))}, v2, s[52:55], s70 offen offset:{(n % 4) * 1024} {spol}")
        if n % 4 == 3 and n < 63:
            A("s_add_u32 s70, s70, 0x4000")
            A("s_and_b32 s70, s70, 0x3ffff")
        issued[0] += 1
        return issued[0] - 1

    def v_issue(n):
        sl = 8 + n % (2 * RV)
        A(f"buffer_load_dwordx4 {vr(slot(sl))}, v3, s[56:59], s71 offen offset:{[0, 256, 2048, 2304][n % 4]} {spol}")
        if n % 4 == 3 and n < 63:
            A("s_add_u32 s71, s71, 0x4000")
            A("s_and_b32 s71, s71, 0x3ffff")
        issued[0] += 1
        return issued[0] - 1

    def wait_for(idx):
        A(f"s_waitcnt vmcnt({min(63, issued[0] - 1 - idx)})")

    kidx, vidx = {}, {}
    for n in range(DK):
        kidx[n] = k_issue(n, n)
    A("s_add_u32 s56, s20, s68")
    A("s_addc_u32 s57, s21, 0")
    A("s_mov_b32 s58, 0x40000")
    A("s_mov_b32 s59, 0x20000")
    A("v_and_b32 v4, 1, v3")
    A("v_lshlrev_b32 v4, 10, v4")
    A("v_lshrrev_b32 v5, 1, v3")
    A("v_lshl_add_u32 v4, v5, 9, v4")
    A("v_and_b32 v5, 15, v1")
    A("v_lshl_add_u32 v30, v5, 4, v4")
    A("v_bfe_u32 v4, v1, 3, 1")
    A("v_and_b32 v5, 7, v1")
    A("v_min_u32 v5, 6, v5")
    A("v_lshlrev_b32 v5, 4, v5")
    A("v_lshl_add_u32 v6, v4, 5, v3")
    A("v_mul_u32_u24 v6, 3584, v6")
    A("v_add_u32 v28, v6, v5")
    A("v_mul_u32_u24 v6, 24, v4")
    A("v_add3_u32 v6, v6, v3, 64")
    A("v_mul_u32_u24 v6, 3584, v6")
    A("v_add_u32 v29, v6, v5")
    A("v_mov_b32 v3, v30")
    masks(16, 4)
    A("s_mov_b32 s60, s28"); A("s_mov_b32 s61, s29"); A(f"s_mov_b32 s62, {448 * 3584}"); A("s_mov_b32 s63, 0x20000")
    A("s_mov_b32 s64, s30"); A("s_mov_b32 s65, s31"); A(f"s_mov_b32 s66, {448 * 3584}"); A("s_mov_b32 s67, 0x20000")
    A("s_mov_b32 s48, s42"); A("s_mov_b32 s49, s43"); A(f"s_mov_b32 s50, {WS_SIZE}"); A("s_mov_b32 s51, 0x20000")
    A(f"s_mul_i32 s72, s3, {112 * 3584}")
    A("s_mul_i32 s69, s7, 112")
    A("s_add_u32 s72, s72, s69")
    A("s_mov_b32 s73, s72")
    A("s_mov_b32 s80, 0xcccccccc"); A("s_mov_b32 s81, 0xcccccccc")
    A("s_mov_b32 s82, 0xf0f0f0f0"); A("s_mov_b32 s83, 0xf0f0f0f0")
    A("v_lshlrev_b32 v31, 4, v1")
    A("s_waitcnt lgkmcnt(0)")
    A("s_add_u32 s44, s44, 1")
    A("s_and_b32 s45, s44, 0xbfffbfff")
    A("s_barrier")
    for n in range(DK, NSLOT):
        A(f"s_waitcnt vmcnt({DK - 1})")
        kidx[n] = k_issue(n, n)
    stamp(1)
    A("s_barrier")
    A(f"ds_read_b128 v[4:7], v31 offset:{L_QL}")
    A("s_mov_b32 vcc_lo, 0xaaaaaaaa")
    A("s_mov_b32 vcc_hi, 0xaaaaaaaa")
    A("s_waitcnt lgkmcnt(0)")
    stamp(2)
    kslot = lambda n: n if n < NSLOT else n - NSLOT
    dreg = lambda n: 20 if n == 0 else slot(kslot(n - 1))
    nv = 0
    for m in range(8):
        wait_for(kidx[8 * m + 7])
        for n in range(8 * m, 8 * m + 8):
            A(f"v_mfma_f32_16x16x32_bf16 {vr(dreg(n))}, {vr(slot(kslot(n)))}, v[4:7], 0")
        D = [dreg(n) for n in range(8 * m, 8 * m + 8)]
        for d in D:
            A(f"v_cndmask_b32 v{d}, v{d}, v{d + 1}, vcc")
            A(f"v_cndmask_b32 v{d + 2}, v{d + 2}, v{d + 3}, vcc")
        for d in D:
            A(f"v_cndmask_b32 v{d}, v{d}, v{d + 2}, s[80:81]")
        for p in range(4):
            A(f"v_permlane16_swap_b32 v{D[2 * p]}, v{D[2 * p + 1]}")
        for p in range(4):
            A(f"v_cndmask_b32 v{D[2 * p]}, v{D[2 * p]}, v{D[2 * p + 1]}, s[82:83]")
        y = [D[0], D[2], D[4], D[6]]
        z0, z1 = D[0] + 1, D[2] + 1
        A(f"v_add_f32_dpp v{z0}, v{y[0]}, v{y[0]} row_shl:4 row_mask:0xf bank_mask:0x5")
        A(f"v_add_f32_dpp v{z1}, v{y[1]}, v{y[1]} row_shl:4 row_mask:0xf bank_mask:0x5")
        A(f"v_add_f32_dpp v{z0}, v{y[2]}, v{y[2]} row_shr:4 row_mask:0xf bank_mask:0xa")
        A(f"v_add_f32_dpp v{z1}, v{y[3]}, v{y[3]} row_shr:4 row_mask:0xf bank_mask:0xa")
        t0, t1 = D[0] + 2, D[2] + 2
        A(f"v_cndmask_b32 v{t1}, v{z1}, v{z0}, s[80:81]")
        A(f"v_cndmask_b32 v{t0}, v{z0}, v{z1}, s[80:81]")
        pend = []
        if m < 4:
            pend = [("k", NSLOT + 2 * m), ("k", NSLOT + 2 * m + 1)]
        else:
            cnt = (2 * RV) // 4 + (1 if (m - 4) < (2 * RV) % 4 else 0)
            pend = [("v", nv + c) for c in range(cnt)]
            nv += cnt
        A(f"v_add_f32_dpp v{t0}, v{t1}, v{t0} quad_perm:[2,3,0,1] row_mask:0xf bank_mask:0xf")
        A(f"v_add_f32_dpp v{8 + m}, v{t0}, v{t0} quad_perm:[1,0,3,2] row_mask:0xf bank_mask:0xf")
        rnd1(8 + m)
        for kind, n in pend:
            if kind == "k":
                A(f"s_waitcnt vmcnt({DK - 1})")
                kidx[n] = k_issue(n, kslot(n))
            else:
                A(f"s_waitcnt vmcnt({max(DK, 2 * RV) - 1})")
                vidx[n] = v_issue(n)
    assert nv == 2 * RV
    A("v_max3_f32 v20, v8, v9, v10")
    A("v_max3_f32 v21, v11, v12, v13")
    A("v_max3_f32 v20, v20, v14, v15")
    A("v_max_f32 v20, v20, v21")
    A("v_max_f32_dpp v20, v20, v20 quad_perm:[2,3,0,1] row_mask:0xf bank_mask:0xf")
    A("v_max_f32_dpp v20, v20, v20 row_half_mirror row_mask:0xf bank_mask:0xf")
    A("v_mov_b32 v21, v20")
    A("v_permlane16_swap_b32 v20, v21")
    A("v_max_f32 v20, v20, v21")
    A("v_mov_b32 v21, v20")
    A("v_permlane32_swap_b32 v20, v21")
    A("v_max_f32 v20, v20, v21")
    A(f"s_mov_b32 s69, {f2u(LOG2E / 16):#x}")
    A("v_mul_f32 v22, s69, v20")
    for m in range(8):
        A(f"v_fma_f32 v{8 + m}, v{8 + m}, s69, -v22")
    for m in range(8):
        A(f"v_exp_f32 v{8 + m}, v{8 + m}")
    A("v_add_f32 v21, v8, v9")
    A("v_add_f32 v22, v10, v11")
    A("v_add_f32 v23, v12, v13")
    A("v_add_f32 v24, v14, v15")
    A("v_add_f32 v21, v21, v22")
    A("v_add_f32 v23, v23, v24")
    A("v_add_f32 v21, v21, v23")
    for m in range(8):
        A(f"v_cvt_pk_bf16_f32 v{8 + m}, v{8 + m}, v{8 + m}")
    A("v_add_f32_dpp v21, v21, v21 quad_perm:[2,3,0,1] row_mask:0xf bank_mask:0xf")
    A("v_add_f32_dpp v21, v21, v21 row_half_mirror row_mask:0xf bank_mask:0xf")
    A("v_mov_b32 v22, v21")
    A("v_permlane16_swap_b32 v21, v22")
    A("v_add_f32 v21, v21, v22")
    A("v_mov_b32 v22, v21")
    A("v_permlane32_swap_b32 v21, v22")
    A("v_add_f32 v21, v21, v22")
    A("s_lshl_b32 s69, s3, 4")
    A("v_add_u32 v22, s69, v1")
    A("v_mov_b32 v23, 0")
    A("v_mov_b32 v24, 1")
    A("s_mov_b64 exec, 0x101")
    A(f"ds_write_b64 v22, v[20:21] offset:{L_MLL}")
    A("s_mov_b64 exec, 1")
    A(f"ds_add_u32 v23, v24 offset:{L_CNT2}")
    A("s_mov_b64 exec, -1")
    stamp(3)
    AB = [slot(48), slot(49)]

    def pv_abuild(gm):
        m, x = gm >> 2, gm & 3
        for r in range(4):
            sh = 2 * (x - r)
            d = AB[gm & 1] + r
            if sh == 0:
                A(f"v_and_b32 v{d}, v{8 + m}, v{16 + r}")
            elif sh > 0:
                A(f"v_and_b32_dpp v{d}, v{8 + m}, v{16 + r} row_shl:{sh} row_mask:0xf bank_mask:0xf bound_ctrl:0")
            else:
                A(f"v_and_b32_dpp v{d}, v{8 + m}, v{16 + r} row_shr:{-sh} row_mask:0xf bank_mask:0xf bound_ctrl:0")

    wcount = [0]

    def gu_issue():
        n = wcount[0]
        t, mat = n >> 1, n & 1
        A(f"buffer_load_dwordx4 {vr(slot(20 + n))}, v{28 if t < 8 else 29}, s[{60 + 4 * mat}:{63 + 4 * mat}], s72 offen {fpol}")
        if mat == 1:
            if t == 7:
                A("s_mov_b32 s72, s73")
            elif t < 13:
                A(f"s_add_u32 s72, s72, {4 * 3584}")
        issued[0] += 1
        wcount[0] += 1

    pv_abuild(0)
    for gm in range(32):
        if gm + 1 < 32:
            pv_abuild(gm + 1)
        wait_for(vidx[2 * gm + 1])
        s0, s1 = slot(8 + (2 * gm) % (2 * RV)), slot(8 + (2 * gm + 1) % (2 * RV))
        c0, c1 = ("0", "0") if gm == 0 else ("v[20:23]", "v[24:27]")
        A(f"v_mfma_f32_16x16x32_bf16 v[20:23], {vr(AB[gm & 1])}, {vr(s0)}, {c0}")
        A(f"v_mfma_f32_16x16x32_bf16 v[24:27], {vr(AB[gm & 1])}, {vr(s1)}, {c1}")
        if wcount[0] < 28 and gm < 26:
            gu_issue()
            if gm < 2:
                gu_issue()
        if nv < 64:
            vidx[nv] = v_issue(nv); nv += 1
            vidx[nv] = v_issue(nv); nv += 1
        if gm == 26:
            assert wcount[0] == 28
            A("v_lshrrev_b32 v4, 4, v1")
            A("v_lshlrev_b32 v4, 11, v4")
            A("v_and_b32 v5, 15, v1")
            A("v_lshl_add_u32 v28, v5, 4, v4")
            A("v_bfe_u32 v5, v1, 3, 1")
            A("v_mul_u32_u24 v5, 6, v5")
            A("v_and_b32 v6, 7, v1")
            A("v_min_u32 v7, 5, v6")
            A("v_add3_u32 v5, v5, v7, 16")
            A("v_lshl_add_u32 v29, v5, 4, v4")
            A("s_mul_i32 s69, s3, 112")
            A("v_lshrrev_b32 v4, 4, v1")
            A("v_add_u32 v4, s69, v4")
            A("v_lshl_add_u32 v5, v5, 2, v4")
            A("v_lshlrev_b32 v253, 1, v5")
            A("v_and_b32 v5, 15, v1")
            A("v_lshl_add_u32 v5, v5, 2, v4")
            A("v_lshlrev_b32 v252, 1, v5")
            A("v_cmp_gt_u32 s[74:75], 6, v6")
            A("v_bfe_u32 v4, v1, 2, 1")
            A("v_lshlrev_b32 v4, 4, v4")
            A("v_mov_b32 v5, 0x3f80")
            A("v_lshlrev_b32 v4, v4, v5")
            A("v_and_b32 v5, 11, v1")
            A("v_cmp_eq_u32 vcc, 0, v5")
            A("v_cndmask_b32 v232, 0, v4, vcc")
            A("v_cmp_eq_u32 vcc, 8, v5")
            A("v_cndmask_b32 v234, 0, v4, vcc")
            A("v_cmp_eq_u32 vcc, 1, v5")
            A("v_cndmask_b32 v236, 0, v4, vcc")
            A("v_cmp_eq_u32 vcc, 9, v5")
            A("v_cndmask_b32 v238, 0, v4, vcc")
            for r in (233, 235, 237, 239):
                A(f"v_mov_b32 v{r}, 0")
            for r in range(244, 252):
                A(f"v_mov_b32 v{r}, 0")
            A("s_lshl_b32 s76, s4, 16")
            A("s_mul_i32 s69, s3, 448")
            A("s_add_u32 s76, s76, s69")
            A(f"s_add_u32 s76, s76, {WS_Y}")
            A("s_lshl_b32 s69, s3, 11")
            A("v_add_u32 v30, s69, v31")
    A(f"ds_write_b128 v30, v[20:23] offset:{L_OB}")
    A(f"ds_write_b128 v30, v[24:27] offset:{L_OB + 1024}")
    A("s_waitcnt lgkmcnt(0)")
    A("s_barrier")
    stamp(4)
    for k, (va, off) in enumerate([(252, L_XR), (253, L_XR), (252, L_MD), (253, L_MD), (252, L_MD + 896), (253, L_MD + 896), (252, L_MD + 1792), (253, L_MD + 1792)]):
        A(f"ds_read_u16_d16_hi v{244 + k}, v{va} offset:{off}")
    A("L_pollY:")
    A("s_mov_b32 s77, s76")
    for i in range(8):
        A(f"buffer_load_dwordx4 {vr(slot(2 * i))}, v28, s[48:51], s77 offen sc1")
        A(f"buffer_load_dwordx4 {vr(slot(2 * i + 1))}, v29, s[48:51], s77 offen sc1")
        if i < 7:
            A("s_add_u32 s77, s77, 0x2000")
    A("s_waitcnt vmcnt(0)")
    tagcheck([slot(n) for n in range(16)], 4, "L_gotY")
    spin_fail()
    A("s_branch L_pollY")
    A("L_gotY:")
    for i in range(8):
        A(f"v_mfma_f32_16x16x32_bf16 v[240:243], v[232:235], {vr(slot(2 * i))}, {'0' if i == 0 else 'v[240:243]'}")
        A(f"v_mfma_f32_16x16x32_bf16 v[240:243], v[236:239], {vr(slot(2 * i + 1))}, v[240:243]")
    stamp(5)
    A("s_waitcnt lgkmcnt(0)")
    A("v_add_f32 v250, 1.0, v250")
    A("v_add_f32 v251, 1.0, v251")
    rnd2(250, 251, 4)
    rnd2(240, 241, 4)
    A("v_mul_f32 v240, v246, v240")
    A("v_mul_f32 v241, v247, v241")
    rnd2(240, 241, 4)
    A("v_add_f32 v240, v244, v240")
    A("v_add_f32 v241, v245, v241")
    rnd2(240, 241, 4)
    A("v_cndmask_b32 v5, 0, v241, s[74:75]")
    A("v_add_f32 v6, v240, v5")
    A("v_mul_f32 v7, v240, v240")
    A("v_fmac_f32 v7, v5, v5")
    A(f"ds_write_b16 v252, v4 offset:{L_X1}")
    A(f"ds_write_b16_d16_hi v253, v4 offset:{L_X1}")
    for ctl in ("quad_perm:[1,0,3,2] row_mask:0xf", "quad_perm:[2,3,0,1] row_mask:0xf", "row_half_mirror row_mask:0xf", "row_mirror row_mask:0xf",
                "row_bcast:15 row_mask:0xa", "row_bcast:31 row_mask:0xc"):
        A(f"v_add_f32_dpp v6, v6, v6 {ctl} bank_mask:0xf")
        A(f"v_add_f32_dpp v7, v7, v7 {ctl} bank_mask:0xf")
    A("s_lshl_b32 s69, s3, 3")
    A("v_mov_b32 v5, s69")
    A("s_mov_b32 exec_lo, 0")
    A("s_mov_b32 exec_hi, 0x80000000")
    A(f"ds_write_b64 v5, v[6:7] offset:{L_ST2}")
    A("s_mov_b64 exec, -1")
    A("v_mov_b32 v5, 0")
    A("s_waitcnt lgkmcnt(0)")
    A("s_barrier")
    A(f"ds_read_b128 v[8:11], v5 offset:{L_ST2}")
    A(f"ds_read_b128 v[12:15], v5 offset:{L_ST2 + 16}")
    A(f"s_mov_b32 s69, {f2u(1.0 / 448):#x}")
    A("s_waitcnt lgkmcnt(0)")
    A("v_add_f32 v8, v8, v10")
    A("v_add_f32 v9, v9, v11")
    A("v_add_f32 v12, v12, v14")
    A("v_add_f32 v13, v13, v15")
    A("v_add_f32 v8, v8, v12")
    A("v_add_f32 v9, v9, v13")
    A("v_mul_f32 v8, s69, v8")
    A("v_mul_f32 v9, s69, v9")
    A("v_fma_f32 v9, -v8, v8, v9")
    A("v_max_f32 v9, 0, v9")
    rnd2(8, 9, 4)
    A(f"v_add_f32 v9, {f2u(1e-5):#x}, v9")
    A("v_sub_f32 v240, v240, v8")
    A("v_sub_f32 v241, v241, v8")
    rnd1(9)
    rnd2(240, 241, 4)
    A("v_sqrt_f32 v9, v9")
    rnd1(9)
    A("v_rcp_f32 v9, v9")
    A("v_mul_f32 v240, v240, v9")
    A("v_mul_f32 v241, v241, v9")
    rnd2(240, 241, 4)
    A("v_mul_f32 v240, v240, v250")
    A("v_mul_f32 v241, v241, v251")
    rnd2(240, 241, 4)
    A("v_add_f32 v240, v240, v248")
    A("v_add_f32 v241, v241, v249")
    A("v_cvt_pk_bf16_f32 v8, v240, v240")
    A("v_cvt_pk_bf16_f32 v10, v241, v241")
    quadswap(9, 8)
    quadswap(11, 10)
    abuild_bcast(AB[0], 8, 9, 0, 16)
    for t in range(14):
        if t + 1 < 14:
            t1 = t + 1
            abuild_bcast(AB[t1 & 1], 8 if t1 < 8 else 10, 9 if t1 < 8 else 11, t1 if t1 < 8 else t1 - 8, 16)
        c0, c1 = ("0", "0") if t == 0 else ("v[20:23]", "v[24:27]")
        A(f"v_mfma_f32_16x16x32_bf16 v[20:23], {vr(AB[t & 1])}, {vr(slot(20 + 2 * t))}, {c0}")
        A(f"v_mfma_f32_16x16x32_bf16 v[24:27], {vr(AB[t & 1])}, {vr(slot(21 + 2 * t))}, {c1}")
    A("v_lshrrev_b32 v4, 5, v1")
    A("v_lshlrev_b32 v4, 8, v4")
    A("v_and_b32 v5, 7, v1")
    A("v_lshl_add_u32 v4, v5, 5, v4")
    A("v_bfe_u32 v5, v1, 4, 1")
    A("v_lshl_add_u32 v4, v5, 4, v4")
    A("s_lshl_b32 s69, s3, 9")
    A("v_add_u32 v4, s69, v4")
    fold_tiles(20, 24)
    A("s_mov_b32 exec_lo, 0x00ff00ff")
    A("s_mov_b32 exec_hi, 0x00ff00ff")
    A(f"ds_write_b128 v4, v[20:23] offset:{L_GU}")
    A("s_mov_b64 exec, -1")
    A("s_waitcnt lgkmcnt(0)")
    A("s_barrier")
    stamp(6)
    A("s_branch L_fin")

    A("; ---------------- helper ----------------")
    A("L_helper:")
    A("s_sub_u32 s8, s3, 4")
    A("s_mov_b32 s9, 0")
    A("s_mov_b32 s10, 0")
    A("s_mov_b32 s11, 0")
    A("s_mov_b32 s12, 16")
    A("s_lshr_b32 s13, s2, 3")
    A("s_cmp_ge_u32 s2, 64")
    A("s_cbranch_scc1 L_role2")
    A("s_cmp_ge_u32 s6, 7")
    A("s_cbranch_scc1 L_roled")
    A("s_mov_b32 s9, 1")
    A("s_lshl_b32 s10, s6, 3")
    A("s_add_u32 s10, s10, s13")
    A("s_lshl_b32 s11, s10, 4")
    A("s_mov_b32 s12, 896")
    A("s_branch L_roled")
    A("L_role2:")
    A("s_cmp_ge_u32 s2, 192")
    A("s_cbranch_scc1 L_roled")
    A("s_sub_u32 s13, s13, 8")
    A("s_lshr_b32 s14, s13, 2")
    A("s_lshl_b32 s14, s14, 3")
    A("s_add_u32 s14, s14, s6")
    A("s_cmp_ge_u32 s14, 28")
    A("s_cbranch_scc1 L_roled")
    A("s_mov_b32 s9, 2")
    A("s_and_b32 s13, s13, 3")
    A("s_lshl_b32 s10, s14, 2")
    A("s_add_u32 s10, s10, s13")
    A("s_lshl_b32 s11, s10, 5")
    A("s_add_u32 s11, s11, 1792")
    A("L_roled:")
    A("v_lshlrev_b32 v2, 4, v1")
    A("v_lshrrev_b32 v3, 4, v1")
    A("v_and_b32 v4, 15, v1")
    A("s_mul_i32 s13, s8, 1792")
    A("v_add_u32 v5, s13, v2")
    A("s_mov_b32 s50, %d" % WS_SIZE); A("s_mov_b32 s51, 0x20000")
    A("s_mov_b32 s54, %d" % (448 * 5376)); A("s_mov_b32 s55, 0x20000")
    A("s_mov_b32 s58, %d" % (448 * 8192)); A("s_mov_b32 s59, 0x20000")
    A("s_waitcnt lgkmcnt(0)")
    A("s_load_dword s44, s[42:43], 0")
    A("s_mov_b32 s48, s42"); A("s_mov_b32 s49, s43")
    A("s_mov_b32 s52, s36"); A("s_mov_b32 s53, s37")
    A("s_mov_b32 s56, s22"); A("s_mov_b32 s57, s23")
    A("s_cmp_eq_u32 s9, 0")
    A("s_cbranch_scc1 L_noc")
    A("global_load_dwordx4 v[8:11], v5, s[34:35]")
    A("s_mov_b32 exec_hi, 0xffff")
    A("global_load_dwordx4 v[12:15], v5, s[34:35] offset:1024")
    A("s_mov_b32 exec_hi, -1")
    A("L_noc:")
    A("s_cmp_eq_u32 s8, 1"); A("s_cbranch_scc1 L_h1a")
    A("s_cmp_eq_u32 s8, 2"); A("s_cbranch_scc1 L_h2a")
    A("s_cmp_eq_u32 s8, 3"); A("s_cbranch_scc1 L_h3a")

    def tagwait_barrier():
        A("s_waitcnt lgkmcnt(0)")
        A("s_add_u32 s44, s44, 1")
        A("s_and_b32 s45, s44, 0xbfffbfff")
        A("s_barrier")

    A("v_mov_b32 v6, 0"); A("v_mov_b32 v7, 0")
    A(f"ds_write_b64 v6, v[6:7] offset:{L_CNT1}")
    A("s_cmp_eq_u32 s9, 0")
    A("s_cbranch_scc1 L_h0b")
    A("v_and_b32 v16, 7, v1")
    A("v_mul_u32_u24 v16, 896, v16")
    A("v_and_b32 v17, 1, v3")
    A("v_lshl_add_u32 v16, v17, 3, v16")
    A("s_cmp_eq_u32 s9, 1")
    A("s_cselect_b32 s13, s11, 0")
    A("v_add_u32 v16, s13, v16")
    A("global_load_dwordx2 v[18:19], v16, s[16:17]")
    A("v_lshrrev_b32 v16, 1, v1")
    A("v_mul_u32_u24 v16, 5376, v16")
    A("v_and_b32 v17, 1, v1")
    A("v_mul_lo_u32 v17, v17, s12")
    A("v_add_u32 v16, v16, v17")
    A("s_mov_b32 s13, s11")
    for t in range(14):
        A(f"s_mov_b32 m0, {L_W1 + 1024 * t}")
        A(f"buffer_load_dwordx4 v16, s[52:55], s13 offen {ppol} lds")
        if t < 13:
            A(f"s_add_u32 s13, s13, {32 * 5376}")
    A("L_h0b:")
    tagwait_barrier()
    A("s_waitcnt vmcnt(15)")
    A("s_branch L_silu")
    A("L_h1a:")
    A("v_lshrrev_b32 v16, 1, v1")
    A("v_lshlrev_b32 v16, 13, v16")
    A("v_and_b32 v17, 1, v1")
    A("v_lshl_add_u32 v16, v17, 4, v16")
    A("s_lshl_b32 s13, s6, 10")
    A("s_lshr_b32 s14, s2, 3")
    A("s_lshl_b32 s14, s14, 5")
    A("s_add_u32 s13, s13, s14")
    for t in range(14):
        A(f"s_mov_b32 m0, {L_W2 + 1024 * t}")
        A(f"buffer_load_dwordx4 v16, s[56:59], s13 offen {ppol} lds")
        if t < 13:
            A(f"s_add_u32 s13, s13, {32 * 8192}")
    tagwait_barrier()
    A("s_waitcnt vmcnt(14)")
    A("s_branch L_silu")
    A("L_h2a:")
    A("v_lshrrev_b32 v16, 3, v1")
    A("v_mul_u32_u24 v16, 896, v16")
    A("v_and_b32 v17, 7, v1")
    A("v_lshl_add_u32 v16, v17, 4, v16")
    for t in range(7):
        A(f"global_load_dwordx4 {vr(72 + 4 * t)}, v16, s[16:17] offset:{128 * t}")
    tagwait_barrier()
    A("s_waitcnt vmcnt(7)")
    A("s_branch L_silu")
    A("L_h3a:")
    A("s_getpc_b64 s[14:15]")
    A("L_pc:")
    A("s_sub_u32 s14, s14, L_pc-L_start")
    A("s_subb_u32 s15, s15, 0")
    NPF = 20
    if pref:
        A("v_mov_b32 v16, v2")
        for t in range(NPF):
            A(f"global_load_dwordx4 v[68:71], v16, s[14:15] offset:{(t % 4) * 1024}")
            if t % 4 == 3:
                A("v_add_u32 v16, 0x1000, v16")
    tagwait_barrier()
    A(f"s_waitcnt vmcnt({NPF if pref else 0})")
    A("L_silu:")
    A("s_cmp_eq_u32 s9, 0")
    A("s_cbranch_scc1 L_nosilu")
    A(f"s_mov_b32 s13, {f2u(-LOG2E):#x}")
    for k in range(8):
        d = 8 + k
        a, b_ = 20 + 4 * k, 21 + 4 * k
        A(f"v_lshlrev_b32 v{a}, 16, v{d}")
        A(f"v_and_b32 v{b_}, s46, v{d}")
        A(f"v_mul_f32 v{a + 2}, s13, v{a}")
        A(f"v_mul_f32 v{a + 3}, s13, v{b_}")
        A(f"v_exp_f32 v{a + 2}, v{a + 2}")
        A(f"v_exp_f32 v{a + 3}, v{a + 3}")
    for k in range(8):
        a = 20 + 4 * k
        A(f"v_add_f32 v{a + 2}, 1.0, v{a + 2}")
        A(f"v_add_f32 v{a + 3}, 1.0, v{a + 3}")
        A(f"v_rcp_f32 v{a + 2}, v{a + 2}")
        A(f"v_rcp_f32 v{a + 3}, v{a + 3}")
    for k in range(8):
        a = 20 + 4 * k
        A(f"v_mul_f32 v{a}, v{a}, v{a + 2}")
        A(f"v_mul_f32 v{a + 1}, v{a + 1}, v{a + 3}")
        A(f"v_cvt_pk_bf16_f32 v{8 + k}, v{a}, v{a + 1}")
    A(f"s_mul_i32 s13, s8, {2 * SC_RS}")
    A("v_add_u32 v16, s13, v2")
    A("v_add_u32 v17, 16, v16")
    A("v_cmp_le_u32 vcc, 56, v1")
    A("v_cndmask_b32 v16, v16, v17, vcc")
    A(f"ds_write_b128 v16, v[8:11] offset:{L_SC}")
    A("s_mov_b32 exec_hi, 0xffff")
    A(f"ds_write_b128 v17, v[12:15] offset:{L_SC + 1024}")
    A("s_mov_b32 exec_hi, -1")
    A("s_cmp_lg_u32 s8, 2")
    A("s_cbranch_scc1 L_siluflag")
    A("s_waitcnt vmcnt(0)")
    A("v_mov_b32 v20, 0"); A("v_mov_b32 v21, 0"); A("v_mov_b32 v22, 0"); A("v_mov_b32 v23, 0")
    A("v_mov_b32 v24, 0x3f803f80")
    for k in range(28):
        A(f"v_dot2c_f32_bf16 v{20 + 2 * (k & 1)}, v{72 + k}, v24")
        A(f"v_dot2c_f32_bf16 v{21 + 2 * (k & 1)}, v{72 + k}, v{72 + k}")
    A("v_add_f32 v20, v20, v22")
    A("v_add_f32 v21, v21, v23")
    for ctl in ("quad_perm:[1,0,3,2]", "quad_perm:[2,3,0,1]", "row_half_mirror"):
        A(f"v_add_f32_dpp v20, v20, v20 {ctl} row_mask:0xf bank_mask:0xf")
        A(f"v_add_f32_dpp v21, v21, v21 {ctl} row_mask:0xf bank_mask:0xf")
    A(f"s_mov_b32 s13, {f2u(1.0 / 448):#x}")
    A("v_mul_f32 v20, s13, v20")
    A("v_mul_f32 v21, s13, v21")
    A("v_fma_f32 v21, -v20, v20, v21")
    A("v_max_f32 v21, 0, v21")
    rnd2(20, 21, 22)
    A(f"v_add_f32 v21, {f2u(1e-5):#x}, v21")
    rnd1(21)
    A("v_sqrt_f32 v21, v21")
    rnd1(21)
    A("v_rcp_f32 v21, v21")
    A("v_and_b32 v22, 0x38, v1")
    A(f"ds_write_b64 v22, v[20:21] offset:{L_ST1}")
    A("L_siluflag:")
    A("v_mov_b32 v16, 0"); A("v_mov_b32 v17, 1")
    A("s_mov_b64 exec, 1")
    A(f"ds_add_u32 v16, v17 offset:{L_CNT1}")
    A("s_mov_b64 exec, -1")
    A("s_cmp_lg_u32 s8, 0")
    A("s_cbranch_scc1 L_nosilu")
    A("L_spin1:")
    A(f"ds_read_b32 v17, v16 offset:{L_CNT1}")
    A("s_waitcnt lgkmcnt(0)")
    A("v_readfirstlane_b32 s13, v17")
    A("s_cmp_ge_u32 s13, 4")
    A("s_cbranch_scc1 L_spin1d")
    spin_fail()
    A("s_branch L_spin1")
    A("L_spin1d:")
    A("v_and_b32 v16, 7, v1")
    A(f"v_mul_u32_u24 v17, {SC_RS}, v16")
    A("v_lshl_add_u32 v17, v3, 3, v17")
    A("v_lshlrev_b32 v20, 3, v16")
    A(f"ds_read_b64 v[22:23], v20 offset:{L_ST1}")
    A(f"v_add_u32 v17, {L_SC}, v17")
    for kb in range(14):
        A(f"ds_read2_b64 {vr(128 + 4 * kb)}, v17 offset0:{8 * kb} offset1:{8 * kb + 4}")
    A("v_lshlrev_b32 v16, 3, v1")
    A("s_waitcnt vmcnt(0)")
    for kb in range(14):
        A(f"ds_read_b64_tr_b16 {vr(72 + 4 * kb, 2)}, v16 offset:{L_W1 + 1024 * kb}")
        A(f"ds_read_b64_tr_b16 {vr(74 + 4 * kb, 2)}, v16 offset:{L_W1 + 1024 * kb + 512}")
    A("s_waitcnt lgkmcnt(0)")
    for kb in range(14):
        A(f"v_mfma_f32_16x16x32_bf16 v[24:27], {vr(72 + 4 * kb)}, {vr(128 + 4 * kb)}, {'0' if kb == 0 else 'v[24:27]'}")
    A("v_mov_b32 v29, s45")
    A("v_mov_b32 v31, s45")
    A("v_cvt_pk_bf16_f32 v28, v24, v25")
    A("v_cvt_pk_bf16_f32 v30, v26, v27")
    A("s_cmp_eq_u32 s9, 1")
    A("s_cbranch_scc1 L_hepi")
    A("v_lshlrev_b32 v16, 6, v4")
    A("v_lshl_add_u32 v16, v3, 4, v16")
    A("s_lshl_b32 s13, s10, 9")
    A(f"s_add_u32 s13, s13, {WS_G}")
    A("s_mov_b32 exec_lo, 0x00ff00ff"); A("s_mov_b32 exec_hi, 0x00ff00ff")
    A("buffer_store_dwordx4 v[28:31], v16, s[48:51], s13 offen sc1")
    A("s_mov_b64 exec, -1")
    A("s_branch L_nosilu")
    A("L_hepi:")
    A("v_mov_b32 v32, v28")
    A("v_mov_b32 v33, v30")
    A("v_permlane32_swap_b32 v28, v32")
    A("v_permlane32_swap_b32 v30, v33")
    A("v_lshlrev_b32 v34, 16, v18"); A("v_and_b32 v35, s46, v18"); A("v_lshlrev_b32 v36, 16, v19"); A("v_and_b32 v37, s46, v19")
    A("v_lshlrev_b32 v38, 16, v32"); A("v_and_b32 v39, s46, v32"); A("v_lshlrev_b32 v40, 16, v33"); A("v_and_b32 v41, s46, v33")
    A("v_lshlrev_b32 v42, 16, v28"); A("v_and_b32 v43, s46, v28"); A("v_lshlrev_b32 v44, 16, v30"); A("v_and_b32 v45, s46, v30")
    for r in range(4):
        A(f"v_sub_f32 v{34 + r}, v{34 + r}, v22")
        A(f"v_add_f32 v{38 + r}, 1.0, v{38 + r}")
    rnd2(34, 35, 46); rnd2(36, 37, 47); rnd2(38, 39, 48); rnd2(40, 41, 49)
    for r in range(4):
        A(f"v_mul_f32 v{34 + r}, v{34 + r}, v23")
    rnd2(34, 35, 46); rnd2(36, 37, 47)
    for r in range(4):
        A(f"v_mul_f32 v{34 + r}, v{34 + r}, v{38 + r}")
    rnd2(34, 35, 46); rnd2(36, 37, 47)
    for r in range(4):
        A(f"v_add_f32 v{34 + r}, v{34 + r}, v{42 + r}")
    A("v_cvt_pk_bf16_f32 v28, v34, v35")
    A("v_cvt_pk_bf16_f32 v30, v36, v37")
    A("v_lshlrev_b32 v16, 5, v4")
    A("v_lshl_add_u32 v16, v3, 4, v16")
    A("s_lshl_b32 s13, s10, 8")
    A(f"s_add_u32 s13, s13, {WS_H}")
    A("s_mov_b32 exec_lo, 0x00ff00ff"); A("s_mov_b32 exec_hi, 0")
    A("buffer_store_dwordx4 v[28:31], v16, s[48:51], s13 offen sc1")
    A("s_mov_b64 exec, -1")
    A("L_nosilu:")
    stamp(1)
    A("s_cmp_lg_u32 s8, 1")
    A("s_cbranch_scc1 L_bq")
    A("v_lshlrev_b32 v16, 3, v1")
    A("v_bfe_u32 v17, v1, 3, 1")
    A("v_lshlrev_b32 v17, 9, v17")
    A("v_lshrrev_b32 v18, 5, v1")
    A("v_lshl_add_u32 v17, v18, 8, v17")
    A("v_and_b32 v18, 7, v1")
    A("v_lshl_add_u32 v17, v18, 5, v17")
    A("v_and_b32 v18, 1, v3")
    A("v_lshl_add_u32 v17, v18, 4, v17")
    A("s_waitcnt vmcnt(0)")
    for kb in range(14):
        A(f"ds_read_b64_tr_b16 {vr(72 + 4 * kb, 2)}, v16 offset:{L_W2 + 1024 * kb}")
        A(f"ds_read_b64_tr_b16 {vr(74 + 4 * kb, 2)}, v16 offset:{L_W2 + 1024 * kb + 512}")
    A("L_pollH:")
    A(f"s_mov_b32 s13, {WS_H}")
    for kb in range(14):
        A(f"buffer_load_dwordx4 {vr(128 + 4 * kb)}, v17, s[48:51], s13 offen offset:{(kb % 4) * 1024} sc1")
        if kb % 4 == 3:
            A("s_add_u32 s13, s13, 0x1000")
    A("s_waitcnt vmcnt(0)")
    tagcheck([128 + 4 * kb for kb in range(14)], 20, "L_gotH")
    spin_fail()
    A("s_branch L_pollH")
    A("L_gotH:")
    stamp(2)
    for kb in range(14):
        a = 128 + 4 * kb
        A(f"v_mov_b32 v{a + 1}, v{a + 2}")
        A(f"v_mov_b32_dpp v{a + 3}, v{a + 2} row_ror:8 row_mask:0xf bank_mask:0xf")
        A(f"v_mov_b32_dpp v{a + 2}, v{a} row_ror:8 row_mask:0xf bank_mask:0xf")
    A("s_waitcnt lgkmcnt(0)")
    for kb in range(14):
        A(f"v_mfma_f32_16x16x32_bf16 v[24:27], {vr(72 + 4 * kb)}, {vr(128 + 4 * kb)}, {'0' if kb == 0 else 'v[24:27]'}")
    A("v_mov_b32 v29, s45")
    A("v_mov_b32 v31, s45")
    A("v_lshlrev_b32 v16, 11, v4")
    A("v_lshl_add_u32 v16, v3, 4, v16")
    A("s_lshl_b32 s13, s6, 14")
    A(f"s_add_u32 s13, s13, {WS_Q}")
    A("s_lshr_b32 s14, s2, 3")
    A("s_lshl_b32 s14, s14, 6")
    A("s_add_u32 s14, s14, s13")
    A("s_lshl_b32 s15, s4, 11")
    A("s_add_u32 s13, s13, s15")
    A("v_bfe_u32 v17, v1, 3, 1")
    A("v_lshlrev_b32 v17, 10, v17")
    A("v_and_b32 v18, 7, v1")
    A("v_lshl_add_u32 v17, v18, 5, v17")
    A("v_lshl_add_u32 v17, v3, 8, v17")
    A("v_cvt_pk_bf16_f32 v28, v24, v25")
    A("v_cvt_pk_bf16_f32 v30, v26, v27")
    A("s_mov_b32 exec_lo, 0x00ff00ff"); A("s_mov_b32 exec_hi, 0x00ff00ff")
    A("buffer_store_dwordx4 v[28:31], v16, s[48:51], s14 offen sc1")
    A("s_mov_b64 exec, -1")
    A("L_pollQ:")
    A("buffer_load_dwordx4 v[32:35], v17, s[48:51], s13 offen sc1")
    A("buffer_load_dwordx4 v[36:39], v17, s[48:51], s13 offen offset:16 sc1")
    A("s_waitcnt vmcnt(0)")
    tagcheck([32, 36], 20, "L_gotQ")
    spin_fail()
    A("s_branch L_pollQ")
    A("L_gotQ:")
    A("v_mov_b32 v33, v34")
    A("v_mov_b32 v34, v36")
    A("v_mov_b32 v35, v38")
    A(f"ds_write_b128 v2, v[32:35] offset:{L_QL}")
    A("s_waitcnt lgkmcnt(0)")
    A("L_bq:")
    stamp(3)
    A("s_barrier")
    A("s_cmp_lg_u32 s8, 2")
    A("s_cbranch_scc1 L_wts")
    A("s_mul_i32 s13, s4, 896")
    A("v_min_u32 v16, 55, v1")
    A("v_lshlrev_b32 v16, 4, v16")
    A("v_add_u32 v17, s13, v16")
    A("global_load_dwordx4 v[20:23], v17, s[16:17]")
    A("v_lshrrev_b32 v17, 2, v1")
    A("v_lshlrev_b32 v17, 9, v17")
    A("v_and_b32 v18, 3, v1")
    A("v_lshl_add_u32 v17, v18, 4, v17")
    A("s_lshl_b32 s14, s4, 6")
    A(f"s_add_u32 s14, s14, {WS_G}")
    A("L_pollG:")
    A("s_mov_b32 s13, s14")
    for t in range(7):
        A(f"buffer_load_dwordx4 {vr(24 + 4 * t)}, v17, s[48:51], s13 offen sc1")
        if t < 6:
            A("s_add_u32 s13, s13, 0x2000")
    A("s_waitcnt vmcnt(0)")
    tagcheck([24 + 4 * t for t in range(7)], 18, "L_gotG")
    spin_fail()
    A("s_branch L_pollG")
    A("L_gotG:")
    A(f"ds_write_b128 v16, v[20:23] offset:{L_XR}")
    A("v_lshlrev_b32 v17, 3, v1")
    for t in range(7):
        A(f"v_mov_b32 v{25 + 4 * t}, v{26 + 4 * t}")
    for t in range(7):
        A(f"ds_write_b64 v17, {vr(24 + 4 * t, 2)} offset:{L_MD + 512 * t}")
    A("L_wts:")
    A("s_mov_b32 s60, s24"); A("s_mov_b32 s61, s25"); A(f"s_mov_b32 s62, {4096 * 896}"); A("s_mov_b32 s63, 0x20000")
    A("s_mov_b32 s64, s32"); A("s_mov_b32 s65, s33"); A(f"s_mov_b32 s66, {1792 * 896}"); A("s_mov_b32 s67, 0x20000")
    A("v_bfe_u32 v16, v1, 3, 1")
    A("v_and_b32 v17, 7, v1")
    A("v_lshrrev_b32 v18, 1, v3")
    A("v_lshlrev_b32 v18, 8, v18")
    A("v_and_b32 v19, 1, v3")
    A("v_lshl_add_u32 v18, v19, 5, v18")
    A("v_lshl_add_u32 v18, v16, 4, v18")
    A("v_mul_u32_u24 v18, 896, v18")
    A("v_lshl_add_u32 v18, v17, 4, v18")
    A("v_lshl_add_u32 v19, v16, 2, v3")
    A("v_mul_u32_u24 v19, 896, v19")
    A("v_lshl_add_u32 v19, v17, 4, v19")
    A("s_lshl_b32 s68, s6, 3")
    A("s_add_u32 s68, s68, s5")
    A(f"s_mul_i32 s68, s68, {64 * 896}")
    A("s_lshl_b32 s69, s8, 8")
    A("s_add_u32 s68, s68, s69")
    A(f"s_mul_i32 s70, s7, {56 * 896}")
    A("s_add_u32 s70, s70, s69")
    WO = lambda tau, t: 72 + 4 * (16 * tau + t)
    WD = lambda tau, t: 200 + 4 * (7 * tau + t)
    cnt = 0
    for tau in range(2):
        if tau == 1:
            A("s_cmp_eq_u32 s8, 3")
            A("s_cbranch_scc1 L_ml")
        A("s_mov_b32 s13, s68")
        for t in range(16):
            if cnt >= W:
                A(f"s_waitcnt vmcnt({W - 1})")
            A(f"buffer_load_dwordx4 {vr(WO(tau, t))}, v18, s[60:63], s13 offen offset:{(t % 4) * 896 + tau * 128} {wpol}")
            cnt += 1
            if t % 4 == 3 and t < 15:
                A("s_add_u32 s13, s13, 3584")
        A("s_mov_b32 s13, s70")
        for t in range(7):
            A(f"s_waitcnt vmcnt({W - 1})")
            A(f"buffer_load_dwordx4 {vr(WD(tau, t))}, v19, s[64:67], s13 offen offset:{tau * 128} {wpol}")
            if t < 6:
                A("s_add_u32 s13, s13, 7168")
    A("s_branch L_pre_x")
    A("L_ml:")
    A("v_mov_b32 v16, 0")
    A("L_spin2:")
    A(f"ds_read_b32 v17, v16 offset:{L_CNT2}")
    A("s_waitcnt lgkmcnt(0)")
    A("v_readfirstlane_b32 s13, v17")
    A("s_cmp_ge_u32 s13, 4")
    A("s_cbranch_scc1 L_spin2d")
    spin_fail()
    A("s_branch L_spin2")
    A("L_spin2d:")
    A("v_lshrrev_b32 v17, 5, v1")
    A("v_lshlrev_b32 v16, 3, v17")
    A(f"v_add_u32 v16, {L_MLL}, v16")
    A("ds_read2_b64 v[20:23], v16 offset0:0 offset1:2")
    A("ds_read2_b64 v[24:27], v16 offset0:4 offset1:6")
    A(f"s_mov_b32 s15, {f2u(LOG2E / 16):#x}")
    A("s_lshl_b32 s13, s4, 3")
    A("s_add_u32 s13, s13, s6")
    A("s_lshl_b32 s13, s13, 7")
    A(f"s_add_u32 s13, s13, {WS_ML}")
    A("s_lshl_b32 s14, s5, 5")
    A("s_add_u32 s14, s14, s13")
    A("v_lshlrev_b32 v17, 4, v17")
    A("s_waitcnt lgkmcnt(0)")
    A("v_max3_f32 v28, v20, v22, v24")
    A("v_max_f32 v28, v28, v26")
    for w in range(4):
        A(f"v_sub_f32 v{32 + w}, v{20 + 2 * w}, v28")
        A(f"v_mul_f32 v{32 + w}, s15, v{32 + w}")
        A(f"v_exp_f32 v{32 + w}, v{32 + w}")
    A("v_mul_f32 v30, v32, v21")
    A("v_fmac_f32 v30, v33, v23")
    A("v_fmac_f32 v30, v34, v25")
    A("v_fmac_f32 v30, v35, v27")
    A("v_mov_b32 v29, s45")
    A("v_mov_b32 v31, s45")
    A("s_mov_b32 exec_lo, 1"); A("s_mov_b32 exec_hi, 1")
    A("buffer_store_dwordx4 v[28:31], v17, s[48:51], s14 offen sc1")
    A("s_mov_b64 exec, -1")
    A("L_pollM:")
    for k in range(4):
        A(f"buffer_load_dwordx4 {vr(36 + 4 * k)}, v17, s[48:51], s13 offen offset:{32 * k} sc1")
    A("s_waitcnt vmcnt(0)")
    tagcheck([36 + 4 * k for k in range(4)], 52, "L_gotM")
    spin_fail()
    A("s_branch L_pollM")
    A("L_gotM:")
    A("v_max3_f32 v52, v36, v40, v44")
    A("v_max_f32 v52, v52, v48")
    for k in range(4):
        A(f"v_sub_f32 v{36 + 4 * k}, v{36 + 4 * k}, v52")
        A(f"v_mul_f32 v{36 + 4 * k}, s15, v{36 + 4 * k}")
        A(f"v_exp_f32 v{36 + 4 * k}, v{36 + 4 * k}")
    A("v_sub_f32 v28, v28, v52")
    A("v_mul_f32 v28, s15, v28")
    A("v_exp_f32 v28, v28")
    A("v_mul_f32 v53, v36, v38")
    A("v_fmac_f32 v53, v40, v42")
    A("v_fmac_f32 v53, v44, v46")
    A("v_fmac_f32 v53, v48, v50")
    A("v_rcp_f32 v53, v53")
    A("v_mul_f32 v28, v28, v53")
    for w in range(4):
        A(f"v_mul_f32 v{32 + w}, v{32 + w}, v28")
    A(f"ds_write_b128 v17, v[32:35] offset:{L_FL}")
    if pref2:
        A("s_getpc_b64 s[14:15]")
        A("L_pc2:")
        A("s_sub_u32 s14, s14, L_pc2-L_start")
        A("s_subb_u32 s15, s15, 0")
        A("v_mov_b32 v16, v2")
        for t in range(NPF):
            A(f"global_load_dwordx4 v[68:71], v16, s[14:15] offset:{(t % 4) * 1024}")
            if t % 4 == 3:
                A("v_add_u32 v16, 0x1000, v16")
    A("L_pre_x:")
    masks(8, 12)
    A("v_lshrrev_b32 v12, 5, v1")
    A("v_lshlrev_b32 v14, 4, v12")
    A("v_lshlrev_b32 v12, 9, v12")
    A("v_bfe_u32 v13, v1, 1, 1")
    A("v_lshl_add_u32 v12, v13, 8, v12")
    A("v_bfe_u32 v13, v1, 2, 3")
    A("v_lshl_add_u32 v12, v13, 4, v12")
    A("v_and_b32 v13, 1, v1")
    A("v_lshl_add_u32 v12, v13, 3, v12")
    A("s_lshr_b32 s13, s8, 1")
    A("s_lshl_b32 s13, s13, 10")
    A("s_and_b32 s14, s8, 1")
    A("s_lshl_b32 s14, s14, 7")
    A("s_add_u32 s13, s13, s14")
    A("v_add_u32 v12, s13, v12")
    A("s_lshl_b32 s71, s4, 3")
    A("s_add_u32 s71, s71, s6")
    A("s_lshl_b32 s71, s71, 14")
    A(f"s_add_u32 s71, s71, {WS_OA}")
    A("s_lshl_b32 s13, s8, 12")
    A("s_lshl_b32 s14, s5, 10")
    A("s_add_u32 s72, s71, s13")
    A("s_add_u32 s72, s72, s14")
    A("s_lshl_b32 s13, s5, 12")
    A("s_add_u32 s71, s71, s13")
    A("v_lshrrev_b32 v15, 1, v3")
    A("v_lshlrev_b32 v15, 6, v15")
    A("v_and_b32 v13, 7, v1")
    A("v_lshl_add_u32 v15, v13, 3, v15")
    A("v_and_b32 v13, 1, v3")
    A("v_lshl_add_u32 v15, v13, 2, v15")
    A("s_lshl_b32 s13, s8, 7")
    A("v_add_u32 v15, s13, v15")
    A("v_lshlrev_b32 v16, 3, v15")
    A("v_lshlrev_b32 v15, 2, v15")
    A("s_lshl_b32 s13, s4, 5")
    A("s_add_u32 s13, s13, s7")
    A("s_lshl_b32 s73, s13, 11")
    A(f"s_add_u32 s73, s73, {WS_Y}")
    A("s_lshl_b32 s74, s13, 12")
    A(f"s_add_u32 s74, s74, {WS_C}")
    A("s_cmp_eq_u32 s8, 3")
    A("s_cselect_b32 s79, 0, 0x00ff00ff")
    A("s_mov_b32 s78, 0x00ff00ff")
    A("v_and_b32 v13, 7, v1")
    A("v_lshlrev_b32 v17, 3, v13")
    A("v_bfe_u32 v13, v1, 3, 1")
    A("v_lshl_add_u32 v17, v13, 2, v17")
    A("v_add_u32 v17, v17, v3")
    A("v_lshlrev_b32 v17, 2, v17")
    A(f"v_add_u32 v17, {L_GU}, v17")
    A("v_lshrrev_b32 v18, 3, v1")
    A("v_lshlrev_b32 v18, 12, v18")
    A("v_and_b32 v13, 7, v1")
    A("v_lshl_add_u32 v18, v13, 4, v18")
    A("s_lshl_b32 s75, s4, 17")
    A("s_lshl_b32 s13, s7, 7")
    A("s_add_u32 s75, s75, s13")
    A(f"s_add_u32 s75, s75, {WS_C}")
    A("s_lshl_b32 s13, s7, 5")
    A("v_lshl_add_u32 v19, v13, 2, s13")
    A("v_mov_b32 v21, s45")
    A("v_mov_b32 v23, s45")
    A("s_waitcnt vmcnt(0) lgkmcnt(0)")
    stamp(4)
    A("s_barrier")
    A(f"ds_read_b128 v[24:27], v14 offset:{L_FL}")
    for w in range(4):
        A(f"ds_read_b64 {vr(28 + 2 * w, 2)}, v12 offset:{L_OB + 2048 * w}")
    A("s_waitcnt lgkmcnt(0)")
    A("v_mul_f32 v20, v24, v28")
    A("v_mul_f32 v22, v24, v29")
    for w in range(1, 4):
        A(f"v_fmac_f32 v20, v{24 + w}, v{28 + 2 * w}")
        A(f"v_fmac_f32 v22, v{24 + w}, v{29 + 2 * w}")
    A("buffer_store_dwordx4 v[20:23], v2, s[48:51], s72 offen sc1")
    A("L_pollA:")
    for k in range(4):
        A(f"buffer_load_dwordx4 {vr(24 + 4 * k)}, v2, s[48:51], s71 offen offset:{1024 * k} sc1")
    A("s_waitcnt vmcnt(0)")
    tagcheck([24 + 4 * k for k in range(4)], 40, "L_gotA")
    spin_fail()
    A("s_branch L_pollA")
    A("L_gotA:")
    A("v_add_f32 v24, v24, v28")
    A("v_add_f32 v26, v26, v30")
    A("v_add_f32 v32, v32, v36")
    A("v_add_f32 v34, v34, v38")
    A("v_add_f32 v24, v24, v32")
    A("v_add_f32 v26, v26, v34")
    A("v_cvt_pk_bf16_f32 v40, v24, v24")
    A("v_cvt_pk_bf16_f32 v42, v26, v26")
    quadswap(41, 40)
    quadswap(43, 42)
    HB = [44, 48]
    abuild_bcast(HB[0], 40, 41, 0, 8)
    for t in range(16):
        if t + 1 < 16:
            t1 = t + 1
            abuild_bcast(HB[t1 & 1], 40 + 2 * (t1 & 1), 41 + 2 * (t1 & 1), t1 >> 1, 8)
        c0, c1 = ("0", "0") if t == 0 else ("v[52:55]", "v[56:59]")
        A(f"v_mfma_f32_16x16x32_bf16 v[52:55], {vr(HB[t & 1])}, {vr(WO(0, t))}, {c0}")
        A(f"v_mfma_f32_16x16x32_bf16 v[56:59], {vr(HB[t & 1])}, {vr(WO(1, t))}, {c1}")
    fold_tiles(52, 56)
    A("v_cvt_pk_bf16_f32 v20, v52, v53")
    A("v_cvt_pk_bf16_f32 v22, v54, v55")
    A("s_mov_b64 exec, s[78:79]")
    A("buffer_store_dwordx4 v[20:23], v15, s[48:51], s73 offen sc1")
    A("s_mov_b64 exec, -1")
    stamp(5)
    A("s_barrier")
    A("s_barrier")
    for w in range(4):
        A(f"ds_read2st64_b32 {vr(24 + 2 * w, 2)}, v17 offset0:{2 * w} offset1:{2 * w + 1}")
    A(f"ds_read_b32 v60, v19 offset:{L_X1}")
    A(f"ds_read_b32 v61, v19 offset:{L_MD + 2688}")
    A(f"s_mov_b32 s13, {f2u(-LOG2E):#x}")
    A("s_waitcnt lgkmcnt(0)")
    A("v_add_f32 v24, v24, v26")
    A("v_add_f32 v25, v25, v27")
    A("v_add_f32 v28, v28, v30")
    A("v_add_f32 v29, v29, v31")
    A("v_add_f32 v24, v24, v28")
    A("v_add_f32 v25, v25, v29")
    rnd2(24, 25, 26)
    A("v_mul_f32 v24, s13, v24")
    A("v_exp_f32 v24, v24")
    A("v_add_f32 v24, 1.0, v24")
    A("v_rcp_f32 v24, v24")
    rnd1(24)
    A("v_mul_f32 v24, v24, v25")
    A("v_cvt_pk_bf16_f32 v40, v24, v24")
    quadswap(41, 40)
    abuild_bcast(HB[0], 40, 41, 0, 8)
    for t in range(7):
        if t + 1 < 7:
            abuild_bcast(HB[(t + 1) & 1], 40, 41, t + 1, 8)
        c0, c1 = ("0", "0") if t == 0 else ("v[52:55]", "v[56:59]")
        A(f"v_mfma_f32_16x16x32_bf16 v[52:55], {vr(HB[t & 1])}, {vr(WD(0, t))}, {c0}")
        A(f"v_mfma_f32_16x16x32_bf16 v[56:59], {vr(HB[t & 1])}, {vr(WD(1, t))}, {c1}")
    A("v_mov_b32 v25, s45")
    A("v_mov_b32 v27, s45")
    fold_tiles(52, 56)
    A("v_mov_b32 v20, v52")
    A("v_mov_b32 v22, v53")
    A("v_mov_b32 v24, v54")
    A("v_mov_b32 v26, v55")
    A("s_mov_b64 exec, s[78:79]")
    A("buffer_store_dwordx4 v[20:23], v16, s[48:51], s74 offen sc1")
    A("buffer_store_dwordx4 v[24:27], v16, s[48:51], s74 offen offset:16 sc1")
    A("s_mov_b64 exec, -1")
    stamp(6)
    A("s_cmp_lg_u32 s8, 0")
    A("s_cbranch_scc1 L_fin")
    A("s_cmp_ge_u32 s7, 28")
    A("s_cbranch_scc1 L_fin")
    A("s_mul_i32 s14, s4, 896")
    A("v_add_u32 v19, s14, v19")
    A("L_pollC:")
    A("s_mov_b32 s13, s75")
    for t in range(4):
        A(f"buffer_load_dwordx4 {vr(28 + 4 * t)}, v18, s[48:51], s13 offen sc1")
        if t < 3:
            A("s_add_u32 s13, s13, 0x8000")
    A("s_waitcnt vmcnt(0)")
    tagcheck([28 + 4 * t for t in range(4)], 44, "L_gotC")
    spin_fail()
    A("s_branch L_pollC")
    A("L_gotC:")
    A("v_add_f32 v28, v28, v32")
    A("v_add_f32 v30, v30, v34")
    A("v_add_f32 v36, v36, v40")
    A("v_add_f32 v38, v38, v42")
    A("v_add_f32 v28, v28, v36")
    A("v_add_f32 v30, v30, v38")
    A("v_add_f32_dpp v28, v28, v28 row_ror:8 row_mask:0xf bank_mask:0xf")
    A("v_add_f32_dpp v30, v30, v30 row_ror:8 row_mask:0xf bank_mask:0xf")
    A("v_mov_b32 v29, v28")
    A("v_mov_b32 v31, v30")
    A("v_permlane16_swap_b32 v28, v29")
    A("v_permlane16_swap_b32 v30, v31")
    A("v_add_f32 v28, v28, v29")
    A("v_add_f32 v30, v30, v31")
    A("v_mov_b32 v29, v28")
    A("v_mov_b32 v31, v30")
    A("v_permlane32_swap_b32 v28, v29")
    A("v_permlane32_swap_b32 v30, v31")
    A("v_add_f32 v28, v28, v29")
    A("v_add_f32 v30, v30, v31")
    rnd2(28, 30, 29)
    A("v_lshlrev_b32 v32, 16, v61"); A("v_and_b32 v33, s46, v61")
    A("v_mul_f32 v28, v28, v32")
    A("v_mul_f32 v30, v30, v33")
    rnd2(28, 30, 29)
    A("v_lshlrev_b32 v32, 16, v60"); A("v_and_b32 v33, s46, v60")
    A("v_add_f32 v28, v28, v32")
    A("v_add_f32 v30, v30, v33")
    A("v_cvt_pk_bf16_f32 v28, v28, v30")
    A("s_mov_b64 exec, 0xff")
    A("global_store_dword v19, v28, s[38:39]")
    A("s_cmp_lg_u32 s2, 0")
    A("s_cbranch_scc1 L_fin")
    A("s_mov_b64 exec, 1")
    A("v_mov_b32 v28, 0")
    A("v_mov_b32 v29, s44")
    A("buffer_store_dword v29, v28, s[48:51], 0 offen sc1")
    A("L_fin:")
    if dbg:
        A("s_cmp_lg_u32 s2, 0")
        A("s_cbranch_scc1 L_end")
        A("s_and_b32 s13, s3, 3")
        A("s_cmp_lg_u32 s13, 0")
        A("s_cbranch_scc1 L_end")
        A("s_mov_b64 exec, 1")
        A("s_memrealtime s[100:101]")
        A("s_lshl_b32 s13, s3, 3")
        A("s_waitcnt lgkmcnt(0)")
        A("v_mov_b32 v2, s13")
        for k in range(8):
            A(f"s_sub_u32 s14, s{86 + 2 * k}, s86")
            A(f"v_mov_b32 v{4 + k}, s14")
        for k in range(2):
            A(f"global_store_dwordx4 v2, {vr(4 + 4 * k)}, s[40:41] offset:{16 * k}")
    if stamps:
        A("s_mov_b64 exec, 1")
        A("s_memrealtime s[100:101]")
        A("s_lshl_b32 s13, s2, 3")
        A("s_add_u32 s13, s13, s3")
        A("s_lshl_b32 s13, s13, 6")
        A(f"s_add_u32 s42, s42, {512 << 20}")
        A("s_addc_u32 s43, s43, 0")
        A("s_waitcnt lgkmcnt(0)")
        A("v_mov_b32 v2, s13")
        for k in range(16):
            A(f"v_mov_b32 v{4 + k}, s{86 + k}")
        for k in range(4):
            A(f"global_store_dwordx4 v2, {vr(4 + 4 * k)}, s[42:43] offset:{16 * k}")
    A("L_end:")
    A("s_endpgm")
    A("L_codeend:")
    A(f".fill ({NPF * 1024} - (L_codeend - L_start)) / 4, 4, 0xbf800000")
    A('.section .rodata,"a"')
    A(".p2align 6")
    A(f".amdhsa_kernel {NAME}_kernel")
    A("  .amdhsa_next_free_vgpr 256")
    A("  .amdhsa_next_free_sgpr 102")
    A("  .amdhsa_accum_offset 256")
    A("  .amdhsa_group_segment_fixed_size 0")
    A("  .amdhsa_kernarg_size 112")
    A("  .amdhsa_user_sgpr_count 2")
    A("  .amdhsa_user_sgpr_kernarg_segment_ptr 1")
    A("  .amdhsa_system_sgpr_workgroup_id_x 1")
    A(".end_amdhsa_kernel")
    txt = A.finish()
    return txt, A.npad


if __name__ == "__main__":
    out = sys.argv[1]
    kw = {}
    for a in sys.argv[2:]:
        k, v = a.split("=")
        kw[k] = int(v) if v.lstrip("-").isdigit() else v.replace("+", " ")
    txt, npad = gen(**kw)
    open(out, "w").write(txt)
    print(out, "lines", txt.count("\n"), "pads", npad)
```

```python
import sys, os, struct
sys.path.insert(0, os.path.dirname(os.path.abspath(__file__)))
from asmlib import Asm

NAME = "adaLN_cond__sliding_block_cached__glu_gated_glu__decode"

WS_R = 0x800
WS_H, WS_ML, WS_G, WS_Y, WS_Q, WS_OA, WS_C = 0x1000, 0x5000, 0x10000, 0x80000, 0x100000, 0x200000, 0x300000
WS_SIZE = 0x400000
L_CNT1, L_CNT2, L_QF, L_TAG, L_CNT3, L_FL, L_ST1, L_MLL, L_ST2 = 0, 4, 8, 12, 16, 32, 64, 128, 192
L_QL, L_GU, L_X1, L_XR, L_MD, L_SC, L_OB, L_W2, L_W1 = 256, 1280, 3328, 4224, 5120, 8704, 16384, 24576, 40960
LDS_BYTES = L_W1 + 112 * 1024
SC_RS = 912
LOG2E = 1.4426950408889634
NPF = 24


def f2u(x):
    return struct.unpack("<I", struct.pack("<f", x))[0]


def gen(DK=8, RV=5, W=6, W3=6, stamps=0, wpol="", spol="nt", fpol="", ppol="", qpol="nt", rot=4096, pref=1, pref2=1, dbg=0,
        assist=1, pause=1, prio=3, NL=28, NE=24, NE2=8, qx=1, qpre=0, apre=1, aack=1, ypre=0, cpre=0, abl=""):
    A = Asm()
    NSLOT = 56
    slot = lambda n: 32 + 4 * n
    vr = lambda r, n=4: f"v[{r}:{r + n - 1}]"

    def stamp(i, mode=1):
        if ((stamps == 1 or dbg) and mode == 1) or (stamps == 2 and mode == 2) or (stamps == 2 and i == 0):
            A(f"s_memrealtime s[{86 + 2 * i}:{87 + 2 * i}]")

    def spin_fail():
        A("s_sub_u32 s84, s84, 1")
        A("s_cbranch_scc1 L_fin")

    def rnd2(a, b, t):
        A(f"v_cvt_pk_bf16_f32 v{t}, v{a}, v{b}")
        A(f"v_lshlrev_b32 v{a}, 16, v{t}")
        A(f"v_and_b32 v{b}, s46, v{t}")

    def rnd1(a):
        A(f"v_cvt_pk_bf16_f32 v{a}, v{a}, v{a}")
        A(f"v_and_b32 v{a}, s46, v{a}")

    def tagacc(bases, acc):
        for k, r in enumerate(bases):
            if k == 0:
                A(f"v_xor_b32 v{acc}, s45, v{r + 1}")
                A(f"v_xor_b32 v{acc + 1}, s45, v{r + 3}")
            else:
                A(f"v_bitop3_b32 v{acc}, v{acc}, v{r + 1}, s45 bitop3:0xf6")
                A(f"v_bitop3_b32 v{acc + 1}, v{acc + 1}, v{r + 3}, s45 bitop3:0xf6")
        A(f"v_or_b32 v{acc}, v{acc}, v{acc + 1}")
        A(f"v_cmp_ne_u32 vcc, 0, v{acc}")

    def poll(name, issue, bases, acc):
        if name.lower() in abl:
            return
        if name in abl:
            issue()
            A("s_waitcnt vmcnt(0)")
            return
        A(f"L_poll{name}:")
        issue()
        A("s_waitcnt vmcnt(0)")
        tagacc(bases, acc)
        A("s_mov_b64 exec, vcc")
        A(f"s_cbranch_execz L_got{name}")
        spin_fail()
        A(f"s_branch L_poll{name}")
        A(f"L_got{name}:")
        A("s_mov_b64 exec, -1")

    def ldsspin(name, off, n, va, vt):
        A(f"v_mov_b32 v{va}, 0")
        A(f"L_spin{name}:")
        A(f"ds_read_b32 v{vt}, v{va} offset:{off}")
        A("s_waitcnt lgkmcnt(0)")
        A(f"v_readfirstlane_b32 s13, v{vt}")
        A(f"s_cmp_ge_u32 s13, {n}")
        A(f"s_cbranch_scc1 L_spun{name}")
        spin_fail()
        A(f"s_branch L_spin{name}")
        A(f"L_spun{name}:")

    def ldsinc(off, va, vt):
        A(f"v_mov_b32 v{va}, 0")
        A(f"v_mov_b32 v{vt}, 1")
        A("s_mov_b64 exec, 1")
        A(f"ds_add_u32 v{va}, v{vt} offset:{off}")
        A("s_mov_b64 exec, -1")

    def masks(r0, t0):
        A(f"v_and_b32 v{t0}, 1, v1")
        A(f"v_lshlrev_b32 v{t0}, 4, v{t0}")
        A(f"v_mov_b32 v{t0 + 1}, 0xffff")
        A(f"v_lshlrev_b32 v{t0}, v{t0}, v{t0 + 1}")
        A(f"v_bfe_u32 v{t0 + 1}, v1, 1, 2")
        for r in range(4):
            A(f"v_cmp_eq_u32 vcc, {r}, v{t0 + 1}")
            A(f"v_cndmask_b32 v{r0 + r}, 0, v{t0}, vcc")

    def abuild_bcast(dst, P, Psw, x, m0):
        for r in range(4):
            src = P if (x >> 2) == (r >> 1) else Psw
            q = x & 3
            A(f"v_and_b32_dpp v{dst + r}, v{src}, v{m0 + r} quad_perm:[{q},{q},{q},{q}] row_mask:0xf bank_mask:0xf")

    def quadswap(dst, src):
        A(f"v_mov_b32_dpp v{dst}, v{src} row_shl:4 row_mask:0xf bank_mask:0x5")
        A(f"v_mov_b32_dpp v{dst}, v{src} row_shr:4 row_mask:0xf bank_mask:0xa")

    def fold_tiles(d0, d1):
        for r in range(4):
            A(f"v_permlane32_swap_b32 v{d0 + r}, v{d1 + r}")
        for r in range(4):
            A(f"v_add_f32_dpp v{d0 + r}, v{d1 + r}, v{d0 + r} row_ror:8 row_mask:0xf bank_mask:0xf")

    def srd(n, lo, size):
        A(f"s_mov_b32 s{n}, s{lo}"); A(f"s_mov_b32 s{n + 1}, s{lo + 1}"); A(f"s_mov_b32 s{n + 2}, {size}"); A(f"s_mov_b32 s{n + 3}, 0x20000")

    def code_prefetch(tag, vtmp):
        A("s_lshr_b32 s13, s2, 3")
        A(f"s_cmp_ge_u32 s13, {NPF}")
        A(f"s_cbranch_scc1 L_nopf{tag}")
        A("s_getpc_b64 s[14:15]")
        A(f"L_pc{tag}:")
        A(f"s_sub_u32 s14, s14, L_pc{tag}-L_start")
        A("s_subb_u32 s15, s15, 0")
        A("s_lshl_b32 s13, s13, 10")
        A(f"v_add_u32 v{vtmp}, s13, v2")
        A(f"global_load_dwordx4 v[60:63], v{vtmp}, s[14:15]")
        A(f"L_nopf{tag}:")

    hdr = open(os.path.join(os.path.dirname(os.path.abspath(__file__)), "header.txt")).read().rstrip("\n")
    A(hdr)
    A(f"; @launch grid=(256,1,1) block=(512,1,1) lds={LDS_BYTES}")
    A('.amdgcn_target "amdgcn-amd-amdhsa--gfx950"')
    A(".text")
    A(f".globl {NAME}_kernel")
    A(".p2align 8")
    A(f".type {NAME}_kernel,@function")
    A(f"{NAME}_kernel:")
    A("L_start:")
    A("s_cmp_ge_u32 s2, 256")
    A("s_cbranch_scc1 L_end")
    stamp(0)
    A("s_load_dwordx16 s[16:31], s[0:1], 0")
    A("s_load_dwordx8 s[32:39], s[0:1], 64")
    A("s_load_dwordx4 s[40:43], s[0:1], 96")
    A("v_lshrrev_b32 v2, 6, v0")
    A("v_and_b32 v1, 63, v0")
    A("v_readfirstlane_b32 s3, v2")
    A("s_lshr_b32 s4, s2, 5")
    A("s_bfe_u32 s5, s2, 0x20003")
    A("s_and_b32 s6, s2, 7")
    A("s_lshl_b32 s7, s6, 2")
    A("s_add_u32 s7, s7, s5")
    A("s_mul_i32 s47, s6, 3")
    A("s_add_u32 s47, s47, s5")
    A("s_mov_b32 s9, 0")
    A("s_mov_b32 s10, 0")
    A("s_cmp_lg_u32 s5, 3")
    A("s_cbranch_scc1 L_roled")
    A("s_lshr_b32 s47, s6, 1")
    A("s_add_u32 s47, s47, 24")
    A("s_and_b32 s13, s6, 1")
    A("s_lshr_b32 s14, s4, 2")
    A("s_cmp_eq_u32 s13, s14")
    A("s_cbranch_scc1 L_roled")
    A("s_mov_b32 s47, 28")
    A("s_and_b32 s13, s4, 3")
    A("s_mov_b32 s10, s6")
    A("s_cmp_eq_u32 s13, 1")
    A("s_cbranch_scc1 L_role2")
    A("s_cmp_eq_u32 s13, 0")
    A("s_cbranch_scc0 L_role2b")
    A("s_cmp_lt_u32 s6, 7")
    A("s_cselect_b32 s9, 1, 0")
    A("s_branch L_roled")
    A("L_role2b:")
    A("s_cmp_eq_u32 s13, 2")
    A("s_cbranch_scc0 L_roled")
    A("s_cmp_ge_u32 s6, 6")
    A("s_cbranch_scc1 L_roled")
    A("s_add_u32 s10, s6, 8")
    A("L_role2:")
    A("s_mov_b32 s9, 2")
    A("L_roled:")
    if "1" in abl:
        A("s_mov_b32 s9, 0")
    A("s_mov_b32 s46, 0xffff0000")
    A("s_mov_b32 s84, 0x20000")
    A("s_cmp_ge_u32 s3, 4")
    A("s_cbranch_scc1 L_helper")

    A("; ---------------- streamer ----------------")
    A("v_bfe_u32 v2, v1, 3, 1")
    A("v_lshlrev_b32 v2, 9, v2")
    A("v_and_b32 v3, 7, v1")
    A("v_lshl_add_u32 v2, v3, 4, v2")
    A("v_lshrrev_b32 v3, 4, v1")
    A("v_lshl_add_u32 v2, v3, 7, v2")
    A("s_lshl_b32 s68, s4, 3")
    A("s_add_u32 s68, s68, s6")
    A("s_lshl_b32 s68, s68, 22")
    A("s_lshl_b32 s69, s5, 18")
    A("s_add_u32 s68, s68, s69")
    A(f"s_add_u32 s68, s68, {6144 * 512}")
    A(f"s_mul_i32 s70, s2, {rot}")
    A("s_lshl_b32 s69, s3, 12")
    A("s_add_u32 s70, s70, s69")
    A("s_and_b32 s70, s70, 0x3ffff")
    A("s_mov_b32 s71, s70")
    A("s_mov_b32 s54, 0x40000")
    A("s_mov_b32 s55, 0x20000")
    A("s_waitcnt lgkmcnt(0)")
    A("s_add_u32 s52, s18, s68")
    A("s_addc_u32 s53, s19, 0")
    if pause:
        A("s_cmp_lg_u32 s9, 1")
        A("s_cbranch_scc1 L_go")
        A("s_barrier")
        ldsspin("P", L_CNT1, 4, 4, 5)
        A("L_go:")
    issued = [0]

    def k_issue(n, sl):
        A(f"buffer_load_dwordx4 {vr(slot(sl))}, v2, s[52:55], s70 offen offset:{(n % 4) * 1024} {spol}")
        if n % 4 == 3 and n < 63:
            A("s_add_u32 s70, s70, 0x4000")
            A("s_and_b32 s70, s70, 0x3ffff")
        issued[0] += 1
        return issued[0] - 1

    NVS = NL - 8
    assert NVS % 2 == 0 and NVS >= 4
    vslot = lambda n: (n % 8) if n < NVS else 8 + (n - NVS) % (2 * RV)

    def v_issue(n):
        A(f"buffer_load_dwordx4 {vr(slot(vslot(n)))}, v3, s[56:59], s71 offen offset:{[0, 256, 2048, 2304][n % 4]} {spol}")
        if n % 4 == 3 and n < 63:
            A("s_add_u32 s71, s71, 0x4000")
            A("s_and_b32 s71, s71, 0x3ffff")
        issued[0] += 1
        return issued[0] - 1

    def stage_issue(k):
        if k < 8:
            n = NSLOT + k
            off, va, sd, so = (n % 4) * 1024, 2, "s[52:55]", 70
        else:
            n = k - 8
            off, va, sd, so = [0, 256, 2048, 2304][n % 4], 3, "s[56:59]", 71
        A(f"s_add_u32 m0, s85, {1024 * k - off + 4096}")
        A(f"buffer_load_dwordx4 v{va}, {sd}, s{so} offen offset:{off} {spol} lds")
        if n % 4 == 3 and not (k < 8 and n == 63):
            A(f"s_add_u32 s{so}, s{so}, 0x4000")
            A(f"s_and_b32 s{so}, s{so}, 0x3ffff")
        issued[0] += 1
        return issued[0] - 1

    def stage_read(k, sl):
        A(f"ds_read_b128 {vr(slot(sl))}, v30 offset:{1024 * k}")

    def wait_for(idx):
        A(f"s_waitcnt vmcnt({min(63, issued[0] - 1 - idx)})")

    kidx, vidx = {}, {}
    for n in range(DK):
        kidx[n] = k_issue(n, n)
    if pause:
        A("s_cmp_eq_u32 s9, 1")
        A("s_cbranch_scc1 L_nob0")
    A("s_barrier")
    A("L_nob0:")
    A("s_add_u32 s56, s20, s68")
    A("s_addc_u32 s57, s21, 0")
    A("s_mov_b32 s58, 0x40000")
    A("s_mov_b32 s59, 0x20000")
    A("v_and_b32 v4, 1, v3")
    A("v_lshlrev_b32 v4, 10, v4")
    A("v_lshrrev_b32 v5, 1, v3")
    A("v_lshl_add_u32 v4, v5, 9, v4")
    A("v_and_b32 v5, 15, v1")
    A("v_lshl_add_u32 v30, v5, 4, v4")
    A("v_bfe_u32 v4, v1, 3, 1")
    A("v_and_b32 v5, 7, v1")
    A("v_lshlrev_b32 v5, 4, v5")
    A("v_lshl_add_u32 v6, v4, 5, v3")
    A("v_mul_u32_u24 v6, 3584, v6")
    A("v_add_u32 v28, v6, v5")
    A("v_mul_u32_u24 v6, 24, v4")
    A("v_add3_u32 v6, v6, v3, 64")
    A("v_mul_u32_u24 v6, 3584, v6")
    A("v_add_u32 v29, v6, v5")
    A("v_mov_b32 v3, v30")
    masks(16, 4)
    A("s_cmp_lt_u32 s47, 28")
    A(f"s_cselect_b32 s62, {448 * 3584}, 0")
    A("s_mov_b32 s66, s62")
    A("s_mov_b32 s60, s28"); A("s_mov_b32 s61, s29"); A("s_mov_b32 s63, 0x20000")
    A("s_mov_b32 s64, s30"); A("s_mov_b32 s65, s31"); A("s_mov_b32 s67, 0x20000")
    srd(48, 42, WS_SIZE)
    A(f"s_mul_i32 s72, s3, {112 * 3584}")
    A("s_lshl_b32 s69, s47, 7")
    A("s_add_u32 s72, s72, s69")
    A("s_mov_b32 s73, s72")
    A("s_mov_b32 s80, 0xcccccccc"); A("s_mov_b32 s81, 0xcccccccc")
    A("s_mov_b32 s82, 0xf0f0f0f0"); A("s_mov_b32 s83, 0xf0f0f0f0")
    A("v_lshlrev_b32 v31, 4, v1")
    A(f"s_mul_i32 s85, s3, {NL * 1024}")
    A(f"s_add_u32 s85, s85, {L_W1}")
    A("v_add_u32 v30, s85, v31")
    A("s_sub_u32 s85, s85, 4096")
    for n in range(DK, NSLOT):
        A(f"s_waitcnt vmcnt({DK - 1})")
        kidx[n] = k_issue(n, n)
    A("s_cmp_lg_u32 s5, 3")
    A("s_cbranch_scc1 L_stagefree")
    ldsspin("S", L_CNT3, 4, 4, 5)
    A("L_stagefree:")
    sidx = {}
    for k in range(NL):
        A(f"s_waitcnt vmcnt({DK - 1})")
        sidx[k] = stage_issue(k)
    stamp(1)
    ldsspin("Q", L_QF, 1, 4, 5)
    A(f"ds_read_b32 v8, v4 offset:{L_TAG}")
    A(f"ds_read_b128 v[4:7], v31 offset:{L_QL}")
    A("s_mov_b32 vcc_lo, 0xaaaaaaaa")
    A("s_mov_b32 vcc_hi, 0xaaaaaaaa")
    A("s_waitcnt lgkmcnt(0)")
    A("v_readfirstlane_b32 s45, v8")
    stamp(2)
    kslot = lambda n: n if n < NSLOT else n - NSLOT
    dreg = lambda n: 20 if n == 0 else slot(kslot(n - 1))
    nv = NVS
    for m in range(8):
        if m == 7:
            A("s_waitcnt lgkmcnt(0)")
        for n in range(8 * m, 8 * m + 8):
            A(f"v_mfma_f32_16x16x32_bf16 {vr(dreg(n))}, {vr(slot(kslot(n)))}, v[4:7], 0")
        D = [dreg(n) for n in range(8 * m, 8 * m + 8)]
        for d in D:
            A(f"v_cndmask_b32 v{d}, v{d}, v{d + 1}, vcc")
            A(f"v_cndmask_b32 v{d + 2}, v{d + 2}, v{d + 3}, vcc")
        for d in D:
            A(f"v_cndmask_b32 v{d}, v{d}, v{d + 2}, s[80:81]")
        for p in range(4):
            A(f"v_permlane16_swap_b32 v{D[2 * p]}, v{D[2 * p + 1]}")
        for p in range(4):
            A(f"v_cndmask_b32 v{D[2 * p]}, v{D[2 * p]}, v{D[2 * p + 1]}, s[82:83]")
        y = [D[0], D[2], D[4], D[6]]
        z0, z1 = D[0] + 1, D[2] + 1
        A(f"v_add_f32_dpp v{z0}, v{y[0]}, v{y[0]} row_shl:4 row_mask:0xf bank_mask:0x5")
        A(f"v_add_f32_dpp v{z1}, v{y[1]}, v{y[1]} row_shl:4 row_mask:0xf bank_mask:0x5")
        A(f"v_add_f32_dpp v{z0}, v{y[2]}, v{y[2]} row_shr:4 row_mask:0xf bank_mask:0xa")
        A(f"v_add_f32_dpp v{z1}, v{y[3]}, v{y[3]} row_shr:4 row_mask:0xf bank_mask:0xa")
        t0, t1 = D[0] + 2, D[2] + 2
        A(f"v_cndmask_b32 v{t1}, v{z1}, v{z0}, s[80:81]")
        A(f"v_cndmask_b32 v{t0}, v{z0}, v{z1}, s[80:81]")
        cnt = {1: 4, 2: 3, 3: 2, 4: 2, 5: 1}.get(m, 0)
        cnt = min(cnt, NVS + 2 * RV - nv) if m < 5 else (NVS + 2 * RV - nv if m == 5 else 0)
        pend = [nv + c for c in range(cnt)]
        nv += cnt
        A(f"v_add_f32_dpp v{t0}, v{t1}, v{t0} quad_perm:[2,3,0,1] row_mask:0xf bank_mask:0xf")
        A(f"v_add_f32_dpp v{8 + m}, v{t0}, v{t0} quad_perm:[1,0,3,2] row_mask:0xf bank_mask:0xf")
        rnd1(8 + m)
        for n in pend:
            A(f"s_waitcnt vmcnt({max(DK, 2 * RV) - 1})")
            vidx[n] = v_issue(n)
        if m == 5:
            wait_for(sidx[7])
            for k in range(8):
                stage_read(k, k)
    assert nv == NVS + 2 * RV
    wait_for(sidx[NL - 1])
    for n in range(4):
        stage_read(8 + n, vslot(n))
    A("v_max3_f32 v20, v8, v9, v10")
    A("v_max3_f32 v21, v11, v12, v13")
    A("v_max3_f32 v20, v20, v14, v15")
    A("v_max_f32 v20, v20, v21")
    A("v_max_f32_dpp v20, v20, v20 quad_perm:[2,3,0,1] row_mask:0xf bank_mask:0xf")
    A("v_max_f32_dpp v20, v20, v20 row_half_mirror row_mask:0xf bank_mask:0xf")
    A("v_mov_b32 v21, v20")
    A("v_permlane16_swap_b32 v20, v21")
    A("v_max_f32 v20, v20, v21")
    A("v_mov_b32 v21, v20")
    A("v_permlane32_swap_b32 v20, v21")
    A("v_max_f32 v20, v20, v21")
    A(f"s_mov_b32 s69, {f2u(LOG2E / 16):#x}")
    A("v_mul_f32 v22, s69, v20")
    for m in range(8):
        A(f"v_fma_f32 v{8 + m}, v{8 + m}, s69, -v22")
    for m in range(8):
        A(f"v_exp_f32 v{8 + m}, v{8 + m}")
    A("v_add_f32 v21, v8, v9")
    A("v_add_f32 v22, v10, v11")
    A("v_add_f32 v23, v12, v13")
    A("v_add_f32 v24, v14, v15")
    A("v_add_f32 v21, v21, v22")
    A("v_add_f32 v23, v23, v24")
    A("v_add_f32 v21, v21, v23")
    for m in range(8):
        A(f"v_cvt_pk_bf16_f32 v{8 + m}, v{8 + m}, v{8 + m}")
    A("v_add_f32_dpp v21, v21, v21 quad_perm:[2,3,0,1] row_mask:0xf bank_mask:0xf")
    A("v_add_f32_dpp v21, v21, v21 row_half_mirror row_mask:0xf bank_mask:0xf")
    A("v_mov_b32 v22, v21")
    A("v_permlane16_swap_b32 v21, v22")
    A("v_add_f32 v21, v21, v22")
    A("v_mov_b32 v22, v21")
    A("v_permlane32_swap_b32 v21, v22")
    A("v_add_f32 v21, v21, v22")
    A("s_lshl_b32 s69, s3, 4")
    A("v_add_u32 v22, s69, v1")
    A("v_mov_b32 v23, 0")
    A("v_mov_b32 v24, 1")
    A("s_mov_b64 exec, 0x101")
    A(f"ds_write_b64 v22, v[20:21] offset:{L_MLL}")
    A("s_mov_b64 exec, 1")
    A(f"ds_add_u32 v23, v24 offset:{L_CNT2}")
    A("s_mov_b64 exec, -1")
    stamp(3)
    AB = [slot(48), slot(49)]

    def pv_abuild(gm):
        m, x = gm >> 2, gm & 3
        for r in range(4):
            sh = 2 * (x - r)
            d = AB[gm & 1] + r
            if sh == 0:
                A(f"v_and_b32 v{d}, v{8 + m}, v{16 + r}")
            elif sh > 0:
                A(f"v_and_b32_dpp v{d}, v{8 + m}, v{16 + r} row_shl:{sh} row_mask:0xf bank_mask:0xf bound_ctrl:0")
            else:
                A(f"v_and_b32_dpp v{d}, v{8 + m}, v{16 + r} row_shr:{-sh} row_mask:0xf bank_mask:0xf bound_ctrl:0")

    wcount = [0]

    def gu_issue():
        if "f" in abl:
            wcount[0] += 1
            return
        n = wcount[0]
        t, mat = n >> 1, n & 1
        A(f"buffer_load_dwordx4 {vr(slot(20 + n))}, v{28 if t < 8 else 29}, s[{60 + 4 * mat}:{63 + 4 * mat}], s72 offen {fpol}")
        if mat == 1:
            if t == 7:
                A("s_mov_b32 s72, s73")
            elif t < 13:
                A(f"s_add_u32 s72, s72, {4 * 3584}")
        issued[0] += 1
        wcount[0] += 1

    last_issue = 32 - RV
    extra = 28 - last_issue
    pv_abuild(0)
    for gm in range(32):
        if gm + 1 < 32:
            pv_abuild(gm + 1)
        if 2 * gm < NVS:
            nxt = 2 * gm + 4 < NVS
            if nxt:
                stage_read(8 + 2 * gm + 4, vslot(2 * gm + 4))
                stage_read(8 + 2 * gm + 5, vslot(2 * gm + 5))
            later = (2 if 2 * gm + 2 < NVS else 0) + (2 if nxt else 0)
            A(f"s_waitcnt lgkmcnt({0 if (stamps or dbg) and gm == 0 else later})")
        else:
            wait_for(vidx[2 * gm + 1])
        s0, s1 = slot(vslot(2 * gm)), slot(vslot(2 * gm + 1))
        c0, c1 = ("0", "0") if gm == 0 else ("v[20:23]", "v[24:27]")
        A(f"v_mfma_f32_16x16x32_bf16 v[20:23], {vr(AB[gm & 1])}, {vr(s0)}, {c0}")
        A(f"v_mfma_f32_16x16x32_bf16 v[24:27], {vr(AB[gm & 1])}, {vr(s1)}, {c1}")
        if wcount[0] < 28 and gm < last_issue:
            gu_issue()
            if gm < extra:
                gu_issue()
        if nv < 64 and 2 * gm >= NVS:
            vidx[nv] = v_issue(nv); nv += 1
            vidx[nv] = v_issue(nv); nv += 1
        if gm == last_issue:
            assert wcount[0] == 28
            A("v_lshrrev_b32 v4, 4, v1")
            A("v_lshlrev_b32 v4, 11, v4")
            A("v_and_b32 v5, 15, v1")
            A("v_lshl_add_u32 v28, v5, 4, v4")
            A("v_bfe_u32 v5, v1, 3, 1")
            A("v_mul_u32_u24 v5, 6, v5")
            A("v_and_b32 v6, 7, v1")
            A("v_min_u32 v7, 5, v6")
            A("v_add3_u32 v5, v5, v7, 16")
            A("v_lshl_add_u32 v29, v5, 4, v4")
            A("s_mul_i32 s69, s3, 112")
            A("v_lshrrev_b32 v4, 4, v1")
            A("v_add_u32 v4, s69, v4")
            A("v_lshl_add_u32 v5, v5, 2, v4")
            A("v_lshlrev_b32 v253, 1, v5")
            A("v_and_b32 v5, 15, v1")
            A("v_lshl_add_u32 v5, v5, 2, v4")
            A("v_lshlrev_b32 v252, 1, v5")
            A("v_cmp_gt_u32 s[74:75], 6, v6")
            A("v_bfe_u32 v4, v1, 2, 1")
            A("v_lshlrev_b32 v4, 4, v4")
            A("v_mov_b32 v5, 0x3f80")
            A("v_lshlrev_b32 v4, v4, v5")
            A("v_and_b32 v5, 11, v1")
            A("v_cmp_eq_u32 vcc, 0, v5")
            A("v_cndmask_b32 v232, 0, v4, vcc")
            A("v_cmp_eq_u32 vcc, 8, v5")
            A("v_cndmask_b32 v234, 0, v4, vcc")
            A("v_cmp_eq_u32 vcc, 1, v5")
            A("v_cndmask_b32 v236, 0, v4, vcc")
            A("v_cmp_eq_u32 vcc, 9, v5")
            A("v_cndmask_b32 v238, 0, v4, vcc")
            for r in (233, 235, 237, 239):
                A(f"v_mov_b32 v{r}, 0")
            for r in range(244, 252):
                A(f"v_mov_b32 v{r}, 0")
            A("s_lshl_b32 s76, s4, 14")
            A("s_mul_i32 s69, s3, 448")
            A("s_add_u32 s76, s76, s69")
            A(f"s_add_u32 s76, s76, {WS_Y}")
            A("s_add_u32 s77, s76, 0x2000")
            A("s_lshl_b32 s69, s3, 11")
            A("v_add_u32 v30, s69, v31")
            A("v_lshrrev_b32 v4, 5, v1")
            A("v_lshlrev_b32 v4, 8, v4")
            A("v_and_b32 v5, 7, v1")
            A("v_lshl_add_u32 v4, v5, 5, v4")
            A("v_bfe_u32 v5, v1, 4, 1")
            A("v_lshl_add_u32 v4, v5, 4, v4")
            A("s_lshl_b32 s69, s3, 9")
            A("v_add_u32 v254, s69, v4")
            A("s_lshl_b32 s69, s3, 3")
            A("v_mov_b32 v255, s69")
    A(f"ds_write_b128 v30, v[20:23] offset:{L_OB}")
    A(f"ds_write_b128 v30, v[24:27] offset:{L_OB + 1024}")
    A("s_waitcnt lgkmcnt(0)")
    A("s_barrier")
    stamp(4)
    A("s_cmp_ge_u32 s47, 28")
    A("s_cbranch_scc1 L_fin")
    for k, (va, off) in enumerate([(252, L_XR), (253, L_XR), (252, L_MD), (253, L_MD), (252, L_MD + 896), (253, L_MD + 896), (252, L_MD + 1792), (253, L_MD + 1792)]):
        A(f"ds_read_u16_d16_hi v{244 + k}, v{va} offset:{off}")
    A("s_waitcnt lgkmcnt(0)")
    A("v_add_f32 v250, 1.0, v250")
    A("v_add_f32 v251, 1.0, v251")
    rnd2(250, 251, 4)
    A("s_barrier")

    def issueY():
        for U in range(2):
            A(f"buffer_load_dwordx4 {vr(slot(2 * U))}, v28, s[48:51], s{76 + U} offen sc1")
            A(f"buffer_load_dwordx4 {vr(slot(2 * U + 1))}, v29, s[48:51], s{76 + U} offen sc1")
    poll("Y", issueY, [slot(n) for n in range(4)], 4)
    for U in range(2):
        A(f"v_mfma_f32_16x16x32_bf16 v[240:243], v[232:235], {vr(slot(2 * U))}, {'0' if U == 0 else 'v[240:243]'}")
        A(f"v_mfma_f32_16x16x32_bf16 v[240:243], v[236:239], {vr(slot(2 * U + 1))}, v[240:243]")
    stamp(5)
    rnd2(240, 241, 4)
    A("v_mul_f32 v240, v246, v240")
    A("v_mul_f32 v241, v247, v241")
    rnd2(240, 241, 4)
    A("v_add_f32 v240, v244, v240")
    A("v_add_f32 v241, v245, v241")
    rnd2(240, 241, 4)
    A("v_cndmask_b32 v5, 0, v241, s[74:75]")
    A("v_add_f32 v6, v240, v5")
    A("v_mul_f32 v7, v240, v240")
    A("v_fmac_f32 v7, v5, v5")
    A(f"ds_write_b16 v252, v4 offset:{L_X1}")
    A(f"ds_write_b16_d16_hi v253, v4 offset:{L_X1}")
    for ctl in ("quad_perm:[1,0,3,2] row_mask:0xf", "quad_perm:[2,3,0,1] row_mask:0xf", "row_half_mirror row_mask:0xf", "row_mirror row_mask:0xf",
                "row_bcast:15 row_mask:0xa", "row_bcast:31 row_mask:0xc"):
        A(f"v_add_f32_dpp v6, v6, v6 {ctl} bank_mask:0xf")
        A(f"v_add_f32_dpp v7, v7, v7 {ctl} bank_mask:0xf")
    A("s_mov_b32 exec_lo, 0")
    A("s_mov_b32 exec_hi, 0x80000000")
    A(f"ds_write_b64 v255, v[6:7] offset:{L_ST2}")
    A("s_mov_b64 exec, -1")
    A("v_mov_b32 v5, 0")
    A("s_waitcnt lgkmcnt(0)")
    A("s_barrier")
    A(f"ds_read_b128 v[8:11], v5 offset:{L_ST2}")
    A(f"ds_read_b128 v[12:15], v5 offset:{L_ST2 + 16}")
    A(f"s_mov_b32 s69, {f2u(1.0 / 448):#x}")
    A("s_waitcnt lgkmcnt(0)")
    A("v_add_f32 v8, v8, v10")
    A("v_add_f32 v9, v9, v11")
    A("v_add_f32 v12, v12, v14")
    A("v_add_f32 v13, v13, v15")
    A("v_add_f32 v8, v8, v12")
    A("v_add_f32 v9, v9, v13")
    A("v_mul_f32 v8, s69, v8")
    A("v_mul_f32 v9, s69, v9")
    A("v_fma_f32 v9, -v8, v8, v9")
    A("v_max_f32 v9, 0, v9")
    rnd2(8, 9, 4)
    A(f"v_add_f32 v9, {f2u(1e-5):#x}, v9")
    A("v_sub_f32 v240, v240, v8")
    A("v_sub_f32 v241, v241, v8")
    rnd1(9)
    rnd2(240, 241, 4)
    A("v_sqrt_f32 v9, v9")
    rnd1(9)
    A("v_rcp_f32 v9, v9")
    A("v_mul_f32 v240, v240, v9")
    A("v_mul_f32 v241, v241, v9")
    rnd2(240, 241, 4)
    A("v_mul_f32 v240, v240, v250")
    A("v_mul_f32 v241, v241, v251")
    rnd2(240, 241, 4)
    A("v_add_f32 v240, v240, v248")
    A("v_add_f32 v241, v241, v249")
    A("v_cvt_pk_bf16_f32 v8, v240, v240")
    A("v_cvt_pk_bf16_f32 v10, v241, v241")
    quadswap(9, 8)
    quadswap(11, 10)
    abuild_bcast(AB[0], 8, 9, 0, 16)
    for t in range(14):
        if t + 1 < 14:
            t1 = t + 1
            abuild_bcast(AB[t1 & 1], 8 if t1 < 8 else 10, 9 if t1 < 8 else 11, t1 if t1 < 8 else t1 - 8, 16)
        c0, c1 = ("0", "0") if t == 0 else ("v[20:23]", "v[24:27]")
        A(f"v_mfma_f32_16x16x32_bf16 v[20:23], {vr(AB[t & 1])}, {vr(slot(20 + 2 * t))}, {c0}")
        A(f"v_mfma_f32_16x16x32_bf16 v[24:27], {vr(AB[t & 1])}, {vr(slot(21 + 2 * t))}, {c1}")
    fold_tiles(20, 24)
    A("s_mov_b32 exec_lo, 0x00ff00ff")
    A("s_mov_b32 exec_hi, 0x00ff00ff")
    A(f"ds_write_b128 v254, v[20:23] offset:{L_GU}")
    A("s_mov_b64 exec, -1")
    A("s_waitcnt lgkmcnt(0)")
    A("s_barrier")
    stamp(6)
    A("s_branch L_fin")

    def w2_issue():
        A(f"s_add_u32 s13, s6, {qx}")
        A("s_and_b32 s13, s13, 7")
        A("s_lshl_b32 s13, s13, 10")
        A("s_lshl_b32 s14, s4, 7")
        A("s_add_u32 s13, s13, s14")
        A(f"s_mul_i32 s14, s8, {112 * 8192}")
        A("s_add_u32 s13, s13, s14")
        A(f"s_mul_i32 s14, s8, {14 * 1024}")
        A(f"s_add_u32 s14, s14, {L_W1}")
        for t in range(14):
            A(f"s_add_u32 m0, s14, {1024 * t}")
            A(f"buffer_load_dwordx4 v7, s[56:59], s13 offen {qpol} lds")
            if t < 13:
                A(f"s_add_u32 s13, s13, {8 * 8192}")

    hb = [0]

    def hbar():
        hb[0] += 1
        ldsinc(L_CNT1, 16, 17)
        A("s_add_u32 s85, s85, 4")
        A(f"L_hb{hb[0]}:")
        A(f"ds_read_b32 v17, v16 offset:{L_CNT1}")
        A("s_waitcnt lgkmcnt(0)")
        A("v_readfirstlane_b32 s13, v17")
        A("s_cmp_ge_u32 s13, s85")
        A(f"s_cbranch_scc1 L_hbd{hb[0]}")
        spin_fail()
        A(f"s_branch L_hb{hb[0]}")
        A(f"L_hbd{hb[0]}:")

    def tag_from_epoch():
        A("s_add_u32 s44, s44, 1")
        A("s_and_b32 s45, s44, 0xbfffbfff")

    def q_setup():
        A("v_bfe_u32 v52, v1, 3, 1")
        A("v_lshlrev_b32 v52, 13, v52")
        A("v_lshl_add_u32 v52, v3, 11, v52")
        A("v_bfe_u32 v53, v1, 1, 2")
        A("v_lshl_add_u32 v52, v53, 9, v52")
        A("v_and_b32 v53, 1, v1")
        A("v_lshl_add_u32 v52, v53, 5, v52")
        A("s_lshl_b32 s68, s6, 14")
        A("s_lshl_b32 s13, s4, 6")
        A("s_add_u32 s68, s68, s13")
        A(f"s_add_u32 s68, s68, {WS_Q}")

    WO = lambda tau, t: 64 + 4 * (16 * tau + t)
    WD = lambda tau, t: 192 + 4 * (8 * tau + t)

    def wts_setup():
        srd(60, 24, 4096 * 896)
        A("s_cmp_lt_u32 s47, 28")
        A(f"s_cselect_b32 s66, {1792 * 896}, 0")
        A("s_mov_b32 s64, s32"); A("s_mov_b32 s65, s33"); A("s_mov_b32 s67, 0x20000")
        A("s_mov_b32 s72, s24"); A("s_mov_b32 s73, s25"); A("s_mov_b32 s75, 0x20000")
        A("s_cmp_lt_u32 s5, 3")
        A(f"s_cselect_b32 s74, {4096 * 896}, 0")
        A("v_bfe_u32 v56, v1, 3, 1")
        A("v_and_b32 v57, 7, v1")
        A("v_lshrrev_b32 v58, 1, v3")
        A("v_lshlrev_b32 v58, 8, v58")
        A("v_and_b32 v59, 1, v3")
        A("v_lshl_add_u32 v58, v59, 5, v58")
        A("v_lshl_add_u32 v58, v56, 4, v58")
        A("v_mul_u32_u24 v58, 896, v58")
        A("v_lshl_add_u32 v58, v57, 4, v58")
        A("v_lshl_add_u32 v59, v56, 2, v3")
        A("v_mul_u32_u24 v59, 896, v59")
        A("v_lshl_add_u32 v59, v57, 4, v59")
        A("s_lshl_b32 s76, s6, 3")
        A("s_add_u32 s76, s76, s8")
        A(f"s_mul_i32 s76, s76, {64 * 896}")
        A("s_lshl_b32 s13, s5, 8")
        A("s_add_u32 s76, s76, s13")
        A(f"s_mul_i32 s77, s47, {64 * 896}")
        A("s_lshl_b32 s13, s8, 8")
        A("s_add_u32 s77, s77, s13")

    def wts_issue(items, win, free=0):
        if "w" in abl:
            return
        for n, (kind, tau, t) in enumerate(items):
            if kind == "o":
                A(f"s_add_u32 s13, s76, {(t >> 2) * 3584}")
            else:
                A(f"s_add_u32 s13, s77, {t * 7168}")
            if n >= free:
                A(f"s_waitcnt vmcnt({win - 1})")
            if kind == "o":
                A(f"buffer_load_dwordx4 {vr(WO(tau, t))}, v58, s[{60 if tau == 0 else 72}:{63 if tau == 0 else 75}], s13 offen offset:{(t % 4) * 896 + tau * 128} {wpol}")
            else:
                A(f"buffer_load_dwordx4 {vr(WD(tau, t))}, v59, s[64:67], s13 offen offset:{tau * 128} {wpol}")

    A("; ---------------- helper ----------------")
    A("L_helper:")
    A("s_sub_u32 s8, s3, 4")
    A("v_lshlrev_b32 v2, 4, v1")
    A("v_lshrrev_b32 v3, 4, v1")
    A("v_and_b32 v4, 15, v1")
    A("v_bfe_u32 v5, v1, 1, 3")
    A("v_and_b32 v6, 1, v1")
    A("v_lshlrev_b32 v6, 4, v6")
    A("v_lshl_add_u32 v6, v3, 5, v6")
    A("v_lshl_add_u32 v7, v5, 13, v6")
    A("v_mul_u32_u24 v5, 5376, v5")
    A("v_add_u32 v6, v5, v6")
    A("s_mov_b32 s85, 0")
    A("s_cmp_lg_u32 s5, 3")
    A("s_cbranch_scc1 L_noprio")
    if prio:
        A(f"s_setprio {prio}")
    A("L_noprio:")
    A("s_mov_b32 s50, %d" % WS_SIZE); A("s_mov_b32 s51, 0x20000")
    A("s_mov_b32 s54, %d" % (448 * 5376)); A("s_mov_b32 s55, 0x20000")
    A("s_mov_b32 s58, %d" % (448 * 8192)); A("s_mov_b32 s59, 0x20000")
    A("v_mov_b32 v8, 0"); A("v_mov_b32 v9, 0"); A("v_mov_b32 v10, 0"); A("v_mov_b32 v11, 0")
    A(f"ds_write_b128 v8, v[8:11] offset:{L_CNT1}")
    A(f"ds_write_b32 v8, v8 offset:{L_CNT3}")
    A("s_waitcnt lgkmcnt(0)")
    A("s_load_dword s44, s[42:43], 0")
    A("s_mov_b32 s48, s42"); A("s_mov_b32 s49, s43")
    A("s_mov_b32 s52, s36"); A("s_mov_b32 s53, s37")
    A("s_mov_b32 s56, s22"); A("s_mov_b32 s57, s23")
    A("s_cmp_lg_u32 s9, 0")
    A("s_cbranch_scc1 L_p1")
    A("s_cmp_lg_u32 s8, 2")
    A("s_cbranch_scc1 L_np2")
    if assist:
        A("s_lshr_b32 s13, s2, 3")
        A("s_mul_i32 s13, s13, 14")
        A("v_lshrrev_b32 v16, 1, v1")
        A("v_add_u32 v16, s13, v16")
        A("v_mul_u32_u24 v16, 5376, v16")
        A("v_and_b32 v17, 1, v1")
        A("v_mul_u32_u24 v17, 896, v17")
        A("s_lshl_b32 s13, s6, 7")
        A("v_add3_u32 v16, v16, v17, s13")
        A("s_mov_b64 exec, 0xfffffff")
        A("buffer_load_dword v60, v16, s[52:55], 0 offen")
        A("s_mov_b64 exec, -1")
    if pref:
        code_prefetch("a", 16)
    A("L_np2:")
    A("s_barrier")
    A("s_cmp_eq_u32 s5, 3")
    A("s_cbranch_scc1 L_p2a")
    A("s_cmp_lg_u32 s8, 3")
    A("s_cbranch_scc1 L_wts")
    items3 = [("d", 0, t) for t in range(8)] + [("o", 1, t) for t in range(16)] + [("o", 0, t) for t in range(16)]
    q_setup()
    if qpre:
        A("buffer_load_dwordx4 v[32:35], v52, s[48:51], s68 offen sc1")
    wts_setup()
    wts_issue(items3[:NE], W3, free=W3)
    A("s_waitcnt lgkmcnt(0)")
    tag_from_epoch()
    A("s_mov_b32 s10, 0")
    A("s_branch L_q")
    A("L_p2a:")
    w2_issue()
    A("s_waitcnt lgkmcnt(0)")
    tag_from_epoch()
    A("s_waitcnt vmcnt(0)")
    A("s_branch L_p2")
    A("L_p1:")
    A("s_mul_i32 s13, s8, 1792")
    A("v_add_u32 v5, s13, v2")
    A("global_load_dwordx4 v[8:11], v5, s[34:35]")
    A("s_mov_b32 exec_hi, 0xffff")
    A("global_load_dwordx4 v[12:15], v5, s[34:35] offset:1024")
    A("s_mov_b32 exec_hi, -1")
    A("v_and_b32 v16, 7, v1")
    A("v_mul_u32_u24 v16, 896, v16")
    A("v_lshl_add_u32 v16, v3, 3, v16")
    A("s_lshl_b32 s13, s6, 7")
    A("s_lshl_b32 s14, s8, 5")
    A("s_add_u32 s13, s13, s14")
    A("s_cmp_eq_u32 s9, 1")
    A("s_cselect_b32 s13, s13, 0")
    A("v_add_u32 v16, s13, v16")
    A("global_load_dwordx2 v[18:19], v16, s[16:17]")
    A("v_lshrrev_b32 v16, 3, v1")
    A("v_mul_u32_u24 v16, 896, v16")
    A("v_and_b32 v17, 7, v1")
    A("v_lshl_add_u32 v16, v17, 4, v16")
    A("s_cmp_lg_u32 s8, 2")
    A("s_cbranch_scc1 L_nox")
    for t in range(7):
        A(f"global_load_dwordx4 {vr(64 + 4 * t)}, v16, s[16:17] offset:{128 * t}")
    A("L_nox:")
    A("s_barrier")
    A("s_lshl_b32 s11, s10, 7")
    A("s_lshl_b32 s13, s10, 8")
    A("s_add_u32 s13, s13, 1792")
    A("s_movk_i32 s12, 128")
    A("s_cmp_eq_u32 s9, 1")
    A("s_cselect_b32 s11, s11, s13")
    A("s_cselect_b32 s12, 896, s12")
    A(f"s_mul_i32 s13, s8, {14 * 8 * 5376}")
    A("s_add_u32 s13, s13, s11")
    A("s_add_u32 s14, s13, s12")
    A(f"s_mul_i32 s15, s8, {14 * 1024}")
    A(f"s_add_u32 s15, s15, {L_W1}")
    for t in range(14):
        A("s_mov_b32 m0, s15")
        A(f"buffer_load_dwordx4 v6, s[52:55], s13 offen {ppol} lds")
        A(f"s_add_u32 m0, s15, {56 * 1024}")
        A(f"buffer_load_dwordx4 v6, s[52:55], s14 offen {ppol} lds")
        if t < 13:
            A(f"s_add_u32 s13, s13, {8 * 5376}")
            A(f"s_add_u32 s14, s14, {8 * 5376}")
            A("s_add_u32 s15, s15, 1024")
    A("s_waitcnt vmcnt(28)")
    stamp(1, 2)
    A(f"s_mov_b32 s13, {f2u(-LOG2E):#x}")
    for k in range(8):
        d = 8 + k
        a, b_ = 20 + 4 * k, 21 + 4 * k
        A(f"v_lshlrev_b32 v{a}, 16, v{d}")
        A(f"v_and_b32 v{b_}, s46, v{d}")
        A(f"v_mul_f32 v{a + 2}, s13, v{a}")
        A(f"v_mul_f32 v{a + 3}, s13, v{b_}")
        A(f"v_exp_f32 v{a + 2}, v{a + 2}")
        A(f"v_exp_f32 v{a + 3}, v{a + 3}")
    for k in range(8):
        a = 20 + 4 * k
        A(f"v_add_f32 v{a + 2}, 1.0, v{a + 2}")
        A(f"v_add_f32 v{a + 3}, 1.0, v{a + 3}")
        A(f"v_rcp_f32 v{a + 2}, v{a + 2}")
        A(f"v_rcp_f32 v{a + 3}, v{a + 3}")
    for k in range(8):
        a = 20 + 4 * k
        A(f"v_mul_f32 v{a}, v{a}, v{a + 2}")
        A(f"v_mul_f32 v{a + 1}, v{a + 1}, v{a + 3}")
        A(f"v_cvt_pk_bf16_f32 v{8 + k}, v{a}, v{a + 1}")
    A(f"s_mul_i32 s13, s8, {2 * SC_RS}")
    A("v_add_u32 v16, s13, v2")
    A("v_add_u32 v17, 16, v16")
    A("v_cmp_le_u32 vcc, 56, v1")
    A("v_cndmask_b32 v16, v16, v17, vcc")
    A(f"ds_write_b128 v16, v[8:11] offset:{L_SC}")
    A("s_mov_b32 exec_hi, 0xffff")
    A(f"ds_write_b128 v17, v[12:15] offset:{L_SC + 1024}")
    A("s_mov_b32 exec_hi, -1")
    A("s_cmp_lg_u32 s8, 2")
    A("s_cbranch_scc1 L_nostat")
    A("v_mov_b32 v20, 0"); A("v_mov_b32 v21, 0"); A("v_mov_b32 v22, 0"); A("v_mov_b32 v23, 0")
    A("v_mov_b32 v24, 0x3f803f80")
    for k in range(28):
        A(f"v_dot2c_f32_bf16 v{20 + 2 * (k & 1)}, v{64 + k}, v24")
        A(f"v_dot2c_f32_bf16 v{21 + 2 * (k & 1)}, v{64 + k}, v{64 + k}")
    A("v_add_f32 v20, v20, v22")
    A("v_add_f32 v21, v21, v23")
    for ctl in ("quad_perm:[1,0,3,2]", "quad_perm:[2,3,0,1]", "row_half_mirror"):
        A(f"v_add_f32_dpp v20, v20, v20 {ctl} row_mask:0xf bank_mask:0xf")
        A(f"v_add_f32_dpp v21, v21, v21 {ctl} row_mask:0xf bank_mask:0xf")
    A(f"s_mov_b32 s13, {f2u(1.0 / 448):#x}")
    A("v_mul_f32 v20, s13, v20")
    A("v_mul_f32 v21, s13, v21")
    A("v_fma_f32 v21, -v20, v20, v21")
    A("v_max_f32 v21, 0, v21")
    rnd2(20, 21, 22)
    A(f"v_add_f32 v21, {f2u(1e-5):#x}, v21")
    rnd1(21)
    A("v_sqrt_f32 v21, v21")
    rnd1(21)
    A("v_rcp_f32 v21, v21")
    A("v_and_b32 v22, 0x38, v1")
    A(f"ds_write_b64 v22, v[20:21] offset:{L_ST1}")
    A("L_nostat:")
    A("v_and_b32 v16, 7, v1")
    A(f"v_mul_u32_u24 v20, {SC_RS}, v16")
    A("v_lshl_add_u32 v20, v3, 3, v20")
    A(f"v_add_u32 v20, {L_SC}, v20")
    A("v_lshlrev_b32 v21, 3, v16")
    A("v_lshrrev_b32 v24, 1, v3")
    A("v_lshlrev_b32 v24, 10, v24")
    A("v_and_b32 v25, 1, v3")
    A("v_lshl_add_u32 v24, v25, 7, v24")
    A("v_lshl_add_u32 v24, v4, 3, v24")
    A("s_lshl_b32 s13, s8, 8")
    A(f"s_add_u32 s13, s13, {L_W1}")
    A("v_add_u32 v24, s13, v24")
    A(f"v_add_u32 v25, {56 * 1024}, v24")
    stamp(2, 2)
    A("s_waitcnt vmcnt(0) lgkmcnt(0)")
    stamp(3, 2)
    tag_from_epoch()
    hbar()
    A(f"ds_read_b64 v[22:23], v21 offset:{L_ST1}")
    for kb in range(14):
        A(f"ds_read2_b64 {vr(64 + 4 * kb)}, v20 offset0:{8 * kb} offset1:{8 * kb + 4}")
        for hf in range(2):
            A(f"ds_read_b64_tr_b16 {vr(120 + 56 * hf + 4 * kb, 2)}, v{24 + hf} offset:{4096 * kb}")
            A(f"ds_read_b64_tr_b16 {vr(122 + 56 * hf + 4 * kb, 2)}, v{24 + hf} offset:{4096 * kb + 2048}")
    A("s_waitcnt lgkmcnt(0)")
    hbar()
    w2_issue()
    for kb in range(14):
        A(f"v_mfma_f32_16x16x32_bf16 v[24:27], {vr(120 + 4 * kb)}, {vr(64 + 4 * kb)}, {'0' if kb == 0 else 'v[24:27]'}")
        A(f"v_mfma_f32_16x16x32_bf16 v[32:35], {vr(176 + 4 * kb)}, {vr(64 + 4 * kb)}, {'0' if kb == 0 else 'v[32:35]'}")
    A("v_mov_b32 v29, s45")
    A("v_mov_b32 v31, s45")
    A("v_mov_b32 v37, s45")
    A("v_mov_b32 v39, s45")
    A("s_cmp_eq_u32 s9, 1")
    A("s_cbranch_scc1 L_hepi")
    A("v_lshlrev_b32 v16, 13, v4")
    A("v_lshl_add_u32 v16, v3, 4, v16")
    A("s_lshl_b32 s13, s10, 9")
    A("s_lshl_b32 s14, s8, 6")
    A("s_add_u32 s13, s13, s14")
    A(f"s_add_u32 s13, s13, {WS_G}")
    A("v_cvt_pk_bf16_f32 v28, v24, v25")
    A("v_cvt_pk_bf16_f32 v30, v26, v27")
    A("v_cvt_pk_bf16_f32 v36, v32, v33")
    A("v_cvt_pk_bf16_f32 v38, v34, v35")
    A("s_mov_b32 exec_lo, 0x00ff00ff"); A("s_mov_b32 exec_hi, 0x00ff00ff")
    A("buffer_store_dwordx4 v[28:31], v16, s[48:51], s13 offen sc1")
    A("buffer_store_dwordx4 v[36:39], v16, s[48:51], s13 offen offset:256 sc1")
    A("s_mov_b64 exec, -1")
    A("s_branch L_p1done")
    A("L_hepi:")
    A("v_lshlrev_b32 v40, 16, v18"); A("v_and_b32 v41, s46, v18"); A("v_lshlrev_b32 v42, 16, v19"); A("v_and_b32 v43, s46, v19")
    for r in range(4):
        A(f"v_sub_f32 v{40 + r}, v{40 + r}, v22")
    rnd2(40, 41, 46); rnd2(42, 43, 47)
    for r in range(4):
        A(f"v_mul_f32 v{40 + r}, v{40 + r}, v23")
    rnd2(40, 41, 46); rnd2(42, 43, 47)
    rnd2(32, 33, 46); rnd2(34, 35, 47); rnd2(24, 25, 48); rnd2(26, 27, 49)
    for r in range(4):
        A(f"v_add_f32 v{32 + r}, 1.0, v{32 + r}")
    rnd2(32, 33, 46); rnd2(34, 35, 47)
    for r in range(4):
        A(f"v_mul_f32 v{40 + r}, v{40 + r}, v{32 + r}")
    rnd2(40, 41, 46); rnd2(42, 43, 47)
    for r in range(4):
        A(f"v_add_f32 v{40 + r}, v{40 + r}, v{24 + r}")
    A("v_cvt_pk_bf16_f32 v28, v40, v41")
    A("v_cvt_pk_bf16_f32 v30, v42, v43")
    A("v_lshlrev_b32 v16, 6, v4")
    A("v_lshl_add_u32 v16, v3, 4, v16")
    A("s_lshl_b32 s13, s10, 2")
    A("s_add_u32 s13, s13, s8")
    A("s_lshl_b32 s13, s13, 9")
    A(f"s_add_u32 s13, s13, {WS_H}")
    A("s_mov_b32 exec_lo, 0x00ff00ff"); A("s_mov_b32 exec_hi, 0x00ff00ff")
    A("buffer_store_dwordx4 v[28:31], v16, s[48:51], s13 offen sc1")
    A("s_mov_b64 exec, -1")
    A("L_p1done:")
    stamp(1)
    stamp(4, 2)
    A("s_waitcnt vmcnt(0)")
    A("L_p2:")
    hbar()
    stamp(5, 2)
    A("v_lshrrev_b32 v18, 1, v3")
    A("v_lshlrev_b32 v18, 10, v18")
    A("v_and_b32 v19, 1, v3")
    A("v_lshl_add_u32 v18, v19, 7, v18")
    A("v_lshl_add_u32 v18, v4, 3, v18")
    A("s_lshl_b32 s13, s8, 8")
    A(f"s_add_u32 s13, s13, {L_W1}")
    A("v_add_u32 v18, s13, v18")
    for kb in range(14):
        A(f"ds_read_b64_tr_b16 {vr(64 + 4 * kb, 2)}, v18 offset:{4096 * kb}")
        A(f"ds_read_b64_tr_b16 {vr(66 + 4 * kb, 2)}, v18 offset:{4096 * kb + 2048}")
    A("v_and_b32 v19, 7, v1")
    A("v_lshlrev_b32 v18, 6, v19")
    A("v_lshl_add_u32 v18, v3, 4, v18")
    A("v_bfe_u32 v21, v1, 3, 1")
    A("v_lshl_add_u32 v20, v21, 9, v18")
    A(f"v_mul_u32_u24 v19, {SC_RS}, v19")
    A("v_lshl_add_u32 v19, v3, 3, v19")
    A(f"v_add_u32 v19, {L_SC}, v19")
    A("s_mul_i32 s13, s8, 224")
    A("v_add_u32 v54, s13, v19")
    A("v_lshl_add_u32 v55, v21, 5, v54")
    A("s_mul_i32 s11, s8, 3584")
    A(f"s_add_u32 s11, s11, {WS_H}")
    A(f"s_add_u32 s12, s6, {qx}")
    A("s_and_b32 s12, s12, 7")
    A("s_lshl_b32 s12, s12, 5")
    A("s_lshl_b32 s13, s4, 2")
    A("s_add_u32 s12, s12, s13")
    A("s_add_u32 s12, s12, s8")
    A("s_lshl_b32 s12, s12, 9")
    A(f"s_add_u32 s12, s12, {WS_Q}")
    q_setup()
    wts_setup()
    A("s_waitcnt lgkmcnt(0)")
    ldsinc(L_CNT3, 16, 17)
    A("s_cmp_lg_u32 s9, 0")
    A("s_cbranch_scc1 L_noearly")
    wts_issue([("d", 0, t) for t in range(8)][:NE2], W3, free=W3)
    A("L_noearly:")

    def issueH():
        for n in range(4):
            A(f"buffer_load_dwordx4 {vr(24 + 4 * n)}, v{20 if n < 3 else 18}, s[48:51], s11 offen offset:{1024 * n} sc1")
    poll("H", issueH, [24 + 4 * n for n in range(4)], 22)
    stamp(2)
    stamp(6, 2)
    for n in range(4):
        A(f"v_mov_b32 v{25 + 4 * n}, v{26 + 4 * n}")
    for n in range(4):
        A(f"ds_write_b64 v{55 if n < 3 else 54}, {vr(24 + 4 * n, 2)} offset:{64 * n}")
    A("s_waitcnt lgkmcnt(0)")
    hbar()
    for kb in range(14):
        A(f"ds_read2_b64 {vr(120 + 4 * kb)}, v19 offset0:{8 * kb} offset1:{8 * kb + 4}")
    A("v_mov_b32 v29, s45")
    A("v_mov_b32 v31, s45")
    A("s_waitcnt lgkmcnt(0)")
    for kb in range(14):
        A(f"v_mfma_f32_16x16x32_bf16 v[24:27], {vr(64 + 4 * kb)}, {vr(120 + 4 * kb)}, {'0' if kb == 0 else 'v[24:27]'}")
    A("v_cvt_pk_bf16_f32 v28, v24, v25")
    A("v_cvt_pk_bf16_f32 v30, v26, v27")
    A("s_mov_b32 exec_lo, 0x00ff00ff"); A("s_mov_b32 exec_hi, 0x00ff00ff")
    if "s" not in abl:
        A("buffer_store_dwordx4 v[28:31], v18, s[48:51], s12 offen sc1")
    A("s_mov_b64 exec, -1")
    A("s_cmp_eq_u32 s8, 3")
    A("s_cbranch_scc1 L_q3")
    A("s_setprio 0")
    A("s_branch L_wts2")
    A("L_q3:")
    A("s_mov_b32 s10, 1")
    A("s_waitcnt vmcnt(0)")
    A("L_q:")
    if prio:
        A(f"s_setprio {prio}")
    A("v_mov_b32 v16, s45")
    A("s_lshl_b32 s13, s2, 2")
    A(f"s_add_u32 s13, s13, {WS_R}")
    A("v_mov_b32 v17, 0")
    A("s_mov_b64 exec, 1")
    A("buffer_store_dword v16, v17, s[48:51], s13 offen sc1")
    A("s_mov_b64 exec, -1")

    def issueQ():
        A("buffer_load_dwordx4 v[32:35], v52, s[48:51], s68 offen sc1")
        A("buffer_load_dwordx4 v[36:39], v52, s[48:51], s68 offen offset:16 sc1")
    poll("Q", issueQ, [32, 36], 22)
    A("v_mov_b32 v33, v34")
    A("v_mov_b32 v34, v36")
    A("v_mov_b32 v35, v38")
    A("v_mov_b32 v16, 0")
    A("v_mov_b32 v22, 1")
    A("v_mov_b32 v23, s45")
    A(f"ds_write_b128 v2, v[32:35] offset:{L_QL}")
    A(f"ds_write_b64 v16, v[22:23] offset:{L_QF}")
    stamp(3)
    A("s_setprio 0")
    A("s_cmp_eq_u32 s10, 0")
    A("s_cbranch_scc1 L_q3b")
    wts_issue([("o", 0, t) for t in range(16)] + [("d", 0, t) for t in range(8)][NE2:], W3, free=W3)
    A("s_branch L_pre_x")
    A("L_q3b:")
    wts_issue(items3[NE:], W3, free=W3)
    A("s_branch L_pre_x")
    A("L_wts:")
    wts_setup()
    wts_issue([("d", 0, t) for t in range(8)][:NE2] + [("o", 1, t) for t in range(16)], W, free=W)
    A("L_wts2:")
    wts_issue([("o", 0, t) for t in range(16)] + [("d", 0, t) for t in range(8)][NE2:] + [("d", 1, t) for t in range(8)], W, free=0)
    ldsspin("T", L_QF, 1, 16, 17)
    A(f"ds_read_b32 v17, v16 offset:{L_TAG}")
    A("s_waitcnt lgkmcnt(0)")
    A("v_readfirstlane_b32 s45, v17")
    A("s_cmp_eq_u32 s8, 0")
    A("s_cbranch_scc1 L_ml")
    A("s_cmp_eq_u32 s8, 2")
    A("s_cbranch_scc1 L_h2b")
    A("s_mul_i32 s13, s4, 896")
    A("v_min_u32 v16, 55, v1")
    A("v_lshlrev_b32 v16, 4, v16")
    A("v_add_u32 v17, s13, v16")
    A("global_load_dwordx4 v[20:23], v17, s[16:17]")
    A("s_lshl_b32 s14, s4, 13")
    A(f"s_add_u32 s14, s14, {WS_G}")
    A("s_add_u32 s15, s14, 0x1000")

    def issueG():
        for t in range(7):
            A(f"buffer_load_dwordx4 {vr(24 + 4 * t)}, v2, s[48:51], s{14 + (t >> 2)} offen offset:{(t & 3) * 1024} sc1")
    poll("G", issueG, [24 + 4 * t for t in range(7)], 18)
    A(f"ds_write_b128 v16, v[20:23] offset:{L_XR}")
    A("v_lshlrev_b32 v17, 3, v1")
    for t in range(7):
        A(f"v_mov_b32 v{25 + 4 * t}, v{26 + 4 * t}")
    for t in range(7):
        A(f"ds_write_b64 v17, {vr(24 + 4 * t, 2)} offset:{L_MD + 512 * t}")
    A("s_branch L_pre_x")
    A("L_h2b:")
    if pref2:
        code_prefetch("b", 16)
    A("s_cmp_lg_u32 s2, 0")
    A("s_cbranch_scc1 L_pre_x")
    A(f"s_movk_i32 s14, {WS_R}")
    A("L_pollR:")
    A("buffer_load_dwordx4 v[24:27], v2, s[48:51], s14 offen sc1")
    A("s_waitcnt vmcnt(0)")
    A("v_xor_b32 v28, s45, v24")
    for r in (25, 26, 27):
        A(f"v_bitop3_b32 v28, v28, v{r}, s45 bitop3:0xf6")
    A("v_cmp_ne_u32 vcc, 0, v28")
    A("s_cbranch_vccz L_pre_x")
    spin_fail()
    A("s_branch L_pollR")
    A("s_branch L_pre_x")
    A("L_ml:")
    ldsspin("2", L_CNT2, 4, 16, 17)
    A("v_lshrrev_b32 v17, 5, v1")
    A("v_lshlrev_b32 v16, 3, v17")
    A(f"v_add_u32 v16, {L_MLL}, v16")
    A("ds_read2_b64 v[20:23], v16 offset0:0 offset1:2")
    A("ds_read2_b64 v[24:27], v16 offset0:4 offset1:6")
    A(f"s_mov_b32 s15, {f2u(LOG2E / 16):#x}")
    A("s_lshl_b32 s13, s4, 3")
    A("s_add_u32 s13, s13, s6")
    A("s_lshl_b32 s13, s13, 7")
    A(f"s_add_u32 s13, s13, {WS_ML}")
    A("s_lshl_b32 s14, s5, 5")
    A("s_add_u32 s14, s14, s13")
    A("v_lshlrev_b32 v17, 4, v17")
    A("s_waitcnt lgkmcnt(0)")
    A("v_max3_f32 v28, v20, v22, v24")
    A("v_max_f32 v28, v28, v26")
    for w in range(4):
        A(f"v_sub_f32 v{32 + w}, v{20 + 2 * w}, v28")
        A(f"v_mul_f32 v{32 + w}, s15, v{32 + w}")
        A(f"v_exp_f32 v{32 + w}, v{32 + w}")
    A("v_mul_f32 v30, v32, v21")
    A("v_fmac_f32 v30, v33, v23")
    A("v_fmac_f32 v30, v34, v25")
    A("v_fmac_f32 v30, v35, v27")
    A("v_mov_b32 v29, s45")
    A("v_mov_b32 v31, s45")
    A("s_mov_b32 exec_lo, 1"); A("s_mov_b32 exec_hi, 1")
    A("buffer_store_dwordx4 v[28:31], v17, s[48:51], s14 offen sc1")
    A("s_mov_b64 exec, -1")

    def issueM():
        for k in range(4):
            A(f"buffer_load_dwordx4 {vr(36 + 4 * k)}, v17, s[48:51], s13 offen offset:{32 * k} sc1")
    poll("M", issueM, [36 + 4 * k for k in range(4)], 52)
    A("v_max3_f32 v52, v36, v40, v44")
    A("v_max_f32 v52, v52, v48")
    for k in range(4):
        A(f"v_sub_f32 v{36 + 4 * k}, v{36 + 4 * k}, v52")
        A(f"v_mul_f32 v{36 + 4 * k}, s15, v{36 + 4 * k}")
        A(f"v_exp_f32 v{36 + 4 * k}, v{36 + 4 * k}")
    A("v_sub_f32 v28, v28, v52")
    A("v_mul_f32 v28, s15, v28")
    A("v_exp_f32 v28, v28")
    A("v_mul_f32 v53, v36, v38")
    A("v_fmac_f32 v53, v40, v42")
    A("v_fmac_f32 v53, v44, v46")
    A("v_fmac_f32 v53, v48, v50")
    A("v_rcp_f32 v53, v53")
    A("v_mul_f32 v28, v28, v53")
    for w in range(4):
        A(f"v_mul_f32 v{32 + w}, v{32 + w}, v28")
    A(f"ds_write_b128 v17, v[32:35] offset:{L_FL}")
    A("L_pre_x:")
    masks(8, 12)
    A("v_lshrrev_b32 v12, 5, v1")
    A("v_lshlrev_b32 v14, 4, v12")
    A("v_lshlrev_b32 v12, 9, v12")
    A("v_bfe_u32 v13, v1, 1, 1")
    A("v_lshl_add_u32 v12, v13, 8, v12")
    A("v_bfe_u32 v13, v1, 2, 3")
    A("v_lshl_add_u32 v12, v13, 4, v12")
    A("v_and_b32 v13, 1, v1")
    A("v_lshl_add_u32 v12, v13, 3, v12")
    A("s_lshr_b32 s13, s8, 1")
    A("s_lshl_b32 s13, s13, 10")
    A("s_and_b32 s14, s8, 1")
    A("s_lshl_b32 s14, s14, 7")
    A("s_add_u32 s13, s13, s14")
    A("v_add_u32 v12, s13, v12")
    A("s_lshl_b32 s71, s4, 3")
    A("s_add_u32 s71, s71, s6")
    A("s_lshl_b32 s71, s71, 14")
    A(f"s_add_u32 s71, s71, {WS_OA}")
    A("s_lshl_b32 s13, s8, 12")
    A("s_add_u32 s71, s71, s13")
    A("s_lshl_b32 s14, s5, 10")
    A("s_add_u32 s72, s71, s14")
    A("v_lshlrev_b32 v7, 10, v3")
    A("v_lshl_add_u32 v7, v4, 4, v7")
    A("v_lshrrev_b32 v15, 1, v3")
    A("v_lshlrev_b32 v15, 6, v15")
    A("v_and_b32 v13, 7, v1")
    A("v_lshl_add_u32 v15, v13, 3, v15")
    A("v_and_b32 v13, 1, v3")
    A("v_lshl_add_u32 v15, v13, 2, v15")
    A("s_lshl_b32 s13, s8, 7")
    A("v_add_u32 v15, s13, v15")
    A("v_lshlrev_b32 v16, 3, v15")
    A("v_bfe_u32 v13, v1, 3, 1")
    A("v_lshl_add_u32 v16, v13, 4, v16")
    A("v_lshlrev_b32 v15, 2, v15")
    A("s_lshl_b32 s13, s4, 3")
    A("s_add_u32 s13, s13, s6")
    A("s_lshl_b32 s73, s13, 11")
    A("s_lshl_b32 s13, s5, 9")
    A("s_add_u32 s73, s73, s13")
    A(f"s_add_u32 s73, s73, {WS_Y}")
    A("s_lshl_b32 s13, s4, 5")
    A("s_add_u32 s14, s13, s47")
    A("s_lshl_b32 s74, s14, 12")
    A(f"s_add_u32 s74, s74, {WS_C}")
    A("s_cmp_eq_u32 s5, 3")
    A("s_cselect_b32 s75, 0xffff, -1")
    A("s_cmp_eq_u32 s8, 3")
    A("s_cselect_b32 s79, 0, -1")
    A("s_mov_b32 s78, -1")
    A("v_and_b32 v13, 7, v1")
    A("v_lshlrev_b32 v17, 3, v13")
    A("v_bfe_u32 v13, v1, 3, 1")
    A("v_lshl_add_u32 v17, v13, 2, v17")
    A("v_add_u32 v17, v17, v3")
    A("v_lshlrev_b32 v17, 2, v17")
    A(f"v_add_u32 v17, {L_GU}, v17")
    A("v_lshrrev_b32 v18, 3, v1")
    A("v_lshlrev_b32 v18, 12, v18")
    A("v_and_b32 v13, 7, v1")
    A("v_lshl_add_u32 v18, v13, 4, v18")
    A("v_and_b32 v5, 0x3fff, v18")
    A("s_lshl_b32 s80, s4, 17")
    A("s_lshl_b32 s13, s47, 7")
    A("s_add_u32 s80, s80, s13")
    A(f"s_add_u32 s80, s80, {WS_C}")
    A("s_add_u32 s81, s80, 0x8000")
    A("s_add_u32 s82, s80, 0x10000")
    A("s_add_u32 s83, s80, 0x18000")
    A("s_lshl_b32 s13, s47, 5")
    A("v_lshl_add_u32 v19, v13, 2, s13")
    A("s_mul_i32 s14, s4, 896")
    A("v_add_u32 v6, s14, v19")
    A("v_mov_b32 v21, s45")
    A("v_mov_b32 v23, s45")
    if apre:
        for k in range(4):
            A(f"buffer_load_dwordx4 v[60:63], v7, s[48:51], s71 offen offset:{256 * k} sc1")
    if cpre:
        A("s_cmp_ge_u32 s47, 28")
        A("s_cbranch_scc1 L_nocpre")
        A("v_mov_b32 v24, 0"); A("v_mov_b32 v25, 0"); A("v_mov_b32 v26, 0"); A("v_mov_b32 v27, 0")
        A("v_not_b32 v25, v21"); A("v_not_b32 v27, v21")
        A("s_mov_b64 exec, s[78:79]")
        A("buffer_store_dwordx4 v[24:27], v16, s[48:51], s74 offen sc1")
        A("s_mov_b64 exec, -1")
        A("L_nocpre:")
    if ypre:
        A("s_cmp_lg_u32 s8, 0")
        A("s_cbranch_scc1 L_noypre")
        A("v_mov_b32 v24, 0"); A("v_mov_b32 v26, 0")
        A("v_not_b32 v25, v21"); A("v_not_b32 v27, v21")
        A("s_mov_b32 exec_hi, 0"); A("s_mov_b32 exec_lo, s75")
        A("buffer_store_dwordx4 v[24:27], v2, s[48:51], s73 offen sc1")
        A("s_mov_b64 exec, -1")
        A("L_noypre:")
    A("s_waitcnt vmcnt(0) lgkmcnt(0)")
    stamp(4)
    A("s_barrier")
    A(f"ds_read_b128 v[24:27], v14 offset:{L_FL}")
    for w in range(4):
        A(f"ds_read_b64 {vr(28 + 2 * w, 2)}, v12 offset:{L_OB + 2048 * w}")
    A("s_waitcnt lgkmcnt(0)")
    A("v_mul_f32 v20, v24, v28")
    A("v_mul_f32 v22, v24, v29")
    for w in range(1, 4):
        A(f"v_fmac_f32 v20, v{24 + w}, v{28 + 2 * w}")
        A(f"v_fmac_f32 v22, v{24 + w}, v{29 + 2 * w}")
    A("buffer_store_dwordx4 v[20:23], v2, s[48:51], s72 offen sc1")
    if aack:
        A("s_waitcnt vmcnt(0)")

    def issueA():
        for k in range(4):
            A(f"buffer_load_dwordx4 {vr(24 + 4 * k)}, v7, s[48:51], s71 offen offset:{256 * k} sc1")
    poll("A", issueA, [24 + 4 * k for k in range(4)], 40)
    for c in (0, 2):
        A(f"v_permlane16_swap_b32 v{24 + c}, v{28 + c}")
        A(f"v_permlane16_swap_b32 v{32 + c}, v{36 + c}")
    for c in (0, 2):
        A(f"v_add_f32 v{24 + c}, v{24 + c}, v{28 + c}")
        A(f"v_add_f32 v{32 + c}, v{32 + c}, v{36 + c}")
    for c in (0, 2):
        A(f"v_permlane32_swap_b32 v{24 + c}, v{32 + c}")
    for c in (0, 2):
        A(f"v_add_f32 v{24 + c}, v{24 + c}, v{32 + c}")
    A("v_cvt_pk_bf16_f32 v40, v24, v24")
    A("v_cvt_pk_bf16_f32 v42, v26, v26")
    quadswap(41, 40)
    quadswap(43, 42)
    HB = [44, 48]
    abuild_bcast(HB[0], 40, 41, 0, 8)
    for t in range(16):
        if t + 1 < 16:
            t1 = t + 1
            abuild_bcast(HB[t1 & 1], 40 + 2 * (t1 & 1), 41 + 2 * (t1 & 1), t1 >> 1, 8)
        c0, c1 = ("0", "0") if t == 0 else ("v[52:55]", "v[56:59]")
        A(f"v_mfma_f32_16x16x32_bf16 v[52:55], {vr(HB[t & 1])}, {vr(WO(0, t))}, {c0}")
        A(f"v_mfma_f32_16x16x32_bf16 v[56:59], {vr(HB[t & 1])}, {vr(WO(1, t))}, {c1}")
    fold_tiles(52, 56)
    A("s_mov_b32 exec_lo, 0x00ff00ff")
    A("s_mov_b32 exec_hi, 0x00ff00ff")
    A(f"ds_write_b128 v15, v[52:55] offset:{L_GU}")
    A("s_mov_b64 exec, -1")
    A("s_waitcnt lgkmcnt(0)")
    A("s_barrier")
    A("s_cmp_lg_u32 s8, 0")
    A("s_cbranch_scc1 L_ypub")
    A("s_mov_b32 exec_hi, 0")
    for w in range(4):
        A(f"ds_read_b128 {vr(24 + 4 * w)}, v2 offset:{L_GU + 512 * w}")
    A("s_mov_b32 exec_lo, s75")
    A("s_waitcnt lgkmcnt(0)")
    for r in range(4):
        A(f"v_add_f32 v{24 + r}, v{24 + r}, v{28 + r}")
        A(f"v_add_f32 v{32 + r}, v{32 + r}, v{36 + r}")
    for r in range(4):
        A(f"v_add_f32 v{24 + r}, v{24 + r}, v{32 + r}")
    A("v_cvt_pk_bf16_f32 v20, v24, v25")
    A("v_cvt_pk_bf16_f32 v22, v26, v27")
    A("buffer_store_dwordx4 v[20:23], v2, s[48:51], s73 offen sc1")
    A("s_mov_b64 exec, -1")
    A("L_ypub:")
    stamp(5)
    A("s_cmp_ge_u32 s47, 28")
    A("s_cbranch_scc1 L_fin")
    A("s_barrier")
    A("s_barrier")
    for w in range(4):
        A(f"ds_read2st64_b32 {vr(24 + 2 * w, 2)}, v17 offset0:{2 * w} offset1:{2 * w + 1}")
    A(f"ds_read_b32 v60, v19 offset:{L_X1}")
    A(f"ds_read_b32 v61, v19 offset:{L_MD + 2688}")
    A(f"s_mov_b32 s13, {f2u(-LOG2E):#x}")
    A("s_waitcnt lgkmcnt(0)")
    A("v_add_f32 v24, v24, v26")
    A("v_add_f32 v25, v25, v27")
    A("v_add_f32 v28, v28, v30")
    A("v_add_f32 v29, v29, v31")
    A("v_add_f32 v24, v24, v28")
    A("v_add_f32 v25, v25, v29")
    rnd2(24, 25, 26)
    A("v_mul_f32 v24, s13, v24")
    A("v_exp_f32 v24, v24")
    A("v_add_f32 v24, 1.0, v24")
    A("v_rcp_f32 v24, v24")
    rnd1(24)
    A("v_mul_f32 v24, v24, v25")
    A("v_cvt_pk_bf16_f32 v40, v24, v24")
    quadswap(41, 40)
    abuild_bcast(HB[0], 40, 41, 0, 8)
    for t in range(8):
        if t + 1 < 8:
            abuild_bcast(HB[(t + 1) & 1], 40, 41, t + 1, 8)
        c0, c1 = ("0", "0") if t == 0 else ("v[52:55]", "v[56:59]")
        A(f"v_mfma_f32_16x16x32_bf16 v[52:55], {vr(HB[t & 1])}, {vr(WD(0, t))}, {c0}")
        A(f"v_mfma_f32_16x16x32_bf16 v[56:59], {vr(HB[t & 1])}, {vr(WD(1, t))}, {c1}")
    fold_tiles(52, 56)
    A("v_mov_b32 v20, v52")
    A("v_mov_b32 v22, v53")
    A("v_mov_b32_dpp v20, v54 row_ror:8 row_mask:0xf bank_mask:0xc")
    A("v_mov_b32_dpp v22, v55 row_ror:8 row_mask:0xf bank_mask:0xc")
    A("s_mov_b64 exec, s[78:79]")
    A("buffer_store_dwordx4 v[20:23], v16, s[48:51], s74 offen sc1")
    A("s_mov_b64 exec, -1")
    stamp(6)
    A("s_cmp_lg_u32 s8, 3")
    A("s_cbranch_scc1 L_fin")

    def issueC():
        for t in range(4):
            A(f"buffer_load_dwordx4 {vr(28 + 4 * t)}, v{18 if t < 3 else 5}, s[48:51], s{80 + t} offen sc1")
    poll("C", issueC, [28 + 4 * t for t in range(4)], 44)
    A("v_add_f32 v28, v28, v32")
    A("v_add_f32 v30, v30, v34")
    A("s_mov_b32 exec_hi, 0")
    A("v_add_f32 v36, v36, v40")
    A("v_add_f32 v38, v38, v42")
    A("s_mov_b32 exec_hi, -1")
    A("v_add_f32 v28, v28, v36")
    A("v_add_f32 v30, v30, v38")
    A("v_add_f32_dpp v28, v28, v28 row_ror:8 row_mask:0xf bank_mask:0xf")
    A("v_add_f32_dpp v30, v30, v30 row_ror:8 row_mask:0xf bank_mask:0xf")
    A("v_permlane16_swap_b32 v28, v30")
    A("v_add_f32 v28, v28, v30")
    A("v_mov_b32 v30, v28")
    A("v_permlane32_swap_b32 v28, v30")
    A("v_add_f32 v28, v28, v30")
    A("v_mov_b32 v30, v28")
    A("v_permlane16_swap_b32 v28, v30")
    rnd2(28, 30, 29)
    A("v_lshlrev_b32 v32, 16, v61"); A("v_and_b32 v33, s46, v61")
    A("v_mul_f32 v28, v28, v32")
    A("v_mul_f32 v30, v30, v33")
    rnd2(28, 30, 29)
    A("v_lshlrev_b32 v32, 16, v60"); A("v_and_b32 v33, s46, v60")
    A("v_add_f32 v28, v28, v32")
    A("v_add_f32 v30, v30, v33")
    A("v_cvt_pk_bf16_f32 v28, v28, v30")
    A("s_mov_b64 exec, 0xff")
    A("global_store_dword v6, v28, s[38:39]")
    A("s_cmp_lg_u32 s2, 0")
    A("s_cbranch_scc1 L_fin")
    A("s_mov_b64 exec, 1")
    A("v_mov_b32 v28, 0")
    A("v_mov_b32 v29, s44")
    A("buffer_store_dword v29, v28, s[48:51], 0 offen sc1")
    A("L_fin:")
    if dbg:
        A("s_cmp_lg_u32 s2, 0")
        A("s_cbranch_scc1 L_end")
        A("s_add_u32 s13, s3, 1")
        A("s_and_b32 s13, s13, 6")
        A("s_cmp_lg_u32 s13, 0")
        A("s_cbranch_scc1 L_end")
        A("s_mov_b64 exec, 1")
        A("s_memrealtime s[100:101]")
        A("s_lshr_b32 s13, s3, 2")
        A("s_lshl_b32 s13, s13, 5")
        A("s_waitcnt lgkmcnt(0)")
        A("v_mov_b32 v2, s13")
        for k in range(8):
            A(f"s_sub_u32 s14, s{86 + 2 * k}, s86")
            A(f"v_mov_b32 v{4 + k}, s14")
        for k in range(2):
            A(f"global_store_dwordx4 v2, {vr(4 + 4 * k)}, s[40:41] offset:{16 * k}")
    if stamps:
        A("s_mov_b64 exec, 1")
        A("s_memrealtime s[100:101]")
        A("s_lshl_b32 s13, s2, 3")
        A("s_add_u32 s13, s13, s3")
        A("s_lshl_b32 s13, s13, 6")
        A(f"s_add_u32 s42, s42, {512 << 20}")
        A("s_addc_u32 s43, s43, 0")
        A("s_waitcnt lgkmcnt(0)")
        A("v_mov_b32 v2, s13")
        for k in range(16):
            A(f"v_mov_b32 v{4 + k}, s{86 + k}")
        for k in range(4):
            A(f"global_store_dwordx4 v2, {vr(4 + 4 * k)}, s[42:43] offset:{16 * k}")
    A("L_end:")
    A("s_endpgm")
    A("L_codeend:")
    A(f".fill ({NPF * 1024} - (L_codeend - L_start)) / 4, 4, 0xbf800000")
    A('.section .rodata,"a"')
    A(".p2align 6")
    A(f".amdhsa_kernel {NAME}_kernel")
    A("  .amdhsa_next_free_vgpr 256")
    A("  .amdhsa_next_free_sgpr 102")
    A("  .amdhsa_accum_offset 256")
    A("  .amdhsa_group_segment_fixed_size 0")
    A("  .amdhsa_kernarg_size 112")
    A("  .amdhsa_user_sgpr_count 2")
    A("  .amdhsa_user_sgpr_kernarg_segment_ptr 1")
    A("  .amdhsa_system_sgpr_workgroup_id_x 1")
    A(".end_amdhsa_kernel")
    txt = A.finish()
    return txt, A.npad


if __name__ == "__main__":
    out = sys.argv[1]
    kw = {}
    for a in sys.argv[2:]:
        k, v = a.split("=")
        kw[k] = int(v) if v.lstrip("-").isdigit() else v.replace("+", " ")
    txt, npad = gen(**kw)
    open(out, "w").write(txt)
    print(out, "lines", txt.count("\n"), "pads", npad)
```

```python
import sys, os, struct
sys.path.insert(0, os.path.dirname(os.path.abspath(__file__)))
from asmlib import Asm

NAME = "adaLN_cond__sliding_block_cached__glu_gated_glu__decode"

WS_R = 0x800
WS_H, WS_ML, WS_G, WS_Y, WS_Q, WS_OA, WS_C = 0x1000, 0x5000, 0x10000, 0x80000, 0x100000, 0x200000, 0x300000
WS_SIZE = 0x400000
L_CNT1, L_CNT2, L_QF, L_TAG, L_CNT3, L_FL, L_ST1, L_MLL, L_ST2 = 0, 4, 8, 12, 16, 32, 64, 128, 192
L_QL, L_GU, L_X1, L_XR, L_MD, L_SC, L_OB, L_W2, L_W1 = 256, 1280, 3328, 4224, 5120, 8704, 16384, 24576, 40960
LDS_BYTES = L_W1 + 112 * 1024
SC_RS = 912
LOG2E = 1.4426950408889634
NPF = 24


def f2u(x):
    return struct.unpack("<I", struct.pack("<f", x))[0]


def gen(DK=8, RV=5, W=6, W3=6, stamps=0, wpol="", spol="nt", fpol="", ppol="", qpol="nt", rot=4096, pref=1, pref2=1, dbg=0,
        assist=1, pause=1, prio=3, NL=28, NE=24, NE2=8, qx=1, qpre=0, apre=1, aack=1, ypre=0, cpre=0, abl="", padto=0):
    A = Asm()
    NSLOT = 56
    slot = lambda n: 32 + 4 * n
    vr = lambda r, n=4: f"v[{r}:{r + n - 1}]"

    def stamp(i, mode=1):
        if ((stamps == 1 or dbg) and mode == 1) or (stamps == 2 and mode == 2) or (stamps == 2 and i == 0) or (padto and i == 0):
            A(f"s_memrealtime s[{86 + 2 * i}:{87 + 2 * i}]")

    def spin_fail():
        A("s_sub_u32 s84, s84, 1")
        A("s_cbranch_scc1 L_fin")

    def rnd2(a, b, t):
        A(f"v_cvt_pk_bf16_f32 v{t}, v{a}, v{b}")
        A(f"v_lshlrev_b32 v{a}, 16, v{t}")
        A(f"v_and_b32 v{b}, s46, v{t}")

    def rnd1(a):
        A(f"v_cvt_pk_bf16_f32 v{a}, v{a}, v{a}")
        A(f"v_and_b32 v{a}, s46, v{a}")

    def tagacc(bases, acc):
        for k, r in enumerate(bases):
            if k == 0:
                A(f"v_xor_b32 v{acc}, s45, v{r + 1}")
                A(f"v_xor_b32 v{acc + 1}, s45, v{r + 3}")
            else:
                A(f"v_bitop3_b32 v{acc}, v{acc}, v{r + 1}, s45 bitop3:0xf6")
                A(f"v_bitop3_b32 v{acc + 1}, v{acc + 1}, v{r + 3}, s45 bitop3:0xf6")
        A(f"v_or_b32 v{acc}, v{acc}, v{acc + 1}")
        A(f"v_cmp_ne_u32 vcc, 0, v{acc}")

    def poll(name, issue, bases, acc):
        if name.lower() in abl:
            return
        if name in abl:
            issue()
            A("s_waitcnt vmcnt(0)")
            return
        A(f"L_poll{name}:")
        issue()
        A("s_waitcnt vmcnt(0)")
        tagacc(bases, acc)
        A("s_mov_b64 exec, vcc")
        A(f"s_cbranch_execz L_got{name}")
        spin_fail()
        A(f"s_branch L_poll{name}")
        A(f"L_got{name}:")
        A("s_mov_b64 exec, -1")

    def ldsspin(name, off, n, va, vt):
        A(f"v_mov_b32 v{va}, 0")
        A(f"L_spin{name}:")
        A(f"ds_read_b32 v{vt}, v{va} offset:{off}")
        A("s_waitcnt lgkmcnt(0)")
        A(f"v_readfirstlane_b32 s13, v{vt}")
        A(f"s_cmp_ge_u32 s13, {n}")
        A(f"s_cbranch_scc1 L_spun{name}")
        spin_fail()
        A(f"s_branch L_spin{name}")
        A(f"L_spun{name}:")

    def ldsinc(off, va, vt):
        A(f"v_mov_b32 v{va}, 0")
        A(f"v_mov_b32 v{vt}, 1")
        A("s_mov_b64 exec, 1")
        A(f"ds_add_u32 v{va}, v{vt} offset:{off}")
        A("s_mov_b64 exec, -1")

    def masks(r0, t0):
        A(f"v_and_b32 v{t0}, 1, v1")
        A(f"v_lshlrev_b32 v{t0}, 4, v{t0}")
        A(f"v_mov_b32 v{t0 + 1}, 0xffff")
        A(f"v_lshlrev_b32 v{t0}, v{t0}, v{t0 + 1}")
        A(f"v_bfe_u32 v{t0 + 1}, v1, 1, 2")
        for r in range(4):
            A(f"v_cmp_eq_u32 vcc, {r}, v{t0 + 1}")
            A(f"v_cndmask_b32 v{r0 + r}, 0, v{t0}, vcc")

    def abuild_bcast(dst, P, Psw, x, m0):
        for r in range(4):
            src = P if (x >> 2) == (r >> 1) else Psw
            q = x & 3
            A(f"v_and_b32_dpp v{dst + r}, v{src}, v{m0 + r} quad_perm:[{q},{q},{q},{q}] row_mask:0xf bank_mask:0xf")

    def quadswap(dst, src):
        A(f"v_mov_b32_dpp v{dst}, v{src} row_shl:4 row_mask:0xf bank_mask:0x5")
        A(f"v_mov_b32_dpp v{dst}, v{src} row_shr:4 row_mask:0xf bank_mask:0xa")

    def fold_tiles(d0, d1):
        for r in range(4):
            A(f"v_permlane32_swap_b32 v{d0 + r}, v{d1 + r}")
        for r in range(4):
            A(f"v_add_f32_dpp v{d0 + r}, v{d1 + r}, v{d0 + r} row_ror:8 row_mask:0xf bank_mask:0xf")

    def srd(n, lo, size):
        A(f"s_mov_b32 s{n}, s{lo}"); A(f"s_mov_b32 s{n + 1}, s{lo + 1}"); A(f"s_mov_b32 s{n + 2}, {size}"); A(f"s_mov_b32 s{n + 3}, 0x20000")

    def code_prefetch(tag, vtmp):
        A("s_lshr_b32 s13, s2, 3")
        A(f"s_cmp_ge_u32 s13, {NPF}")
        A(f"s_cbranch_scc1 L_nopf{tag}")
        A("s_getpc_b64 s[14:15]")
        A(f"L_pc{tag}:")
        A(f"s_sub_u32 s14, s14, L_pc{tag}-L_start")
        A("s_subb_u32 s15, s15, 0")
        A("s_lshl_b32 s13, s13, 10")
        A(f"v_add_u32 v{vtmp}, s13, v2")
        A(f"global_load_dwordx4 v[60:63], v{vtmp}, s[14:15]")
        A(f"L_nopf{tag}:")

    hdr = open(os.path.join(os.path.dirname(os.path.abspath(__file__)), "header.txt")).read().rstrip("\n")
    A(hdr)
    A(f"; @launch grid=(256,1,1) block=(512,1,1) lds={LDS_BYTES}")
    A('.amdgcn_target "amdgcn-amd-amdhsa--gfx950"')
    A(".text")
    A(f".globl {NAME}_kernel")
    A(".p2align 8")
    A(f".type {NAME}_kernel,@function")
    A(f"{NAME}_kernel:")
    A("L_start:")
    A("s_cmp_ge_u32 s2, 256")
    A("s_cbranch_scc1 L_end")
    stamp(0)
    A("s_load_dwordx16 s[16:31], s[0:1], 0")
    A("s_load_dwordx8 s[32:39], s[0:1], 64")
    A("s_load_dwordx4 s[40:43], s[0:1], 96")
    A("v_lshrrev_b32 v2, 6, v0")
    A("v_and_b32 v1, 63, v0")
    A("v_readfirstlane_b32 s3, v2")
    A("s_lshr_b32 s4, s2, 5")
    A("s_bfe_u32 s5, s2, 0x20003")
    A("s_and_b32 s6, s2, 7")
    A("s_lshl_b32 s7, s6, 2")
    A("s_add_u32 s7, s7, s5")
    A("s_mul_i32 s47, s6, 3")
    A("s_add_u32 s47, s47, s5")
    A("s_mov_b32 s9, 0")
    A("s_mov_b32 s10, 0")
    A("s_cmp_lg_u32 s5, 3")
    A("s_cbranch_scc1 L_roled")
    A("s_lshr_b32 s47, s6, 1")
    A("s_add_u32 s47, s47, 24")
    A("s_and_b32 s13, s6, 1")
    A("s_lshr_b32 s14, s4, 2")
    A("s_cmp_eq_u32 s13, s14")
    A("s_cbranch_scc1 L_roled")
    A("s_mov_b32 s47, 28")
    A("s_and_b32 s13, s4, 3")
    A("s_mov_b32 s10, s6")
    A("s_cmp_eq_u32 s13, 1")
    A("s_cbranch_scc1 L_role2")
    A("s_cmp_eq_u32 s13, 0")
    A("s_cbranch_scc0 L_role2b")
    A("s_cmp_lt_u32 s6, 7")
    A("s_cselect_b32 s9, 1, 0")
    A("s_branch L_roled")
    A("L_role2b:")
    A("s_cmp_eq_u32 s13, 2")
    A("s_cbranch_scc0 L_roled")
    A("s_cmp_ge_u32 s6, 6")
    A("s_cbranch_scc1 L_roled")
    A("s_add_u32 s10, s6, 8")
    A("L_role2:")
    A("s_mov_b32 s9, 2")
    A("L_roled:")
    if "1" in abl:
        A("s_mov_b32 s9, 0")
    A("s_mov_b32 s46, 0xffff0000")
    A("s_mov_b32 s84, 0x20000")
    A("s_cmp_ge_u32 s3, 4")
    A("s_cbranch_scc1 L_helper")

    A("; ---------------- streamer ----------------")
    A("v_bfe_u32 v2, v1, 3, 1")
    A("v_lshlrev_b32 v2, 9, v2")
    A("v_and_b32 v3, 7, v1")
    A("v_lshl_add_u32 v2, v3, 4, v2")
    A("v_lshrrev_b32 v3, 4, v1")
    A("v_lshl_add_u32 v2, v3, 7, v2")
    A("s_lshl_b32 s68, s4, 3")
    A("s_add_u32 s68, s68, s6")
    A("s_lshl_b32 s68, s68, 22")
    A("s_lshl_b32 s69, s5, 18")
    A("s_add_u32 s68, s68, s69")
    A(f"s_add_u32 s68, s68, {6144 * 512}")
    A(f"s_mul_i32 s70, s2, {rot}")
    A("s_lshl_b32 s69, s3, 12")
    A("s_add_u32 s70, s70, s69")
    A("s_and_b32 s70, s70, 0x3ffff")
    A("s_mov_b32 s71, s70")
    A("s_mov_b32 s54, 0x40000")
    A("s_mov_b32 s55, 0x20000")
    A("s_waitcnt lgkmcnt(0)")
    A("s_add_u32 s52, s18, s68")
    A("s_addc_u32 s53, s19, 0")
    if pause:
        A("s_cmp_lg_u32 s9, 1")
        A("s_cbranch_scc1 L_go")
        A("s_barrier")
        ldsspin("P", L_CNT1, 4, 4, 5)
        A("L_go:")
    issued = [0]

    def k_issue(n, sl):
        A(f"buffer_load_dwordx4 {vr(slot(sl))}, v2, s[52:55], s70 offen offset:{(n % 4) * 1024} {spol}")
        if n % 4 == 3 and n < 63:
            A("s_add_u32 s70, s70, 0x4000")
            A("s_and_b32 s70, s70, 0x3ffff")
        issued[0] += 1
        return issued[0] - 1

    NVS = NL - 8
    assert NVS % 2 == 0 and NVS >= 4
    vslot = lambda n: (n % 8) if n < NVS else 8 + (n - NVS) % (2 * RV)

    def v_issue(n):
        A(f"buffer_load_dwordx4 {vr(slot(vslot(n)))}, v3, s[56:59], s71 offen offset:{[0, 256, 2048, 2304][n % 4]} {spol}")
        if n % 4 == 3 and n < 63:
            A("s_add_u32 s71, s71, 0x4000")
            A("s_and_b32 s71, s71, 0x3ffff")
        issued[0] += 1
        return issued[0] - 1

    def stage_issue(k):
        if k < 8:
            n = NSLOT + k
            off, va, sd, so = (n % 4) * 1024, 2, "s[52:55]", 70
        else:
            n = k - 8
            off, va, sd, so = [0, 256, 2048, 2304][n % 4], 3, "s[56:59]", 71
        A(f"s_add_u32 m0, s85, {1024 * k - off + 4096}")
        A(f"buffer_load_dwordx4 v{va}, {sd}, s{so} offen offset:{off} {spol} lds")
        if n % 4 == 3 and not (k < 8 and n == 63):
            A(f"s_add_u32 s{so}, s{so}, 0x4000")
            A(f"s_and_b32 s{so}, s{so}, 0x3ffff")
        issued[0] += 1
        return issued[0] - 1

    def stage_read(k, sl):
        A(f"ds_read_b128 {vr(slot(sl))}, v30 offset:{1024 * k}")

    def wait_for(idx):
        A(f"s_waitcnt vmcnt({min(63, issued[0] - 1 - idx)})")

    kidx, vidx = {}, {}
    for n in range(DK):
        kidx[n] = k_issue(n, n)
    if pause:
        A("s_cmp_eq_u32 s9, 1")
        A("s_cbranch_scc1 L_nob0")
    A("s_barrier")
    A("L_nob0:")
    A("s_add_u32 s56, s20, s68")
    A("s_addc_u32 s57, s21, 0")
    A("s_mov_b32 s58, 0x40000")
    A("s_mov_b32 s59, 0x20000")
    A("v_and_b32 v4, 1, v3")
    A("v_lshlrev_b32 v4, 10, v4")
    A("v_lshrrev_b32 v5, 1, v3")
    A("v_lshl_add_u32 v4, v5, 9, v4")
    A("v_and_b32 v5, 15, v1")
    A("v_lshl_add_u32 v30, v5, 4, v4")
    A("v_bfe_u32 v4, v1, 3, 1")
    A("v_and_b32 v5, 7, v1")
    A("v_lshlrev_b32 v5, 4, v5")
    A("v_lshl_add_u32 v6, v4, 5, v3")
    A("v_mul_u32_u24 v6, 3584, v6")
    A("v_add_u32 v28, v6, v5")
    A("v_mul_u32_u24 v6, 24, v4")
    A("v_add3_u32 v6, v6, v3, 64")
    A("v_mul_u32_u24 v6, 3584, v6")
    A("v_add_u32 v29, v6, v5")
    A("v_mov_b32 v3, v30")
    masks(16, 4)
    A("s_cmp_lt_u32 s47, 28")
    A(f"s_cselect_b32 s62, {448 * 3584}, 0")
    A("s_mov_b32 s66, s62")
    A("s_mov_b32 s60, s28"); A("s_mov_b32 s61, s29"); A("s_mov_b32 s63, 0x20000")
    A("s_mov_b32 s64, s30"); A("s_mov_b32 s65, s31"); A("s_mov_b32 s67, 0x20000")
    srd(48, 42, WS_SIZE)
    A(f"s_mul_i32 s72, s3, {112 * 3584}")
    A("s_lshl_b32 s69, s47, 7")
    A("s_add_u32 s72, s72, s69")
    A("s_mov_b32 s73, s72")
    A("s_mov_b32 s80, 0xcccccccc"); A("s_mov_b32 s81, 0xcccccccc")
    A("s_mov_b32 s82, 0xf0f0f0f0"); A("s_mov_b32 s83, 0xf0f0f0f0")
    A("v_lshlrev_b32 v31, 4, v1")
    A(f"s_mul_i32 s85, s3, {NL * 1024}")
    A(f"s_add_u32 s85, s85, {L_W1}")
    A("v_add_u32 v30, s85, v31")
    A("s_sub_u32 s85, s85, 4096")
    for n in range(DK, NSLOT):
        A(f"s_waitcnt vmcnt({DK - 1})")
        kidx[n] = k_issue(n, n)
    A("s_cmp_lg_u32 s5, 3")
    A("s_cbranch_scc1 L_stagefree")
    ldsspin("S", L_CNT3, 4, 4, 5)
    A("L_stagefree:")
    sidx = {}
    for k in range(NL):
        A(f"s_waitcnt vmcnt({DK - 1})")
        sidx[k] = stage_issue(k)
    stamp(1)
    ldsspin("Q", L_QF, 1, 4, 5)
    A(f"ds_read_b32 v8, v4 offset:{L_TAG}")
    A(f"ds_read_b128 v[4:7], v31 offset:{L_QL}")
    A("s_mov_b32 vcc_lo, 0xaaaaaaaa")
    A("s_mov_b32 vcc_hi, 0xaaaaaaaa")
    A("s_waitcnt lgkmcnt(0)")
    A("v_readfirstlane_b32 s45, v8")
    stamp(2)
    kslot = lambda n: n if n < NSLOT else n - NSLOT
    dreg = lambda n: 20 if n == 0 else slot(kslot(n - 1))
    nv = NVS
    for m in range(8):
        if m == 7:
            A("s_waitcnt lgkmcnt(0)")
        for n in range(8 * m, 8 * m + 8):
            A(f"v_mfma_f32_16x16x32_bf16 {vr(dreg(n))}, {vr(slot(kslot(n)))}, v[4:7], 0")
        D = [dreg(n) for n in range(8 * m, 8 * m + 8)]
        for d in D:
            A(f"v_cndmask_b32 v{d}, v{d}, v{d + 1}, vcc")
            A(f"v_cndmask_b32 v{d + 2}, v{d + 2}, v{d + 3}, vcc")
        for d in D:
            A(f"v_cndmask_b32 v{d}, v{d}, v{d + 2}, s[80:81]")
        for p in range(4):
            A(f"v_permlane16_swap_b32 v{D[2 * p]}, v{D[2 * p + 1]}")
        for p in range(4):
            A(f"v_cndmask_b32 v{D[2 * p]}, v{D[2 * p]}, v{D[2 * p + 1]}, s[82:83]")
        y = [D[0], D[2], D[4], D[6]]
        z0, z1 = D[0] + 1, D[2] + 1
        A(f"v_add_f32_dpp v{z0}, v{y[0]}, v{y[0]} row_shl:4 row_mask:0xf bank_mask:0x5")
        A(f"v_add_f32_dpp v{z1}, v{y[1]}, v{y[1]} row_shl:4 row_mask:0xf bank_mask:0x5")
        A(f"v_add_f32_dpp v{z0}, v{y[2]}, v{y[2]} row_shr:4 row_mask:0xf bank_mask:0xa")
        A(f"v_add_f32_dpp v{z1}, v{y[3]}, v{y[3]} row_shr:4 row_mask:0xf bank_mask:0xa")
        t0, t1 = D[0] + 2, D[2] + 2
        A(f"v_cndmask_b32 v{t1}, v{z1}, v{z0}, s[80:81]")
        A(f"v_cndmask_b32 v{t0}, v{z0}, v{z1}, s[80:81]")
        cnt = {1: 4, 2: 3, 3: 2, 4: 2, 5: 1}.get(m, 0)
        cnt = min(cnt, NVS + 2 * RV - nv) if m < 5 else (NVS + 2 * RV - nv if m == 5 else 0)
        pend = [nv + c for c in range(cnt)]
        nv += cnt
        A(f"v_add_f32_dpp v{t0}, v{t1}, v{t0} quad_perm:[2,3,0,1] row_mask:0xf bank_mask:0xf")
        A(f"v_add_f32_dpp v{8 + m}, v{t0}, v{t0} quad_perm:[1,0,3,2] row_mask:0xf bank_mask:0xf")
        rnd1(8 + m)
        for n in pend:
            A(f"s_waitcnt vmcnt({max(DK, 2 * RV) - 1})")
            vidx[n] = v_issue(n)
        if m == 5:
            wait_for(sidx[7])
            for k in range(8):
                stage_read(k, k)
    assert nv == NVS + 2 * RV
    wait_for(sidx[NL - 1])
    for n in range(4):
        stage_read(8 + n, vslot(n))
    A("v_max3_f32 v20, v8, v9, v10")
    A("v_max3_f32 v21, v11, v12, v13")
    A("v_max3_f32 v20, v20, v14, v15")
    A("v_max_f32 v20, v20, v21")
    A("v_max_f32_dpp v20, v20, v20 quad_perm:[2,3,0,1] row_mask:0xf bank_mask:0xf")
    A("v_max_f32_dpp v20, v20, v20 row_half_mirror row_mask:0xf bank_mask:0xf")
    A("v_mov_b32 v21, v20")
    A("v_permlane16_swap_b32 v20, v21")
    A("v_max_f32 v20, v20, v21")
    A("v_mov_b32 v21, v20")
    A("v_permlane32_swap_b32 v20, v21")
    A("v_max_f32 v20, v20, v21")
    A(f"s_mov_b32 s69, {f2u(LOG2E / 16):#x}")
    A("v_mul_f32 v22, s69, v20")
    for m in range(8):
        A(f"v_fma_f32 v{8 + m}, v{8 + m}, s69, -v22")
    for m in range(8):
        A(f"v_exp_f32 v{8 + m}, v{8 + m}")
    A("v_add_f32 v21, v8, v9")
    A("v_add_f32 v22, v10, v11")
    A("v_add_f32 v23, v12, v13")
    A("v_add_f32 v24, v14, v15")
    A("v_add_f32 v21, v21, v22")
    A("v_add_f32 v23, v23, v24")
    A("v_add_f32 v21, v21, v23")
    for m in range(8):
        A(f"v_cvt_pk_bf16_f32 v{8 + m}, v{8 + m}, v{8 + m}")
    A("v_add_f32_dpp v21, v21, v21 quad_perm:[2,3,0,1] row_mask:0xf bank_mask:0xf")
    A("v_add_f32_dpp v21, v21, v21 row_half_mirror row_mask:0xf bank_mask:0xf")
    A("v_mov_b32 v22, v21")
    A("v_permlane16_swap_b32 v21, v22")
    A("v_add_f32 v21, v21, v22")
    A("v_mov_b32 v22, v21")
    A("v_permlane32_swap_b32 v21, v22")
    A("v_add_f32 v21, v21, v22")
    A("s_lshl_b32 s69, s3, 4")
    A("v_add_u32 v22, s69, v1")
    A("v_mov_b32 v23, 0")
    A("v_mov_b32 v24, 1")
    A("s_mov_b64 exec, 0x101")
    A(f"ds_write_b64 v22, v[20:21] offset:{L_MLL}")
    A("s_mov_b64 exec, 1")
    A(f"ds_add_u32 v23, v24 offset:{L_CNT2}")
    A("s_mov_b64 exec, -1")
    stamp(3)
    AB = [slot(48), slot(49)]

    def pv_abuild(gm):
        m, x = gm >> 2, gm & 3
        for r in range(4):
            sh = 2 * (x - r)
            d = AB[gm & 1] + r
            if sh == 0:
                A(f"v_and_b32 v{d}, v{8 + m}, v{16 + r}")
            elif sh > 0:
                A(f"v_and_b32_dpp v{d}, v{8 + m}, v{16 + r} row_shl:{sh} row_mask:0xf bank_mask:0xf bound_ctrl:0")
            else:
                A(f"v_and_b32_dpp v{d}, v{8 + m}, v{16 + r} row_shr:{-sh} row_mask:0xf bank_mask:0xf bound_ctrl:0")

    wcount = [0]

    def gu_issue():
        if "f" in abl:
            wcount[0] += 1
            return
        n = wcount[0]
        t, mat = n >> 1, n & 1
        A(f"buffer_load_dwordx4 {vr(slot(20 + n))}, v{28 if t < 8 else 29}, s[{60 + 4 * mat}:{63 + 4 * mat}], s72 offen {fpol}")
        if mat == 1:
            if t == 7:
                A("s_mov_b32 s72, s73")
            elif t < 13:
                A(f"s_add_u32 s72, s72, {4 * 3584}")
        issued[0] += 1
        wcount[0] += 1

    last_issue = 32 - RV
    extra = 28 - last_issue
    pv_abuild(0)
    for gm in range(32):
        if gm + 1 < 32:
            pv_abuild(gm + 1)
        if 2 * gm < NVS:
            nxt = 2 * gm + 4 < NVS
            if nxt:
                stage_read(8 + 2 * gm + 4, vslot(2 * gm + 4))
                stage_read(8 + 2 * gm + 5, vslot(2 * gm + 5))
            later = (2 if 2 * gm + 2 < NVS else 0) + (2 if nxt else 0)
            A(f"s_waitcnt lgkmcnt({0 if (stamps or dbg) and gm == 0 else later})")
        else:
            wait_for(vidx[2 * gm + 1])
        s0, s1 = slot(vslot(2 * gm)), slot(vslot(2 * gm + 1))
        c0, c1 = ("0", "0") if gm == 0 else ("v[20:23]", "v[24:27]")
        A(f"v_mfma_f32_16x16x32_bf16 v[20:23], {vr(AB[gm & 1])}, {vr(s0)}, {c0}")
        A(f"v_mfma_f32_16x16x32_bf16 v[24:27], {vr(AB[gm & 1])}, {vr(s1)}, {c1}")
        if wcount[0] < 28 and gm < last_issue:
            gu_issue()
            if gm < extra:
                gu_issue()
        if nv < 64 and 2 * gm >= NVS:
            vidx[nv] = v_issue(nv); nv += 1
            vidx[nv] = v_issue(nv); nv += 1
        if gm == last_issue:
            assert wcount[0] == 28
            A("v_lshrrev_b32 v4, 4, v1")
            A("v_lshlrev_b32 v4, 11, v4")
            A("v_and_b32 v5, 15, v1")
            A("v_lshl_add_u32 v28, v5, 4, v4")
            A("v_bfe_u32 v5, v1, 3, 1")
            A("v_mul_u32_u24 v5, 6, v5")
            A("v_and_b32 v6, 7, v1")
            A("v_min_u32 v7, 5, v6")
            A("v_add3_u32 v5, v5, v7, 16")
            A("v_lshl_add_u32 v29, v5, 4, v4")
            A("s_mul_i32 s69, s3, 112")
            A("v_lshrrev_b32 v4, 4, v1")
            A("v_add_u32 v4, s69, v4")
            A("v_lshl_add_u32 v5, v5, 2, v4")
            A("v_lshlrev_b32 v253, 1, v5")
            A("v_and_b32 v5, 15, v1")
            A("v_lshl_add_u32 v5, v5, 2, v4")
            A("v_lshlrev_b32 v252, 1, v5")
            A("v_cmp_gt_u32 s[74:75], 6, v6")
            A("v_bfe_u32 v4, v1, 2, 1")
            A("v_lshlrev_b32 v4, 4, v4")
            A("v_mov_b32 v5, 0x3f80")
            A("v_lshlrev_b32 v4, v4, v5")
            A("v_and_b32 v5, 11, v1")
            A("v_cmp_eq_u32 vcc, 0, v5")
            A("v_cndmask_b32 v232, 0, v4, vcc")
            A("v_cmp_eq_u32 vcc, 8, v5")
            A("v_cndmask_b32 v234, 0, v4, vcc")
            A("v_cmp_eq_u32 vcc, 1, v5")
            A("v_cndmask_b32 v236, 0, v4, vcc")
            A("v_cmp_eq_u32 vcc, 9, v5")
            A("v_cndmask_b32 v238, 0, v4, vcc")
            for r in (233, 235, 237, 239):
                A(f"v_mov_b32 v{r}, 0")
            for r in range(244, 252):
                A(f"v_mov_b32 v{r}, 0")
            A("s_lshl_b32 s76, s4, 14")
            A("s_mul_i32 s69, s3, 448")
            A("s_add_u32 s76, s76, s69")
            A(f"s_add_u32 s76, s76, {WS_Y}")
            A("s_add_u32 s77, s76, 0x2000")
            A("s_lshl_b32 s69, s3, 11")
            A("v_add_u32 v30, s69, v31")
            A("v_lshrrev_b32 v4, 5, v1")
            A("v_lshlrev_b32 v4, 8, v4")
            A("v_and_b32 v5, 7, v1")
            A("v_lshl_add_u32 v4, v5, 5, v4")
            A("v_bfe_u32 v5, v1, 4, 1")
            A("v_lshl_add_u32 v4, v5, 4, v4")
            A("s_lshl_b32 s69, s3, 9")
            A("v_add_u32 v254, s69, v4")
            A("s_lshl_b32 s69, s3, 3")
            A("v_mov_b32 v255, s69")
    A(f"ds_write_b128 v30, v[20:23] offset:{L_OB}")
    A(f"ds_write_b128 v30, v[24:27] offset:{L_OB + 1024}")
    A("s_waitcnt lgkmcnt(0)")
    A("s_barrier")
    stamp(4)
    A("s_cmp_ge_u32 s47, 28")
    A("s_cbranch_scc1 L_fin")
    for k, (va, off) in enumerate([(252, L_XR), (253, L_XR), (252, L_MD), (253, L_MD), (252, L_MD + 896), (253, L_MD + 896), (252, L_MD + 1792), (253, L_MD + 1792)]):
        A(f"ds_read_u16_d16_hi v{244 + k}, v{va} offset:{off}")
    A("s_waitcnt lgkmcnt(0)")
    A("v_add_f32 v250, 1.0, v250")
    A("v_add_f32 v251, 1.0, v251")
    rnd2(250, 251, 4)
    A("s_barrier")

    def issueY():
        for U in range(2):
            A(f"buffer_load_dwordx4 {vr(slot(2 * U))}, v28, s[48:51], s{76 + U} offen sc1")
            A(f"buffer_load_dwordx4 {vr(slot(2 * U + 1))}, v29, s[48:51], s{76 + U} offen sc1")
    poll("Y", issueY, [slot(n) for n in range(4)], 4)
    for U in range(2):
        A(f"v_mfma_f32_16x16x32_bf16 v[240:243], v[232:235], {vr(slot(2 * U))}, {'0' if U == 0 else 'v[240:243]'}")
        A(f"v_mfma_f32_16x16x32_bf16 v[240:243], v[236:239], {vr(slot(2 * U + 1))}, v[240:243]")
    stamp(5)
    rnd2(240, 241, 4)
    A("v_mul_f32 v240, v246, v240")
    A("v_mul_f32 v241, v247, v241")
    rnd2(240, 241, 4)
    A("v_add_f32 v240, v244, v240")
    A("v_add_f32 v241, v245, v241")
    rnd2(240, 241, 4)
    A("v_cndmask_b32 v5, 0, v241, s[74:75]")
    A("v_add_f32 v6, v240, v5")
    A("v_mul_f32 v7, v240, v240")
    A("v_fmac_f32 v7, v5, v5")
    A(f"ds_write_b16 v252, v4 offset:{L_X1}")
    A(f"ds_write_b16_d16_hi v253, v4 offset:{L_X1}")
    for ctl in ("quad_perm:[1,0,3,2] row_mask:0xf", "quad_perm:[2,3,0,1] row_mask:0xf", "row_half_mirror row_mask:0xf", "row_mirror row_mask:0xf",
                "row_bcast:15 row_mask:0xa", "row_bcast:31 row_mask:0xc"):
        A(f"v_add_f32_dpp v6, v6, v6 {ctl} bank_mask:0xf")
        A(f"v_add_f32_dpp v7, v7, v7 {ctl} bank_mask:0xf")
    A("s_mov_b32 exec_lo, 0")
    A("s_mov_b32 exec_hi, 0x80000000")
    A(f"ds_write_b64 v255, v[6:7] offset:{L_ST2}")
    A("s_mov_b64 exec, -1")
    A("v_mov_b32 v5, 0")
    A("s_waitcnt lgkmcnt(0)")
    A("s_barrier")
    A(f"ds_read_b128 v[8:11], v5 offset:{L_ST2}")
    A(f"ds_read_b128 v[12:15], v5 offset:{L_ST2 + 16}")
    A(f"s_mov_b32 s69, {f2u(1.0 / 448):#x}")
    A("s_waitcnt lgkmcnt(0)")
    A("v_add_f32 v8, v8, v10")
    A("v_add_f32 v9, v9, v11")
    A("v_add_f32 v12, v12, v14")
    A("v_add_f32 v13, v13, v15")
    A("v_add_f32 v8, v8, v12")
    A("v_add_f32 v9, v9, v13")
    A("v_mul_f32 v8, s69, v8")
    A("v_mul_f32 v9, s69, v9")
    A("v_fma_f32 v9, -v8, v8, v9")
    A("v_max_f32 v9, 0, v9")
    rnd2(8, 9, 4)
    A(f"v_add_f32 v9, {f2u(1e-5):#x}, v9")
    A("v_sub_f32 v240, v240, v8")
    A("v_sub_f32 v241, v241, v8")
    rnd1(9)
    rnd2(240, 241, 4)
    A("v_sqrt_f32 v9, v9")
    rnd1(9)
    A("v_rcp_f32 v9, v9")
    A("v_mul_f32 v240, v240, v9")
    A("v_mul_f32 v241, v241, v9")
    rnd2(240, 241, 4)
    A("v_mul_f32 v240, v240, v250")
    A("v_mul_f32 v241, v241, v251")
    rnd2(240, 241, 4)
    A("v_add_f32 v240, v240, v248")
    A("v_add_f32 v241, v241, v249")
    A("v_cvt_pk_bf16_f32 v8, v240, v240")
    A("v_cvt_pk_bf16_f32 v10, v241, v241")
    quadswap(9, 8)
    quadswap(11, 10)
    abuild_bcast(AB[0], 8, 9, 0, 16)
    for t in range(14):
        if t + 1 < 14:
            t1 = t + 1
            abuild_bcast(AB[t1 & 1], 8 if t1 < 8 else 10, 9 if t1 < 8 else 11, t1 if t1 < 8 else t1 - 8, 16)
        c0, c1 = ("0", "0") if t == 0 else ("v[20:23]", "v[24:27]")
        A(f"v_mfma_f32_16x16x32_bf16 v[20:23], {vr(AB[t & 1])}, {vr(slot(20 + 2 * t))}, {c0}")
        A(f"v_mfma_f32_16x16x32_bf16 v[24:27], {vr(AB[t & 1])}, {vr(slot(21 + 2 * t))}, {c1}")
    fold_tiles(20, 24)
    A("s_mov_b32 exec_lo, 0x00ff00ff")
    A("s_mov_b32 exec_hi, 0x00ff00ff")
    A(f"ds_write_b128 v254, v[20:23] offset:{L_GU}")
    A("s_mov_b64 exec, -1")
    A("s_waitcnt lgkmcnt(0)")
    A("s_barrier")
    stamp(6)
    A("s_branch L_fin")

    def w2_issue():
        A(f"s_add_u32 s13, s6, {qx}")
        A("s_and_b32 s13, s13, 7")
        A("s_lshl_b32 s13, s13, 10")
        A("s_lshl_b32 s14, s4, 7")
        A("s_add_u32 s13, s13, s14")
        A(f"s_mul_i32 s14, s8, {112 * 8192}")
        A("s_add_u32 s13, s13, s14")
        A(f"s_mul_i32 s14, s8, {14 * 1024}")
        A(f"s_add_u32 s14, s14, {L_W1}")
        for t in range(14):
            A(f"s_add_u32 m0, s14, {1024 * t}")
            A(f"buffer_load_dwordx4 v7, s[56:59], s13 offen {qpol} lds")
            if t < 13:
                A(f"s_add_u32 s13, s13, {8 * 8192}")

    hb = [0]

    def hbar():
        hb[0] += 1
        ldsinc(L_CNT1, 16, 17)
        A("s_add_u32 s85, s85, 4")
        A(f"L_hb{hb[0]}:")
        A(f"ds_read_b32 v17, v16 offset:{L_CNT1}")
        A("s_waitcnt lgkmcnt(0)")
        A("v_readfirstlane_b32 s13, v17")
        A("s_cmp_ge_u32 s13, s85")
        A(f"s_cbranch_scc1 L_hbd{hb[0]}")
        spin_fail()
        A(f"s_branch L_hb{hb[0]}")
        A(f"L_hbd{hb[0]}:")

    def tag_from_epoch():
        A("s_add_u32 s44, s44, 1")
        A("s_and_b32 s45, s44, 0xbfffbfff")

    def q_setup():
        A("v_bfe_u32 v52, v1, 3, 1")
        A("v_lshlrev_b32 v52, 13, v52")
        A("v_lshl_add_u32 v52, v3, 11, v52")
        A("v_bfe_u32 v53, v1, 1, 2")
        A("v_lshl_add_u32 v52, v53, 9, v52")
        A("v_and_b32 v53, 1, v1")
        A("v_lshl_add_u32 v52, v53, 5, v52")
        A("s_lshl_b32 s68, s6, 14")
        A("s_lshl_b32 s13, s4, 6")
        A("s_add_u32 s68, s68, s13")
        A(f"s_add_u32 s68, s68, {WS_Q}")

    WO = lambda tau, t: 64 + 4 * (16 * tau + t)
    WD = lambda tau, t: 192 + 4 * (8 * tau + t)

    def wts_setup():
        srd(60, 24, 4096 * 896)
        A("s_cmp_lt_u32 s47, 28")
        A(f"s_cselect_b32 s66, {1792 * 896}, 0")
        A("s_mov_b32 s64, s32"); A("s_mov_b32 s65, s33"); A("s_mov_b32 s67, 0x20000")
        A("s_mov_b32 s72, s24"); A("s_mov_b32 s73, s25"); A("s_mov_b32 s75, 0x20000")
        A("s_cmp_lt_u32 s5, 3")
        A(f"s_cselect_b32 s74, {4096 * 896}, 0")
        A("v_bfe_u32 v56, v1, 3, 1")
        A("v_and_b32 v57, 7, v1")
        A("v_lshrrev_b32 v58, 1, v3")
        A("v_lshlrev_b32 v58, 8, v58")
        A("v_and_b32 v59, 1, v3")
        A("v_lshl_add_u32 v58, v59, 5, v58")
        A("v_lshl_add_u32 v58, v56, 4, v58")
        A("v_mul_u32_u24 v58, 896, v58")
        A("v_lshl_add_u32 v58, v57, 4, v58")
        A("v_lshl_add_u32 v59, v56, 2, v3")
        A("v_mul_u32_u24 v59, 896, v59")
        A("v_lshl_add_u32 v59, v57, 4, v59")
        A("s_lshl_b32 s76, s6, 3")
        A("s_add_u32 s76, s76, s8")
        A(f"s_mul_i32 s76, s76, {64 * 896}")
        A("s_lshl_b32 s13, s5, 8")
        A("s_add_u32 s76, s76, s13")
        A(f"s_mul_i32 s77, s47, {64 * 896}")
        A("s_lshl_b32 s13, s8, 8")
        A("s_add_u32 s77, s77, s13")

    def wts_issue(items, win, free=0):
        if "w" in abl:
            return
        for n, (kind, tau, t) in enumerate(items):
            if kind == "o":
                A(f"s_add_u32 s13, s76, {(t >> 2) * 3584}")
            else:
                A(f"s_add_u32 s13, s77, {t * 7168}")
            if n >= free:
                A(f"s_waitcnt vmcnt({win - 1})")
            if kind == "o":
                A(f"buffer_load_dwordx4 {vr(WO(tau, t))}, v58, s[{60 if tau == 0 else 72}:{63 if tau == 0 else 75}], s13 offen offset:{(t % 4) * 896 + tau * 128} {wpol}")
            else:
                A(f"buffer_load_dwordx4 {vr(WD(tau, t))}, v59, s[64:67], s13 offen offset:{tau * 128} {wpol}")

    A("; ---------------- helper ----------------")
    A("L_helper:")
    A("s_sub_u32 s8, s3, 4")
    A("v_lshlrev_b32 v2, 4, v1")
    A("v_lshrrev_b32 v3, 4, v1")
    A("v_and_b32 v4, 15, v1")
    A("v_bfe_u32 v5, v1, 1, 3")
    A("v_and_b32 v6, 1, v1")
    A("v_lshlrev_b32 v6, 4, v6")
    A("v_lshl_add_u32 v6, v3, 5, v6")
    A("v_lshl_add_u32 v7, v5, 13, v6")
    A("v_mul_u32_u24 v5, 5376, v5")
    A("v_add_u32 v6, v5, v6")
    A("s_mov_b32 s85, 0")
    A("s_cmp_lg_u32 s5, 3")
    A("s_cbranch_scc1 L_noprio")
    if prio:
        A(f"s_setprio {prio}")
    A("L_noprio:")
    A("s_mov_b32 s50, %d" % WS_SIZE); A("s_mov_b32 s51, 0x20000")
    A("s_mov_b32 s54, %d" % (448 * 5376)); A("s_mov_b32 s55, 0x20000")
    A("s_mov_b32 s58, %d" % (448 * 8192)); A("s_mov_b32 s59, 0x20000")
    A("v_mov_b32 v8, 0"); A("v_mov_b32 v9, 0"); A("v_mov_b32 v10, 0"); A("v_mov_b32 v11, 0")
    A(f"ds_write_b128 v8, v[8:11] offset:{L_CNT1}")
    A(f"ds_write_b32 v8, v8 offset:{L_CNT3}")
    A("s_waitcnt lgkmcnt(0)")
    A("s_load_dword s44, s[42:43], 0")
    A("s_mov_b32 s48, s42"); A("s_mov_b32 s49, s43")
    A("s_mov_b32 s52, s36"); A("s_mov_b32 s53, s37")
    A("s_mov_b32 s56, s22"); A("s_mov_b32 s57, s23")
    A("s_cmp_lg_u32 s9, 0")
    A("s_cbranch_scc1 L_p1")
    A("s_cmp_lg_u32 s8, 2")
    A("s_cbranch_scc1 L_np2")
    if assist:
        A("s_lshr_b32 s13, s2, 3")
        A("s_mul_i32 s13, s13, 14")
        A("v_lshrrev_b32 v16, 1, v1")
        A("v_add_u32 v16, s13, v16")
        A("v_mul_u32_u24 v16, 5376, v16")
        A("v_and_b32 v17, 1, v1")
        A("v_mul_u32_u24 v17, 896, v17")
        A("s_lshl_b32 s13, s6, 7")
        A("v_add3_u32 v16, v16, v17, s13")
        A("s_mov_b64 exec, 0xfffffff")
        A("buffer_load_dword v60, v16, s[52:55], 0 offen")
        A("s_mov_b64 exec, -1")
    if pref:
        code_prefetch("a", 16)
    A("L_np2:")
    A("s_barrier")
    A("s_cmp_eq_u32 s5, 3")
    A("s_cbranch_scc1 L_p2a")
    A("s_cmp_lg_u32 s8, 3")
    A("s_cbranch_scc1 L_wts")
    items3 = [("d", 0, t) for t in range(8)] + [("o", 1, t) for t in range(16)] + [("o", 0, t) for t in range(16)]
    q_setup()
    if qpre:
        A("buffer_load_dwordx4 v[32:35], v52, s[48:51], s68 offen sc1")
    wts_setup()
    wts_issue(items3[:NE], W3, free=W3)
    A("s_waitcnt lgkmcnt(0)")
    tag_from_epoch()
    A("s_mov_b32 s10, 0")
    A("s_branch L_q")
    A("L_p2a:")
    w2_issue()
    A("s_waitcnt lgkmcnt(0)")
    tag_from_epoch()
    A("s_waitcnt vmcnt(0)")
    A("s_branch L_p2")
    A("L_p1:")
    A("s_mul_i32 s13, s8, 1792")
    A("v_add_u32 v5, s13, v2")
    A("global_load_dwordx4 v[8:11], v5, s[34:35]")
    A("s_mov_b32 exec_hi, 0xffff")
    A("global_load_dwordx4 v[12:15], v5, s[34:35] offset:1024")
    A("s_mov_b32 exec_hi, -1")
    A("v_and_b32 v16, 7, v1")
    A("v_mul_u32_u24 v16, 896, v16")
    A("v_lshl_add_u32 v16, v3, 3, v16")
    A("s_lshl_b32 s13, s6, 7")
    A("s_lshl_b32 s14, s8, 5")
    A("s_add_u32 s13, s13, s14")
    A("s_cmp_eq_u32 s9, 1")
    A("s_cselect_b32 s13, s13, 0")
    A("v_add_u32 v16, s13, v16")
    A("global_load_dwordx2 v[18:19], v16, s[16:17]")
    A("v_lshrrev_b32 v16, 3, v1")
    A("v_mul_u32_u24 v16, 896, v16")
    A("v_and_b32 v17, 7, v1")
    A("v_lshl_add_u32 v16, v17, 4, v16")
    A("s_cmp_lg_u32 s8, 2")
    A("s_cbranch_scc1 L_nox")
    for t in range(7):
        A(f"global_load_dwordx4 {vr(64 + 4 * t)}, v16, s[16:17] offset:{128 * t}")
    A("L_nox:")
    A("s_barrier")
    A("s_lshl_b32 s11, s10, 7")
    A("s_lshl_b32 s13, s10, 8")
    A("s_add_u32 s13, s13, 1792")
    A("s_movk_i32 s12, 128")
    A("s_cmp_eq_u32 s9, 1")
    A("s_cselect_b32 s11, s11, s13")
    A("s_cselect_b32 s12, 896, s12")
    A(f"s_mul_i32 s13, s8, {14 * 8 * 5376}")
    A("s_add_u32 s13, s13, s11")
    A("s_add_u32 s14, s13, s12")
    A(f"s_mul_i32 s15, s8, {14 * 1024}")
    A(f"s_add_u32 s15, s15, {L_W1}")
    for t in range(14):
        A("s_mov_b32 m0, s15")
        A(f"buffer_load_dwordx4 v6, s[52:55], s13 offen {ppol} lds")
        A(f"s_add_u32 m0, s15, {56 * 1024}")
        A(f"buffer_load_dwordx4 v6, s[52:55], s14 offen {ppol} lds")
        if t < 13:
            A(f"s_add_u32 s13, s13, {8 * 5376}")
            A(f"s_add_u32 s14, s14, {8 * 5376}")
            A("s_add_u32 s15, s15, 1024")
    A("s_waitcnt vmcnt(28)")
    stamp(1, 2)
    A(f"s_mov_b32 s13, {f2u(-LOG2E):#x}")
    for k in range(8):
        d = 8 + k
        a, b_ = 20 + 4 * k, 21 + 4 * k
        A(f"v_lshlrev_b32 v{a}, 16, v{d}")
        A(f"v_and_b32 v{b_}, s46, v{d}")
        A(f"v_mul_f32 v{a + 2}, s13, v{a}")
        A(f"v_mul_f32 v{a + 3}, s13, v{b_}")
        A(f"v_exp_f32 v{a + 2}, v{a + 2}")
        A(f"v_exp_f32 v{a + 3}, v{a + 3}")
    for k in range(8):
        a = 20 + 4 * k
        A(f"v_add_f32 v{a + 2}, 1.0, v{a + 2}")
        A(f"v_add_f32 v{a + 3}, 1.0, v{a + 3}")
        A(f"v_rcp_f32 v{a + 2}, v{a + 2}")
        A(f"v_rcp_f32 v{a + 3}, v{a + 3}")
    for k in range(8):
        a = 20 + 4 * k
        A(f"v_mul_f32 v{a}, v{a}, v{a + 2}")
        A(f"v_mul_f32 v{a + 1}, v{a + 1}, v{a + 3}")
        A(f"v_cvt_pk_bf16_f32 v{8 + k}, v{a}, v{a + 1}")
    A(f"s_mul_i32 s13, s8, {2 * SC_RS}")
    A("v_add_u32 v16, s13, v2")
    A("v_add_u32 v17, 16, v16")
    A("v_cmp_le_u32 vcc, 56, v1")
    A("v_cndmask_b32 v16, v16, v17, vcc")
    A(f"ds_write_b128 v16, v[8:11] offset:{L_SC}")
    A("s_mov_b32 exec_hi, 0xffff")
    A(f"ds_write_b128 v17, v[12:15] offset:{L_SC + 1024}")
    A("s_mov_b32 exec_hi, -1")
    A("s_cmp_lg_u32 s8, 2")
    A("s_cbranch_scc1 L_nostat")
    A("v_mov_b32 v20, 0"); A("v_mov_b32 v21, 0"); A("v_mov_b32 v22, 0"); A("v_mov_b32 v23, 0")
    A("v_mov_b32 v24, 0x3f803f80")
    for k in range(28):
        A(f"v_dot2c_f32_bf16 v{20 + 2 * (k & 1)}, v{64 + k}, v24")
        A(f"v_dot2c_f32_bf16 v{21 + 2 * (k & 1)}, v{64 + k}, v{64 + k}")
    A("v_add_f32 v20, v20, v22")
    A("v_add_f32 v21, v21, v23")
    for ctl in ("quad_perm:[1,0,3,2]", "quad_perm:[2,3,0,1]", "row_half_mirror"):
        A(f"v_add_f32_dpp v20, v20, v20 {ctl} row_mask:0xf bank_mask:0xf")
        A(f"v_add_f32_dpp v21, v21, v21 {ctl} row_mask:0xf bank_mask:0xf")
    A(f"s_mov_b32 s13, {f2u(1.0 / 448):#x}")
    A("v_mul_f32 v20, s13, v20")
    A("v_mul_f32 v21, s13, v21")
    A("v_fma_f32 v21, -v20, v20, v21")
    A("v_max_f32 v21, 0, v21")
    rnd2(20, 21, 22)
    A(f"v_add_f32 v21, {f2u(1e-5):#x}, v21")
    rnd1(21)
    A("v_sqrt_f32 v21, v21")
    rnd1(21)
    A("v_rcp_f32 v21, v21")
    A("v_and_b32 v22, 0x38, v1")
    A(f"ds_write_b64 v22, v[20:21] offset:{L_ST1}")
    A("L_nostat:")
    A("v_and_b32 v16, 7, v1")
    A(f"v_mul_u32_u24 v20, {SC_RS}, v16")
    A("v_lshl_add_u32 v20, v3, 3, v20")
    A(f"v_add_u32 v20, {L_SC}, v20")
    A("v_lshlrev_b32 v21, 3, v16")
    A("v_lshrrev_b32 v24, 1, v3")
    A("v_lshlrev_b32 v24, 10, v24")
    A("v_and_b32 v25, 1, v3")
    A("v_lshl_add_u32 v24, v25, 7, v24")
    A("v_lshl_add_u32 v24, v4, 3, v24")
    A("s_lshl_b32 s13, s8, 8")
    A(f"s_add_u32 s13, s13, {L_W1}")
    A("v_add_u32 v24, s13, v24")
    A(f"v_add_u32 v25, {56 * 1024}, v24")
    stamp(2, 2)
    A("s_waitcnt vmcnt(0) lgkmcnt(0)")
    stamp(3, 2)
    tag_from_epoch()
    hbar()
    A(f"ds_read_b64 v[22:23], v21 offset:{L_ST1}")
    for kb in range(14):
        A(f"ds_read2_b64 {vr(64 + 4 * kb)}, v20 offset0:{8 * kb} offset1:{8 * kb + 4}")
        for hf in range(2):
            A(f"ds_read_b64_tr_b16 {vr(120 + 56 * hf + 4 * kb, 2)}, v{24 + hf} offset:{4096 * kb}")
            A(f"ds_read_b64_tr_b16 {vr(122 + 56 * hf + 4 * kb, 2)}, v{24 + hf} offset:{4096 * kb + 2048}")
    A("s_waitcnt lgkmcnt(0)")
    hbar()
    w2_issue()
    for kb in range(14):
        A(f"v_mfma_f32_16x16x32_bf16 v[24:27], {vr(120 + 4 * kb)}, {vr(64 + 4 * kb)}, {'0' if kb == 0 else 'v[24:27]'}")
        A(f"v_mfma_f32_16x16x32_bf16 v[32:35], {vr(176 + 4 * kb)}, {vr(64 + 4 * kb)}, {'0' if kb == 0 else 'v[32:35]'}")
    A("v_mov_b32 v29, s45")
    A("v_mov_b32 v31, s45")
    A("v_mov_b32 v37, s45")
    A("v_mov_b32 v39, s45")
    A("s_cmp_eq_u32 s9, 1")
    A("s_cbranch_scc1 L_hepi")
    A("v_lshlrev_b32 v16, 13, v4")
    A("v_lshl_add_u32 v16, v3, 4, v16")
    A("s_lshl_b32 s13, s10, 9")
    A("s_lshl_b32 s14, s8, 6")
    A("s_add_u32 s13, s13, s14")
    A(f"s_add_u32 s13, s13, {WS_G}")
    A("v_cvt_pk_bf16_f32 v28, v24, v25")
    A("v_cvt_pk_bf16_f32 v30, v26, v27")
    A("v_cvt_pk_bf16_f32 v36, v32, v33")
    A("v_cvt_pk_bf16_f32 v38, v34, v35")
    A("s_mov_b32 exec_lo, 0x00ff00ff"); A("s_mov_b32 exec_hi, 0x00ff00ff")
    A("buffer_store_dwordx4 v[28:31], v16, s[48:51], s13 offen sc1")
    A("buffer_store_dwordx4 v[36:39], v16, s[48:51], s13 offen offset:256 sc1")
    A("s_mov_b64 exec, -1")
    A("s_branch L_p1done")
    A("L_hepi:")
    A("v_lshlrev_b32 v40, 16, v18"); A("v_and_b32 v41, s46, v18"); A("v_lshlrev_b32 v42, 16, v19"); A("v_and_b32 v43, s46, v19")
    for r in range(4):
        A(f"v_sub_f32 v{40 + r}, v{40 + r}, v22")
    rnd2(40, 41, 46); rnd2(42, 43, 47)
    for r in range(4):
        A(f"v_mul_f32 v{40 + r}, v{40 + r}, v23")
    rnd2(40, 41, 46); rnd2(42, 43, 47)
    rnd2(32, 33, 46); rnd2(34, 35, 47); rnd2(24, 25, 48); rnd2(26, 27, 49)
    for r in range(4):
        A(f"v_add_f32 v{32 + r}, 1.0, v{32 + r}")
    rnd2(32, 33, 46); rnd2(34, 35, 47)
    for r in range(4):
        A(f"v_mul_f32 v{40 + r}, v{40 + r}, v{32 + r}")
    rnd2(40, 41, 46); rnd2(42, 43, 47)
    for r in range(4):
        A(f"v_add_f32 v{40 + r}, v{40 + r}, v{24 + r}")
    A("v_cvt_pk_bf16_f32 v28, v40, v41")
    A("v_cvt_pk_bf16_f32 v30, v42, v43")
    A("v_lshlrev_b32 v16, 6, v4")
    A("v_lshl_add_u32 v16, v3, 4, v16")
    A("s_lshl_b32 s13, s10, 2")
    A("s_add_u32 s13, s13, s8")
    A("s_lshl_b32 s13, s13, 9")
    A(f"s_add_u32 s13, s13, {WS_H}")
    A("s_mov_b32 exec_lo, 0x00ff00ff"); A("s_mov_b32 exec_hi, 0x00ff00ff")
    A("buffer_store_dwordx4 v[28:31], v16, s[48:51], s13 offen sc1")
    A("s_mov_b64 exec, -1")
    A("L_p1done:")
    stamp(1)
    stamp(4, 2)
    A("s_waitcnt vmcnt(0)")
    A("L_p2:")
    hbar()
    stamp(5, 2)
    A("v_lshrrev_b32 v18, 1, v3")
    A("v_lshlrev_b32 v18, 10, v18")
    A("v_and_b32 v19, 1, v3")
    A("v_lshl_add_u32 v18, v19, 7, v18")
    A("v_lshl_add_u32 v18, v4, 3, v18")
    A("s_lshl_b32 s13, s8, 8")
    A(f"s_add_u32 s13, s13, {L_W1}")
    A("v_add_u32 v18, s13, v18")
    for kb in range(14):
        A(f"ds_read_b64_tr_b16 {vr(64 + 4 * kb, 2)}, v18 offset:{4096 * kb}")
        A(f"ds_read_b64_tr_b16 {vr(66 + 4 * kb, 2)}, v18 offset:{4096 * kb + 2048}")
    A("v_and_b32 v19, 7, v1")
    A("v_lshlrev_b32 v18, 6, v19")
    A("v_lshl_add_u32 v18, v3, 4, v18")
    A("v_bfe_u32 v21, v1, 3, 1")
    A("v_lshl_add_u32 v20, v21, 9, v18")
    A(f"v_mul_u32_u24 v19, {SC_RS}, v19")
    A("v_lshl_add_u32 v19, v3, 3, v19")
    A(f"v_add_u32 v19, {L_SC}, v19")
    A("s_mul_i32 s13, s8, 224")
    A("v_add_u32 v54, s13, v19")
    A("v_lshl_add_u32 v55, v21, 5, v54")
    A("s_mul_i32 s11, s8, 3584")
    A(f"s_add_u32 s11, s11, {WS_H}")
    A(f"s_add_u32 s12, s6, {qx}")
    A("s_and_b32 s12, s12, 7")
    A("s_lshl_b32 s12, s12, 5")
    A("s_lshl_b32 s13, s4, 2")
    A("s_add_u32 s12, s12, s13")
    A("s_add_u32 s12, s12, s8")
    A("s_lshl_b32 s12, s12, 9")
    A(f"s_add_u32 s12, s12, {WS_Q}")
    q_setup()
    wts_setup()
    A("s_waitcnt lgkmcnt(0)")
    ldsinc(L_CNT3, 16, 17)
    A("s_cmp_lg_u32 s9, 0")
    A("s_cbranch_scc1 L_noearly")
    wts_issue([("d", 0, t) for t in range(8)][:NE2], W3, free=W3)
    A("L_noearly:")

    def issueH():
        for n in range(4):
            A(f"buffer_load_dwordx4 {vr(24 + 4 * n)}, v{20 if n < 3 else 18}, s[48:51], s11 offen offset:{1024 * n} sc1")
    poll("H", issueH, [24 + 4 * n for n in range(4)], 22)
    stamp(2)
    stamp(6, 2)
    for n in range(4):
        A(f"v_mov_b32 v{25 + 4 * n}, v{26 + 4 * n}")
    for n in range(4):
        A(f"ds_write_b64 v{55 if n < 3 else 54}, {vr(24 + 4 * n, 2)} offset:{64 * n}")
    A("s_waitcnt lgkmcnt(0)")
    hbar()
    for kb in range(14):
        A(f"ds_read2_b64 {vr(120 + 4 * kb)}, v19 offset0:{8 * kb} offset1:{8 * kb + 4}")
    A("v_mov_b32 v29, s45")
    A("v_mov_b32 v31, s45")
    A("s_waitcnt lgkmcnt(0)")
    for kb in range(14):
        A(f"v_mfma_f32_16x16x32_bf16 v[24:27], {vr(64 + 4 * kb)}, {vr(120 + 4 * kb)}, {'0' if kb == 0 else 'v[24:27]'}")
    A("v_cvt_pk_bf16_f32 v28, v24, v25")
    A("v_cvt_pk_bf16_f32 v30, v26, v27")
    A("s_mov_b32 exec_lo, 0x00ff00ff"); A("s_mov_b32 exec_hi, 0x00ff00ff")
    if "s" not in abl:
        A("buffer_store_dwordx4 v[28:31], v18, s[48:51], s12 offen sc1")
    A("s_mov_b64 exec, -1")
    A("s_cmp_eq_u32 s8, 3")
    A("s_cbranch_scc1 L_q3")
    A("s_setprio 0")
    A("s_branch L_wts2")
    A("L_q3:")
    A("s_mov_b32 s10, 1")
    A("s_waitcnt vmcnt(0)")
    A("L_q:")
    if prio:
        A(f"s_setprio {prio}")
    A("v_mov_b32 v16, s45")
    A("s_lshl_b32 s13, s2, 2")
    A(f"s_add_u32 s13, s13, {WS_R}")
    A("v_mov_b32 v17, 0")
    A("s_mov_b64 exec, 1")
    A("buffer_store_dword v16, v17, s[48:51], s13 offen sc1")
    A("s_mov_b64 exec, -1")

    def issueQ():
        A("buffer_load_dwordx4 v[32:35], v52, s[48:51], s68 offen sc1")
        A("buffer_load_dwordx4 v[36:39], v52, s[48:51], s68 offen offset:16 sc1")
    poll("Q", issueQ, [32, 36], 22)
    A("v_mov_b32 v33, v34")
    A("v_mov_b32 v34, v36")
    A("v_mov_b32 v35, v38")
    A("v_mov_b32 v16, 0")
    A("v_mov_b32 v22, 1")
    A("v_mov_b32 v23, s45")
    A(f"ds_write_b128 v2, v[32:35] offset:{L_QL}")
    A(f"ds_write_b64 v16, v[22:23] offset:{L_QF}")
    stamp(3)
    A("s_setprio 0")
    A("s_cmp_eq_u32 s10, 0")
    A("s_cbranch_scc1 L_q3b")
    wts_issue([("o", 0, t) for t in range(16)] + [("d", 0, t) for t in range(8)][NE2:], W3, free=W3)
    A("s_branch L_pre_x")
    A("L_q3b:")
    wts_issue(items3[NE:], W3, free=W3)
    A("s_branch L_pre_x")
    A("L_wts:")
    wts_setup()
    wts_issue([("d", 0, t) for t in range(8)][:NE2] + [("o", 1, t) for t in range(16)], W, free=W)
    A("L_wts2:")
    wts_issue([("o", 0, t) for t in range(16)] + [("d", 0, t) for t in range(8)][NE2:] + [("d", 1, t) for t in range(8)], W, free=0)
    ldsspin("T", L_QF, 1, 16, 17)
    A(f"ds_read_b32 v17, v16 offset:{L_TAG}")
    A("s_waitcnt lgkmcnt(0)")
    A("v_readfirstlane_b32 s45, v17")
    A("s_cmp_eq_u32 s8, 0")
    A("s_cbranch_scc1 L_ml")
    A("s_cmp_eq_u32 s8, 2")
    A("s_cbranch_scc1 L_h2b")
    A("s_mul_i32 s13, s4, 896")
    A("v_min_u32 v16, 55, v1")
    A("v_lshlrev_b32 v16, 4, v16")
    A("v_add_u32 v17, s13, v16")
    A("global_load_dwordx4 v[20:23], v17, s[16:17]")
    A("s_lshl_b32 s14, s4, 13")
    A(f"s_add_u32 s14, s14, {WS_G}")
    A("s_add_u32 s15, s14, 0x1000")

    def issueG():
        for t in range(7):
            A(f"buffer_load_dwordx4 {vr(24 + 4 * t)}, v2, s[48:51], s{14 + (t >> 2)} offen offset:{(t & 3) * 1024} sc1")
    poll("G", issueG, [24 + 4 * t for t in range(7)], 18)
    A(f"ds_write_b128 v16, v[20:23] offset:{L_XR}")
    A("v_lshlrev_b32 v17, 3, v1")
    for t in range(7):
        A(f"v_mov_b32 v{25 + 4 * t}, v{26 + 4 * t}")
    for t in range(7):
        A(f"ds_write_b64 v17, {vr(24 + 4 * t, 2)} offset:{L_MD + 512 * t}")
    A("s_branch L_pre_x")
    A("L_h2b:")
    if pref2:
        code_prefetch("b", 16)
    A("s_cmp_lg_u32 s2, 0")
    A("s_cbranch_scc1 L_pre_x")
    A(f"s_movk_i32 s14, {WS_R}")
    A("L_pollR:")
    A("buffer_load_dwordx4 v[24:27], v2, s[48:51], s14 offen sc1")
    A("s_waitcnt vmcnt(0)")
    A("v_xor_b32 v28, s45, v24")
    for r in (25, 26, 27):
        A(f"v_bitop3_b32 v28, v28, v{r}, s45 bitop3:0xf6")
    A("v_cmp_ne_u32 vcc, 0, v28")
    A("s_cbranch_vccz L_pre_x")
    spin_fail()
    A("s_branch L_pollR")
    A("s_branch L_pre_x")
    A("L_ml:")
    ldsspin("2", L_CNT2, 4, 16, 17)
    A("v_lshrrev_b32 v17, 5, v1")
    A("v_lshlrev_b32 v16, 3, v17")
    A(f"v_add_u32 v16, {L_MLL}, v16")
    A("ds_read2_b64 v[20:23], v16 offset0:0 offset1:2")
    A("ds_read2_b64 v[24:27], v16 offset0:4 offset1:6")
    A(f"s_mov_b32 s15, {f2u(LOG2E / 16):#x}")
    A("s_lshl_b32 s13, s4, 3")
    A("s_add_u32 s13, s13, s6")
    A("s_lshl_b32 s13, s13, 7")
    A(f"s_add_u32 s13, s13, {WS_ML}")
    A("s_lshl_b32 s14, s5, 5")
    A("s_add_u32 s14, s14, s13")
    A("v_lshlrev_b32 v17, 4, v17")
    A("s_waitcnt lgkmcnt(0)")
    A("v_max3_f32 v28, v20, v22, v24")
    A("v_max_f32 v28, v28, v26")
    for w in range(4):
        A(f"v_sub_f32 v{32 + w}, v{20 + 2 * w}, v28")
        A(f"v_mul_f32 v{32 + w}, s15, v{32 + w}")
        A(f"v_exp_f32 v{32 + w}, v{32 + w}")
    A("v_mul_f32 v30, v32, v21")
    A("v_fmac_f32 v30, v33, v23")
    A("v_fmac_f32 v30, v34, v25")
    A("v_fmac_f32 v30, v35, v27")
    A("v_mov_b32 v29, s45")
    A("v_mov_b32 v31, s45")
    A("s_mov_b32 exec_lo, 1"); A("s_mov_b32 exec_hi, 1")
    A("buffer_store_dwordx4 v[28:31], v17, s[48:51], s14 offen sc1")
    A("s_mov_b64 exec, -1")

    def issueM():
        for k in range(4):
            A(f"buffer_load_dwordx4 {vr(36 + 4 * k)}, v17, s[48:51], s13 offen offset:{32 * k} sc1")
    poll("M", issueM, [36 + 4 * k for k in range(4)], 52)
    A("v_max3_f32 v52, v36, v40, v44")
    A("v_max_f32 v52, v52, v48")
    for k in range(4):
        A(f"v_sub_f32 v{36 + 4 * k}, v{36 + 4 * k}, v52")
        A(f"v_mul_f32 v{36 + 4 * k}, s15, v{36 + 4 * k}")
        A(f"v_exp_f32 v{36 + 4 * k}, v{36 + 4 * k}")
    A("v_sub_f32 v28, v28, v52")
    A("v_mul_f32 v28, s15, v28")
    A("v_exp_f32 v28, v28")
    A("v_mul_f32 v53, v36, v38")
    A("v_fmac_f32 v53, v40, v42")
    A("v_fmac_f32 v53, v44, v46")
    A("v_fmac_f32 v53, v48, v50")
    A("v_rcp_f32 v53, v53")
    A("v_mul_f32 v28, v28, v53")
    for w in range(4):
        A(f"v_mul_f32 v{32 + w}, v{32 + w}, v28")
    A(f"ds_write_b128 v17, v[32:35] offset:{L_FL}")
    A("L_pre_x:")
    masks(8, 12)
    A("v_lshrrev_b32 v12, 5, v1")
    A("v_lshlrev_b32 v14, 4, v12")
    A("v_lshlrev_b32 v12, 9, v12")
    A("v_bfe_u32 v13, v1, 1, 1")
    A("v_lshl_add_u32 v12, v13, 8, v12")
    A("v_bfe_u32 v13, v1, 2, 3")
    A("v_lshl_add_u32 v12, v13, 4, v12")
    A("v_and_b32 v13, 1, v1")
    A("v_lshl_add_u32 v12, v13, 3, v12")
    A("s_lshr_b32 s13, s8, 1")
    A("s_lshl_b32 s13, s13, 10")
    A("s_and_b32 s14, s8, 1")
    A("s_lshl_b32 s14, s14, 7")
    A("s_add_u32 s13, s13, s14")
    A("v_add_u32 v12, s13, v12")
    A("s_lshl_b32 s71, s4, 3")
    A("s_add_u32 s71, s71, s6")
    A("s_lshl_b32 s71, s71, 14")
    A(f"s_add_u32 s71, s71, {WS_OA}")
    A("s_lshl_b32 s13, s8, 12")
    A("s_add_u32 s71, s71, s13")
    A("s_lshl_b32 s14, s5, 10")
    A("s_add_u32 s72, s71, s14")
    A("v_lshlrev_b32 v7, 10, v3")
    A("v_lshl_add_u32 v7, v4, 4, v7")
    A("v_lshrrev_b32 v15, 1, v3")
    A("v_lshlrev_b32 v15, 6, v15")
    A("v_and_b32 v13, 7, v1")
    A("v_lshl_add_u32 v15, v13, 3, v15")
    A("v_and_b32 v13, 1, v3")
    A("v_lshl_add_u32 v15, v13, 2, v15")
    A("s_lshl_b32 s13, s8, 7")
    A("v_add_u32 v15, s13, v15")
    A("v_lshlrev_b32 v16, 3, v15")
    A("v_bfe_u32 v13, v1, 3, 1")
    A("v_lshl_add_u32 v16, v13, 4, v16")
    A("v_lshlrev_b32 v15, 2, v15")
    A("s_lshl_b32 s13, s4, 3")
    A("s_add_u32 s13, s13, s6")
    A("s_lshl_b32 s73, s13, 11")
    A("s_lshl_b32 s13, s5, 9")
    A("s_add_u32 s73, s73, s13")
    A(f"s_add_u32 s73, s73, {WS_Y}")
    A("s_lshl_b32 s13, s4, 5")
    A("s_add_u32 s14, s13, s47")
    A("s_lshl_b32 s74, s14, 12")
    A(f"s_add_u32 s74, s74, {WS_C}")
    A("s_cmp_eq_u32 s5, 3")
    A("s_cselect_b32 s75, 0xffff, -1")
    A("s_cmp_eq_u32 s8, 3")
    A("s_cselect_b32 s79, 0, -1")
    A("s_mov_b32 s78, -1")
    A("v_and_b32 v13, 7, v1")
    A("v_lshlrev_b32 v17, 3, v13")
    A("v_bfe_u32 v13, v1, 3, 1")
    A("v_lshl_add_u32 v17, v13, 2, v17")
    A("v_add_u32 v17, v17, v3")
    A("v_lshlrev_b32 v17, 2, v17")
    A(f"v_add_u32 v17, {L_GU}, v17")
    A("v_lshrrev_b32 v18, 3, v1")
    A("v_lshlrev_b32 v18, 12, v18")
    A("v_and_b32 v13, 7, v1")
    A("v_lshl_add_u32 v18, v13, 4, v18")
    A("v_and_b32 v5, 0x3fff, v18")
    A("s_lshl_b32 s80, s4, 17")
    A("s_lshl_b32 s13, s47, 7")
    A("s_add_u32 s80, s80, s13")
    A(f"s_add_u32 s80, s80, {WS_C}")
    A("s_add_u32 s81, s80, 0x8000")
    A("s_add_u32 s82, s80, 0x10000")
    A("s_add_u32 s83, s80, 0x18000")
    A("s_lshl_b32 s13, s47, 5")
    A("v_lshl_add_u32 v19, v13, 2, s13")
    A("s_mul_i32 s14, s4, 896")
    A("v_add_u32 v6, s14, v19")
    A("v_mov_b32 v21, s45")
    A("v_mov_b32 v23, s45")
    if apre:
        for k in range(4):
            A(f"buffer_load_dwordx4 v[60:63], v7, s[48:51], s71 offen offset:{256 * k} sc1")
    if cpre:
        A("s_cmp_ge_u32 s47, 28")
        A("s_cbranch_scc1 L_nocpre")
        A("v_mov_b32 v24, 0"); A("v_mov_b32 v25, 0"); A("v_mov_b32 v26, 0"); A("v_mov_b32 v27, 0")
        A("v_not_b32 v25, v21"); A("v_not_b32 v27, v21")
        A("s_mov_b64 exec, s[78:79]")
        A("buffer_store_dwordx4 v[24:27], v16, s[48:51], s74 offen sc1")
        A("s_mov_b64 exec, -1")
        A("L_nocpre:")
    if ypre:
        A("s_cmp_lg_u32 s8, 0")
        A("s_cbranch_scc1 L_noypre")
        A("v_mov_b32 v24, 0"); A("v_mov_b32 v26, 0")
        A("v_not_b32 v25, v21"); A("v_not_b32 v27, v21")
        A("s_mov_b32 exec_hi, 0"); A("s_mov_b32 exec_lo, s75")
        A("buffer_store_dwordx4 v[24:27], v2, s[48:51], s73 offen sc1")
        A("s_mov_b64 exec, -1")
        A("L_noypre:")
    A("s_waitcnt vmcnt(0) lgkmcnt(0)")
    stamp(4)
    A("s_barrier")
    A(f"ds_read_b128 v[24:27], v14 offset:{L_FL}")
    for w in range(4):
        A(f"ds_read_b64 {vr(28 + 2 * w, 2)}, v12 offset:{L_OB + 2048 * w}")
    A("s_waitcnt lgkmcnt(0)")
    A("v_mul_f32 v20, v24, v28")
    A("v_mul_f32 v22, v24, v29")
    for w in range(1, 4):
        A(f"v_fmac_f32 v20, v{24 + w}, v{28 + 2 * w}")
        A(f"v_fmac_f32 v22, v{24 + w}, v{29 + 2 * w}")
    A("buffer_store_dwordx4 v[20:23], v2, s[48:51], s72 offen sc1")
    if aack:
        A("s_waitcnt vmcnt(0)")

    def issueA():
        for k in range(4):
            A(f"buffer_load_dwordx4 {vr(24 + 4 * k)}, v7, s[48:51], s71 offen offset:{256 * k} sc1")
    poll("A", issueA, [24 + 4 * k for k in range(4)], 40)
    for c in (0, 2):
        A(f"v_permlane16_swap_b32 v{24 + c}, v{28 + c}")
        A(f"v_permlane16_swap_b32 v{32 + c}, v{36 + c}")
    for c in (0, 2):
        A(f"v_add_f32 v{24 + c}, v{24 + c}, v{28 + c}")
        A(f"v_add_f32 v{32 + c}, v{32 + c}, v{36 + c}")
    for c in (0, 2):
        A(f"v_permlane32_swap_b32 v{24 + c}, v{32 + c}")
    for c in (0, 2):
        A(f"v_add_f32 v{24 + c}, v{24 + c}, v{32 + c}")
    A("v_cvt_pk_bf16_f32 v40, v24, v24")
    A("v_cvt_pk_bf16_f32 v42, v26, v26")
    quadswap(41, 40)
    quadswap(43, 42)
    HB = [44, 48]
    abuild_bcast(HB[0], 40, 41, 0, 8)
    for t in range(16):
        if t + 1 < 16:
            t1 = t + 1
            abuild_bcast(HB[t1 & 1], 40 + 2 * (t1 & 1), 41 + 2 * (t1 & 1), t1 >> 1, 8)
        c0, c1 = ("0", "0") if t == 0 else ("v[52:55]", "v[56:59]")
        A(f"v_mfma_f32_16x16x32_bf16 v[52:55], {vr(HB[t & 1])}, {vr(WO(0, t))}, {c0}")
        A(f"v_mfma_f32_16x16x32_bf16 v[56:59], {vr(HB[t & 1])}, {vr(WO(1, t))}, {c1}")
    fold_tiles(52, 56)
    A("s_mov_b32 exec_lo, 0x00ff00ff")
    A("s_mov_b32 exec_hi, 0x00ff00ff")
    A(f"ds_write_b128 v15, v[52:55] offset:{L_GU}")
    A("s_mov_b64 exec, -1")
    A("s_waitcnt lgkmcnt(0)")
    A("s_barrier")
    A("s_cmp_lg_u32 s8, 0")
    A("s_cbranch_scc1 L_ypub")
    A("s_mov_b32 exec_hi, 0")
    for w in range(4):
        A(f"ds_read_b128 {vr(24 + 4 * w)}, v2 offset:{L_GU + 512 * w}")
    A("s_mov_b32 exec_lo, s75")
    A("s_waitcnt lgkmcnt(0)")
    for r in range(4):
        A(f"v_add_f32 v{24 + r}, v{24 + r}, v{28 + r}")
        A(f"v_add_f32 v{32 + r}, v{32 + r}, v{36 + r}")
    for r in range(4):
        A(f"v_add_f32 v{24 + r}, v{24 + r}, v{32 + r}")
    A("v_cvt_pk_bf16_f32 v20, v24, v25")
    A("v_cvt_pk_bf16_f32 v22, v26, v27")
    A("buffer_store_dwordx4 v[20:23], v2, s[48:51], s73 offen sc1")
    A("s_mov_b64 exec, -1")
    A("L_ypub:")
    stamp(5)
    A("s_cmp_ge_u32 s47, 28")
    A("s_cbranch_scc1 L_fin")
    A("s_barrier")
    A("s_barrier")
    for w in range(4):
        A(f"ds_read2st64_b32 {vr(24 + 2 * w, 2)}, v17 offset0:{2 * w} offset1:{2 * w + 1}")
    A(f"ds_read_b32 v60, v19 offset:{L_X1}")
    A(f"ds_read_b32 v61, v19 offset:{L_MD + 2688}")
    A(f"s_mov_b32 s13, {f2u(-LOG2E):#x}")
    A("s_waitcnt lgkmcnt(0)")
    A("v_add_f32 v24, v24, v26")
    A("v_add_f32 v25, v25, v27")
    A("v_add_f32 v28, v28, v30")
    A("v_add_f32 v29, v29, v31")
    A("v_add_f32 v24, v24, v28")
    A("v_add_f32 v25, v25, v29")
    rnd2(24, 25, 26)
    A("v_mul_f32 v24, s13, v24")
    A("v_exp_f32 v24, v24")
    A("v_add_f32 v24, 1.0, v24")
    A("v_rcp_f32 v24, v24")
    rnd1(24)
    A("v_mul_f32 v24, v24, v25")
    A("v_cvt_pk_bf16_f32 v40, v24, v24")
    quadswap(41, 40)
    abuild_bcast(HB[0], 40, 41, 0, 8)
    for t in range(8):
        if t + 1 < 8:
            abuild_bcast(HB[(t + 1) & 1], 40, 41, t + 1, 8)
        c0, c1 = ("0", "0") if t == 0 else ("v[52:55]", "v[56:59]")
        A(f"v_mfma_f32_16x16x32_bf16 v[52:55], {vr(HB[t & 1])}, {vr(WD(0, t))}, {c0}")
        A(f"v_mfma_f32_16x16x32_bf16 v[56:59], {vr(HB[t & 1])}, {vr(WD(1, t))}, {c1}")
    fold_tiles(52, 56)
    A("v_mov_b32 v20, v52")
    A("v_mov_b32 v22, v53")
    A("v_mov_b32_dpp v20, v54 row_ror:8 row_mask:0xf bank_mask:0xc")
    A("v_mov_b32_dpp v22, v55 row_ror:8 row_mask:0xf bank_mask:0xc")
    A("s_mov_b64 exec, s[78:79]")
    A("buffer_store_dwordx4 v[20:23], v16, s[48:51], s74 offen sc1")
    A("s_mov_b64 exec, -1")
    stamp(6)
    A("s_cmp_lg_u32 s8, 3")
    A("s_cbranch_scc1 L_fin")

    def issueC():
        for t in range(4):
            A(f"buffer_load_dwordx4 {vr(28 + 4 * t)}, v{18 if t < 3 else 5}, s[48:51], s{80 + t} offen sc1")
    poll("C", issueC, [28 + 4 * t for t in range(4)], 44)
    A("v_add_f32 v28, v28, v32")
    A("v_add_f32 v30, v30, v34")
    A("s_mov_b32 exec_hi, 0")
    A("v_add_f32 v36, v36, v40")
    A("v_add_f32 v38, v38, v42")
    A("s_mov_b32 exec_hi, -1")
    A("v_add_f32 v28, v28, v36")
    A("v_add_f32 v30, v30, v38")
    A("v_add_f32_dpp v28, v28, v28 row_ror:8 row_mask:0xf bank_mask:0xf")
    A("v_add_f32_dpp v30, v30, v30 row_ror:8 row_mask:0xf bank_mask:0xf")
    A("v_permlane16_swap_b32 v28, v30")
    A("v_add_f32 v28, v28, v30")
    A("v_mov_b32 v30, v28")
    A("v_permlane32_swap_b32 v28, v30")
    A("v_add_f32 v28, v28, v30")
    A("v_mov_b32 v30, v28")
    A("v_permlane16_swap_b32 v28, v30")
    rnd2(28, 30, 29)
    A("v_lshlrev_b32 v32, 16, v61"); A("v_and_b32 v33, s46, v61")
    A("v_mul_f32 v28, v28, v32")
    A("v_mul_f32 v30, v30, v33")
    rnd2(28, 30, 29)
    A("v_lshlrev_b32 v32, 16, v60"); A("v_and_b32 v33, s46, v60")
    A("v_add_f32 v28, v28, v32")
    A("v_add_f32 v30, v30, v33")
    A("v_cvt_pk_bf16_f32 v28, v28, v30")
    A("s_mov_b64 exec, 0xff")
    A("global_store_dword v6, v28, s[38:39]")
    A("s_cmp_lg_u32 s2, 0")
    A("s_cbranch_scc1 L_fin")
    A("s_mov_b64 exec, 1")
    A("v_mov_b32 v28, 0")
    A("v_mov_b32 v29, s44")
    A("buffer_store_dword v29, v28, s[48:51], 0 offen sc1")
    A("L_fin:")
    if padto:
        A("s_cmp_lg_u32 s2, 0")
        A("s_cbranch_scc1 L_end")
        A("L_padloop:")
        A("s_memrealtime s[100:101]")
        A("s_waitcnt lgkmcnt(0)")
        A("s_sub_u32 s14, s100, s86")
        A(f"s_cmp_lt_u32 s14, {padto}")
        A("s_cbranch_scc1 L_padloop")
    if dbg:
        A("s_cmp_lg_u32 s2, 0")
        A("s_cbranch_scc1 L_end")
        A("s_add_u32 s13, s3, 1")
        A("s_and_b32 s13, s13, 6")
        A("s_cmp_lg_u32 s13, 0")
        A("s_cbranch_scc1 L_end")
        A("s_mov_b64 exec, 1")
        A("s_memrealtime s[100:101]")
        A("s_lshr_b32 s13, s3, 2")
        A("s_lshl_b32 s13, s13, 5")
        A("s_waitcnt lgkmcnt(0)")
        A("v_mov_b32 v2, s13")
        for k in range(8):
            A(f"s_sub_u32 s14, s{86 + 2 * k}, s86")
            A(f"v_mov_b32 v{4 + k}, s14")
        for k in range(2):
            A(f"global_store_dwordx4 v2, {vr(4 + 4 * k)}, s[40:41] offset:{16 * k}")
    if stamps:
        A("s_mov_b64 exec, 1")
        A("s_memrealtime s[100:101]")
        A("s_lshl_b32 s13, s2, 3")
        A("s_add_u32 s13, s13, s3")
        A("s_lshl_b32 s13, s13, 6")
        A(f"s_add_u32 s42, s42, {512 << 20}")
        A("s_addc_u32 s43, s43, 0")
        A("s_waitcnt lgkmcnt(0)")
        A("v_mov_b32 v2, s13")
        for k in range(16):
            A(f"v_mov_b32 v{4 + k}, s{86 + k}")
        for k in range(4):
            A(f"global_store_dwordx4 v2, {vr(4 + 4 * k)}, s[42:43] offset:{16 * k}")
    A("L_end:")
    A("s_endpgm")
    A("L_codeend:")
    A(f".fill ({NPF * 1024} - (L_codeend - L_start)) / 4, 4, 0xbf800000")
    A('.section .rodata,"a"')
    A(".p2align 6")
    A(f".amdhsa_kernel {NAME}_kernel")
    A("  .amdhsa_next_free_vgpr 256")
    A("  .amdhsa_next_free_sgpr 102")
    A("  .amdhsa_accum_offset 256")
    A("  .amdhsa_group_segment_fixed_size 0")
    A("  .amdhsa_kernarg_size 112")
    A("  .amdhsa_user_sgpr_count 2")
    A("  .amdhsa_user_sgpr_kernarg_segment_ptr 1")
    A("  .amdhsa_system_sgpr_workgroup_id_x 1")
    A(".end_amdhsa_kernel")
    txt = A.finish()
    return txt, A.npad


if __name__ == "__main__":
    out = sys.argv[1]
    kw = {}
    for a in sys.argv[2:]:
        k, v = a.split("=")
        kw[k] = int(v) if v.lstrip("-").isdigit() else v.replace("+", " ")
    txt, npad = gen(**kw)
    open(out, "w").write(txt)
    print(out, "lines", txt.count("\n"), "pads", npad)
```

```python
import sys, os, struct
sys.path.insert(0, os.path.dirname(os.path.abspath(__file__)))
from asmlib import Asm

NAME = "adaLN_cond__sliding_block_cached__glu_gated_glu__decode"

WS_YH = 0xC00
WS_R, WS_H, WS_ML, WS_G, WS_Y, WS_Q, WS_OA, WS_C = 0x800, 0x1000, 0x8000, 0x10000, 0x20000, 0x40000, 0x100000, 0x200000
WS_SIZE = 0x300000
L_CNT1, L_CNT2, L_QF, L_TAG, L_CNT3, L_FL, L_ST1, L_MLL = 0, 4, 8, 12, 16, 32, 64, 128
L_QL, L_ST2, L_X1, L_PT, L_SC, L_OB, L_W1 = 256, 1280, 1536, 4096, 12288, 19712, 32768
SC_RS = 912
LOG2E = 1.4426950408889634
NPF = 24


def f2u(x):
    return struct.unpack("<I", struct.pack("<f", x))[0]


def gen(DK=8, DV=10, RV=8, W=8, NL=32, R1T=16, R1F=24, stamps=0, dbg=0, padto=0, abl="",
        spol="nt", wpol="", ppol="", qpol="nt", rot=4096, pref=1, pref2=1, assist=1, pause=0, prio=3, qx=1,
        apre=0, aack=1, ypre=0, cpre=0, xa=1, probe=1, lsl=0, gsl=0, ax=1, GH=29, GL=30, hint=0, p2s=0, rotb=0, step=0x4000):
    A = Asm()
    NSLOT = 56
    LDS_BYTES = L_W1 + max(112, 4 * NL) * 1024
    slot = lambda n: 32 + 4 * n
    vr = lambda r, n=4: f"v[{r}:{r + n - 1}]"
    MW = lambda t: 128 + 4 * t
    WD = lambda t: 64 + 4 * t
    AB = [224, 228]
    DPPF = "row_mask:0xf bank_mask:0xf"

    def stamp(i, mode=1):
        if stamps == 3:
            if mode == 3:
                A(f"s_memtime s[{86 + 2 * i}:{87 + 2 * i}]")
            return
        if stamps == 4:
            if mode == 4 or (mode == 1 and i == 0):
                A(f"s_memrealtime s[{86 + 2 * i}:{87 + 2 * i}]")
            return
        if ((stamps == 1 or dbg) and mode == 1) or (stamps == 2 and mode == 2) or (stamps == 2 and i == 0) or (padto and i == 0):
            A(f"s_memrealtime s[{86 + 2 * i}:{87 + 2 * i}]")

    def spin_fail():
        A("s_sub_u32 s84, s84, 1")
        A("s_cbranch_scc1 L_fin")

    def rnd2(a, b, t):
        A(f"v_cvt_pk_bf16_f32 v{t}, v{a}, v{b}")
        A(f"v_lshlrev_b32 v{a}, 16, v{t}")
        A(f"v_and_b32 v{b}, s46, v{t}")

    def rnd1(a):
        A(f"v_cvt_pk_bf16_f32 v{a}, v{a}, v{a}")
        A(f"v_and_b32 v{a}, s46, v{a}")

    def tagacc(bases, acc):
        for k, r in enumerate(bases):
            if k == 0:
                A(f"v_xor_b32 v{acc}, s45, v{r + 1}")
                A(f"v_xor_b32 v{acc + 1}, s45, v{r + 3}")
            else:
                A(f"v_bitop3_b32 v{acc}, v{acc}, v{r + 1}, s45 bitop3:0xf6")
                A(f"v_bitop3_b32 v{acc + 1}, v{acc + 1}, v{r + 3}, s45 bitop3:0xf6")
        A(f"v_or_b32 v{acc}, v{acc}, v{acc + 1}")
        A(f"v_cmp_ne_u32 vcc, 0, v{acc}")

    def poll(name, issue, bases, acc):
        if name.lower() in abl or name in abl:
            if name in abl:
                issue()
                A("s_waitcnt vmcnt(0)")
            A(f"L_got{name}:")
            A("s_mov_b64 exec, -1")
            return
        A(f"L_poll{name}:")
        issue()
        A("s_waitcnt vmcnt(0)")
        tagacc(bases, acc)
        A("s_mov_b64 exec, vcc")
        A(f"s_cbranch_execz L_got{name}")
        if gsl and name in ("P", "M", "A", "Q", "H"):
            A(f"s_sleep {gsl}")
        spin_fail()
        A(f"s_branch L_poll{name}")
        A(f"L_got{name}:")
        A("s_mov_b64 exec, -1")

    def ldsspin(name, off, n, va, vt):
        A(f"v_mov_b32 v{va}, 0")
        A(f"L_spin{name}:")
        A(f"ds_read_b32 v{vt}, v{va} offset:{off}")
        A("s_waitcnt lgkmcnt(0)")
        A(f"v_readfirstlane_b32 s13, v{vt}")
        A(f"s_cmp_ge_u32 s13, {n}")
        A(f"s_cbranch_scc1 L_spun{name}")
        if lsl and name in ("2", "S", "Q", "P", "T"):
            A(f"s_sleep {lsl}")
        spin_fail()
        A(f"s_branch L_spin{name}")
        A(f"L_spun{name}:")

    def ldsinc(off, va, vt):
        A(f"v_mov_b32 v{va}, 0")
        A(f"v_mov_b32 v{vt}, 1")
        A("s_mov_b64 exec, 1")
        A(f"ds_add_u32 v{va}, v{vt} offset:{off}")
        A("s_mov_b64 exec, -1")

    hb = [0]

    def hbar():
        hb[0] += 1
        ldsinc(L_CNT1, 16, 17)
        A("s_add_u32 s85, s85, 4")
        ldsspin(f"H{hb[0]}", L_CNT1, "s85", 16, 17)

    def masks(r0, t0):
        A(f"v_and_b32 v{t0}, 1, v1")
        A(f"v_lshlrev_b32 v{t0}, 4, v{t0}")
        A(f"v_mov_b32 v{t0 + 1}, 0xffff")
        A(f"v_lshlrev_b32 v{t0}, v{t0}, v{t0 + 1}")
        A(f"v_bfe_u32 v{t0 + 1}, v1, 1, 2")
        for r in range(4):
            A(f"v_cmp_eq_u32 vcc, {r}, v{t0 + 1}")
            A(f"v_cndmask_b32 v{r0 + r}, 0, v{t0}, vcc")

    def abuild(dst, P, Psw, x):
        for r in range(4):
            src = P if (x >> 2) == (r >> 1) else Psw
            q = x & 3
            A(f"v_and_b32_dpp v{dst + r}, v{src}, v{16 + r} quad_perm:[{q},{q},{q},{q}] {DPPF}")

    def quadswap(dst, src):
        A(f"v_mov_b32_dpp v{dst}, v{src} row_shl:4 row_mask:0xf bank_mask:0x5")
        A(f"v_mov_b32_dpp v{dst}, v{src} row_shr:4 row_mask:0xf bank_mask:0xa")

    def gemv(groups, wreg, skip_at=None, skip_label=None):
        A(".p2align 3")
        abuild(AB[0], *groups[0])
        for t in range(len(groups)):
            if t + 1 < len(groups):
                abuild(AB[(t + 1) & 1], *groups[t + 1])
            A(f"v_mfma_f32_16x16x32_bf16 v[20:23], {vr(AB[t & 1])}, {vr(wreg(t))}, {'0' if t == 0 else 'v[20:23]'}")
            if skip_at is not None and t + 1 == skip_at:
                A(f"s_cbranch_scc1 {skip_label}")

    def pkadd(a, b):
        A(f"v_pk_add_f32 v[{a}:{a + 1}], v[{a}:{a + 1}], v[{b}:{b + 1}]")

    def pkmul(a, b):
        A(f"v_pk_mul_f32 v[{a}:{a + 1}], v[{a}:{a + 1}], v[{b}:{b + 1}]")

    def rowfold(op, a, t):
        A(f"v_mov_b32 v{t}, v{a}")
        A(f"v_permlane16_swap_b32 v{a}, v{t}")
        A(f"{op} v{a}, v{a}, v{t}")
        A(f"v_mov_b32 v{t}, v{a}")
        A(f"v_permlane32_swap_b32 v{a}, v{t}")
        A(f"{op} v{a}, v{a}, v{t}")

    def srd(n, lo, size):
        A(f"s_mov_b32 s{n}, s{lo}"); A(f"s_mov_b32 s{n + 1}, s{lo + 1}"); A(f"s_mov_b32 s{n + 2}, {size}"); A(f"s_mov_b32 s{n + 3}, 0x20000")

    def code_prefetch(tag, vtmp):
        A("s_lshr_b32 s13, s2, 3")
        A(f"s_cmp_ge_u32 s13, {NPF}")
        A(f"s_cbranch_scc1 L_nopf{tag}")
        A("s_getpc_b64 s[14:15]")
        A(f"L_pc{tag}:")
        A(f"s_sub_u32 s14, s14, L_pc{tag}-L_start")
        A("s_subb_u32 s15, s15, 0")
        A("s_lshl_b32 s13, s13, 10")
        A(f"v_add_u32 v{vtmp}, s13, v2")
        A(f"global_load_dwordx4 v[60:63], v{vtmp}, s[14:15]")
        A(f"L_nopf{tag}:")

    def tag_from_epoch():
        A("s_add_u32 s45, s44, 1")
        A("s_and_b32 s45, s45, 0xbfffbfff")

    def mw_setup(tag, helper):
        A("v_lshrrev_b32 v4, 4, v1")
        A("s_cmp_lt_u32 s47, 28")
        A(f"s_cbranch_scc1 L_mwf{tag}")
        A(f"v_mul_u32_u24 v4, {16 * 896}, v4")
        A("s_cmp_eq_u32 s5, 3")
        A("s_cselect_b32 s13, 7, 15")
        A("v_and_b32 v5, s13, v1")
        A("v_lshl_add_u32 v4, v5, 4, v4")
        A("s_lshl_b32 s13, s6, 3")
        A("s_add_u32 s13, s13, s8")
        if not helper:
            A("s_add_u32 s13, s13, 4")
        A(f"s_mul_i32 s13, s13, {64 * 896}")
        A("s_lshl_b32 s14, s5, 8")
        A("s_add_u32 s13, s13, s14")
        A("s_bitcmp0_b32 s4, 0")
        A("s_cselect_b32 s72, 896, 0")
        A("s_cselect_b32 s14, -1, 0")
        A("v_and_b32 v4, s14, v4")
        A("v_mov_b32 v6, s24")
        A("v_mov_b32 v7, s25")
        A(f"s_branch L_mwj{tag}")
        A(f"L_mwf{tag}:")
        A("v_mul_u32_u24 v4, 3584, v4")
        A("v_and_b32 v5, 7, v1")
        A("v_lshl_add_u32 v4, v5, 4, v4")
        if helper:
            A(f"s_mul_i32 s13, s8, {48 * 3584}")
            A(f"s_add_u32 s13, s13, {256 * 3584}")
        else:
            A(f"s_mul_i32 s13, s8, {64 * 3584}")
        A("s_lshl_b32 s14, s47, 7")
        A("s_add_u32 s13, s13, s14")
        A("s_movk_i32 s72, 14336")
        A("s_mov_b32 vcc_lo, 0xff00ff00")
        A("s_mov_b32 vcc_hi, 0xff00ff00")
        A("v_mov_b32 v5, s28")
        A("v_mov_b32 v6, s30")
        A("v_cndmask_b32 v6, v5, v6, vcc")
        A("v_mov_b32 v5, s29")
        A("v_mov_b32 v7, s31")
        A("v_cndmask_b32 v7, v5, v7, vcc")
        A(f"L_mwj{tag}:")
        A("v_add_u32 v4, s13, v4")
        A("v_add_co_u32 v28, vcc, v6, v4")
        A("v_addc_co_u32 v29, vcc, 0, v7, vcc")

    def mw_issue(t):
        if "w" in abl:
            return 0
        A(f"global_load_dwordx4 {vr(MW(t))}, v[28:29], off {wpol}")
        A("v_add_co_u32 v28, s[14:15], s72, v28")
        A("v_addc_co_u32 v29, s[14:15], 0, v29, s[14:15]")
        return 1

    def tail_setup(tag, helper):
        A("v_lshrrev_b32 v4, 4, v1")
        A("v_bfe_u32 v5, v1, 3, 1")
        A("v_and_b32 v6, 7, v1")
        A("s_cmp_lt_u32 s47, 28")
        A(f"s_cbranch_scc1 L_tsf{tag}")
        A("v_lshlrev_b32 v192, 17, v5")
        A("v_lshl_add_u32 v192, v4, 10, v192")
        A("v_lshl_add_u32 v192, v6, 4, v192")
        A("v_lshlrev_b32 v193, 12, v5")
        A("v_lshl_add_u32 v193, v4, 7, v193")
        A("s_lshl_b32 s13, s4, 3")
        A("s_add_u32 s13, s13, s6")
        A("s_lshl_b32 s76, s13, 14")
        A("s_lshl_b32 s14, s8, 12")
        A("s_add_u32 s76, s76, s14")
        A(f"s_add_u32 s76, s76, {WS_OA + (0 if helper else 512)}")
        A("s_lshl_b32 s77, s13, 9")
        A(f"s_add_u32 s77, s77, {WS_ML + (0 if helper else 16)}")
        A("s_lshl_b32 s70, s4, 4")
        A("s_lshl_b32 s14, s6, 2")
        A("s_add_u32 s70, s70, s14")
        A("s_add_u32 s70, s70, s5")
        A("s_lshl_b32 s70, s70, 2")
        A(f"s_add_u32 s70, s70, {WS_YH}")
        A("v_lshrrev_b32 v194, 1, v4")
        A("v_lshlrev_b32 v194, 9, v194")
        A("v_and_b32 v7, 15, v1")
        A("v_lshl_add_u32 v194, v7, 5, v194")
        A("v_and_b32 v7, 1, v4")
        A("v_lshl_add_u32 v194, v7, 4, v194")
        A("s_lshl_b32 s14, s3, 10")
        A("v_add_u32 v194, s14, v194")
        if helper:
            A("s_lshl_b32 s14, s8, 9")
            A("v_lshlrev_b32 v196, 3, v1")
            A(f"s_add_u32 s14, s14, {L_PT}")
            A("v_add_u32 v195, s14, v196")
            A("s_lshl_b32 s73, s13, 11")
            A("s_lshl_b32 s14, s8, 14")
            A("s_add_u32 s73, s73, s14")
            A("s_lshl_b32 s14, s5, 9")
            A("s_add_u32 s73, s73, s14")
            A(f"s_add_u32 s73, s73, {WS_Y}")
            A("s_mov_b32 s78, -1")
            A("s_cmp_eq_u32 s5, 3")
            A("s_cselect_b32 s79, 0, -1")
        A(f"s_branch L_tsj{tag}")
        A(f"L_tsf{tag}:")
        if helper:
            A("s_mul_i32 s13, s8, 48")
            A("s_add_u32 s13, s13, 256")
            A("v_min_u32 v7, 3, v6")
            A("v_cmp_gt_u32 s[74:75], 4, v6")
        else:
            A("s_lshl_b32 s13, s8, 6")
            A("v_mov_b32 v7, v6")
            A("s_mov_b64 s[74:75], -1")
        A("v_lshlrev_b32 v192, 14, v5")
        A("v_lshl_add_u32 v192, v4, 11, v192")
        A("v_lshl_add_u32 v193, v7, 4, v192")
        A("v_add_u32 v193, 128, v193")
        A("v_lshl_add_u32 v192, v6, 4, v192")
        A("s_sub_u32 s14, s4, 1")
        A("s_lshl_b32 s76, s14, 14")
        A("s_lshl_b32 s14, s13, 2")
        A("s_add_u32 s76, s76, s14")
        A(f"s_add_u32 s76, s76, {WS_Y}")
        A("s_add_u32 s77, s76, 0x2000")
        A("v_add_u32 v194, s13, v4")
        A("v_lshl_add_u32 v195, v7, 2, v194")
        A("v_add_u32 v195, 32, v195")
        A("v_lshl_add_u32 v194, v6, 2, v194")
        A("v_lshlrev_b32 v196, 13, v5")
        A("v_lshl_add_u32 v197, v7, 4, v196")
        A("v_add_u32 v197, 128, v197")
        A("v_lshl_add_u32 v196, v6, 4, v196")
        A("s_sub_u32 s14, s4, 1")
        A("s_lshl_b32 s15, s14, 13")
        A("s_lshl_b32 s13, s13, 2")
        A("s_add_u32 s15, s15, s13")
        A(f"s_add_u32 s67, s15, {WS_G}")
        A("s_mul_i32 s14, s14, 896")
        A("s_add_u32 s64, s16, s14")
        A("s_addc_u32 s65, s17, 0")
        A("v_mul_u32_u24 v7, 448, v5")
        A("v_add_lshl_u32 v194, v194, v7, 1")
        A("v_add_lshl_u32 v195, v195, v7, 1")
        A("v_mul_u32_u24 v201, 0x0202, v4")
        A("v_add_u32 v201, 0x0100, v201")
        A("v_lshlrev_b32 v201, 16, v201")
        A("v_or_b32 v201, 0x0c0c, v201")
        A("v_lshrrev_b32 v198, 1, v4")
        A("v_lshlrev_b32 v198, 7, v198")
        A("v_lshl_add_u32 v198, v5, 3, v198")
        A("v_lshl_add_u32 v198, v6, 4, v198")
        A("v_and_b32 v7, 1, v4")
        A("v_lshl_add_u32 v198, v7, 9, v198")
        A("s_lshl_b32 s14, s3, 10")
        A(f"s_add_u32 s14, s14, {L_PT}")
        A("v_add_u32 v198, s14, v198")
        A("v_lshlrev_b32 v200, 6, v5")
        A("v_lshl_add_u32 v199, v7, 2, v200")
        A("s_lshl_b32 s14, s3, 3")
        A("v_add_u32 v199, s14, v199")
        A("v_bfe_u32 v4, v1, 2, 1")
        A("v_lshlrev_b32 v4, 4, v4")
        A("v_mov_b32 v5, 0x3f80")
        A("v_lshlrev_b32 v4, v4, v5")
        A("v_and_b32 v5, 11, v1")
        for val, r in ((0, 204), (8, 206), (1, 208), (9, 210)):
            A(f"v_cmp_eq_u32 vcc, {val}, v5")
            A(f"v_cndmask_b32 v{r}, 0, v4, vcc")
            A(f"v_mov_b32 v{r + 1}, 0")
        A("v_mov_b32 v212, 0")
        A("v_mov_b32 v213, 0")
        if hint:
            A("s_lshr_b32 s70, s4, 1")
            A("s_lshl_b32 s70, s70, 7")
            A(f"s_add_u32 s70, s70, {WS_YH}")
            A("v_and_b32 v202, 31, v1")
            A("v_lshlrev_b32 v202, 2, v202")
        else:
            A("s_lshr_b32 s13, s7, 2")
            A("s_lshl_b32 s13, s13, 13")
            A("s_add_u32 s70, s76, s13")
            A("s_and_b32 s13, s7, 3")
            A("s_lshl_b32 s13, s13, 4")
            A("s_lshl_b64 s[68:69], 0xffff, s13")
        A(f"L_tsj{tag}:")

    hdr = open(os.path.join(os.path.dirname(os.path.abspath(__file__)), "header.txt")).read().rstrip("\n")
    A(hdr)
    A(f"; @launch grid=(256,1,1) block=(512,1,1) lds={LDS_BYTES}")
    A('.amdgcn_target "amdgcn-amd-amdhsa--gfx950"')
    A(".text")
    A(f".globl {NAME}_kernel")
    A(".p2align 8")
    A(f".type {NAME}_kernel,@function")
    A(f"{NAME}_kernel:")
    A("L_start:")
    A("s_cmp_ge_u32 s2, 256")
    A("s_cbranch_scc1 L_end")
    stamp(0)
    A("s_load_dwordx16 s[16:31], s[0:1], 0")
    A("s_load_dwordx8 s[32:39], s[0:1], 64")
    A("s_load_dwordx4 s[40:43], s[0:1], 96")
    A("v_lshrrev_b32 v2, 6, v0")
    A("v_and_b32 v1, 63, v0")
    A("v_readfirstlane_b32 s3, v2")
    A("s_lshr_b32 s4, s2, 5")
    A("s_bfe_u32 s5, s2, 0x20003")
    A("s_and_b32 s6, s2, 7")
    A("s_mov_b32 s9, 0")
    A("s_mov_b32 s10, s6")
    A("s_mov_b32 s12, 0")
    A("s_mov_b32 s47, 28")
    A("s_bitcmp1_b32 s4, 0")
    A("s_cbranch_scc1 L_odd")
    A("s_cmp_ge_u32 s5, 2" if p2s else "s_cmp_eq_u32 s5, 3")
    A("s_cselect_b32 s12, 1, 0")
    A("s_cmp_lg_u32 s5, 0")
    A("s_cbranch_scc1 L_roled")
    A("s_lshl_b32 s10, s4, 2")
    A("s_add_u32 s10, s10, s6")
    A("s_cmp_lt_u32 s10, 10")
    A("s_cselect_b32 s9, 3, 0")
    A("s_branch L_roled")
    A("L_odd:")
    A("s_mul_i32 s47, s6, 3")
    A("s_add_u32 s47, s47, s5")
    A("s_cmp_lg_u32 s5, 3")
    A("s_cbranch_scc1 L_roled")
    A("s_lshr_b32 s47, s6, 1")
    A("s_add_u32 s47, s47, 24")
    A("s_and_b32 s13, s6, 1")
    A("s_lshr_b32 s14, s4, 2")
    A("s_cmp_eq_u32 s13, s14")
    A("s_cbranch_scc1 L_roled")
    A("s_mov_b32 s47, 28")
    A("s_mov_b32 s9, 2")
    A("s_bitcmp1_b32 s4, 1")
    A("s_cbranch_scc1 L_roled")
    A("s_cmp_lt_u32 s6, 7")
    A("s_cselect_b32 s9, 1, 2")
    A("s_cselect_b32 s10, s6, 8")
    A("L_roled:")
    if "1" in abl:
        A("s_mov_b32 s9, 0")
    if "2" in abl:
        A("s_mov_b32 s12, 0")
    A("s_and_b32 s8, s3, 3")
    A(f"s_add_u32 s7, s6, {ax}")
    A("s_and_b32 s7, s7, 7")
    A("s_mov_b32 s46, 0xffff0000")
    A("s_mov_b32 s84, 0x20000")
    A("s_cmp_ge_u32 s3, 4")
    A("s_cbranch_scc1 L_helper")

    A("; ---------------- streamer ----------------")
    A("v_bfe_u32 v2, v1, 3, 1")
    A("v_lshlrev_b32 v2, 9, v2")
    A("v_and_b32 v3, 7, v1")
    A("v_lshl_add_u32 v2, v3, 4, v2")
    A("v_lshrrev_b32 v3, 4, v1")
    A("v_lshl_add_u32 v2, v3, 7, v2")
    A("s_lshl_b32 s68, s4, 3")
    A("s_add_u32 s68, s68, s7")
    A("s_lshl_b32 s68, s68, 22")
    A("s_lshl_b32 s69, s5, 18")
    A("s_add_u32 s68, s68, s69")
    A(f"s_add_u32 s68, s68, {6144 * 512}")
    A(f"s_mul_i32 s70, s2, {rot}")
    if rotb:
        A("s_lshr_b32 s69, s2, 6")
        A(f"s_mul_i32 s69, s69, {rotb}")
        A("s_add_u32 s70, s70, s69")
    A("s_lshl_b32 s69, s3, 12")
    A("s_add_u32 s70, s70, s69")
    A("s_and_b32 s70, s70, 0x3ffff")
    A("s_mov_b32 s71, s70")
    A("s_mov_b32 s54, 0x40000")
    A("s_mov_b32 s55, 0x20000")
    A("s_waitcnt lgkmcnt(0)")
    A("s_add_u32 s52, s18, s68")
    A("s_addc_u32 s53, s19, 0")
    if pause:
        A("s_cmp_lg_u32 s9, 1")
        A("s_cbranch_scc1 L_go")
        A("s_barrier")
        ldsspin("P", L_CNT1, 4, 4, 5)
        A("L_go:")
    issued = [0]
    NVS = NL - 8
    assert NVS % 2 == 0 and NVS >= 4 and NVS + 2 * RV <= 64 and RV <= 8
    vslot = lambda n: (n % 8) if n < NVS else 8 + (n - NVS) % (2 * RV)

    def bump(so):
        A(f"s_add_u32 s{so}, s{so}, {step}")
        A(f"s_and_b32 s{so}, s{so}, 0x3ffff")

    def k_issue(n, sl):
        A(f"buffer_load_dwordx4 {vr(slot(sl))}, v2, s[52:55], s70 offen offset:{(n % 4) * 1024} {spol}")
        if n % 4 == 3:
            bump(70)
        issued[0] += 1
        return issued[0] - 1

    def v_issue(n):
        A(f"buffer_load_dwordx4 {vr(slot(vslot(n)))}, v3, s[56:59], s71 offen offset:{[0, 256, 2048, 2304][n % 4]} {spol}")
        if n % 4 == 3 and n < 63:
            bump(71)
        issued[0] += 1
        return issued[0] - 1

    def stage_issue(k):
        if k < 8:
            n = NSLOT + k
            off, va, sd, so = (n % 4) * 1024, 2, "s[52:55]", 70
        else:
            n = k - 8
            off, va, sd, so = [0, 256, 2048, 2304][n % 4], 3, "s[56:59]", 71
        A(f"s_add_u32 m0, s85, {1024 * k - off + 4096}")
        A(f"buffer_load_dwordx4 v{va}, {sd}, s{so} offen offset:{off} {spol} lds")
        if n % 4 == 3 and not (k < 8 and n == 63):
            bump(so)
        issued[0] += 1
        return issued[0] - 1

    def stage_read(k, sl):
        A(f"ds_read_b128 {vr(slot(sl))}, v30 offset:{1024 * k}")

    def wait_for(idx):
        A(f"s_waitcnt vmcnt({min(63, issued[0] - 1 - idx)})")

    nmw = [0]

    def mw_next():
        if nmw[0] < 16:
            A(f"s_waitcnt vmcnt({DV - 1})")
            issued[0] += mw_issue(nmw[0])
            nmw[0] += 1

    vidx = {}
    for n in range(DK):
        k_issue(n, n)
    if pause:
        A("s_cmp_eq_u32 s9, 1")
        A("s_cbranch_scc1 L_nob0")
    A("s_barrier")
    A("L_nob0:")
    A("s_add_u32 s56, s20, s68")
    A("s_addc_u32 s57, s21, 0")
    A("s_mov_b32 s58, 0x40000")
    A("s_mov_b32 s59, 0x20000")
    A("v_and_b32 v4, 1, v3")
    A("v_lshlrev_b32 v4, 10, v4")
    A("v_lshrrev_b32 v5, 1, v3")
    A("v_lshl_add_u32 v4, v5, 9, v4")
    A("v_and_b32 v5, 15, v1")
    A("v_lshl_add_u32 v3, v5, 4, v4")
    masks(16, 4)
    mw_setup("s", False)
    srd(48, 42, WS_SIZE)
    A("s_mov_b32 s80, 0xcccccccc"); A("s_mov_b32 s81, 0xcccccccc")
    A("s_mov_b32 s82, 0xf0f0f0f0"); A("s_mov_b32 s83, 0xf0f0f0f0")
    A("v_lshlrev_b32 v31, 4, v1")
    A(f"s_mul_i32 s85, s3, {NL * 1024}")
    A(f"s_add_u32 s85, s85, {L_W1}")
    A("v_add_u32 v30, s85, v31")
    A("s_sub_u32 s85, s85, 4096")
    for n in range(DK, NSLOT):
        A(f"s_waitcnt vmcnt({DK - 1})")
        if "n" in abl:
            A("s_nop 7")
        k_issue(n, n)
    A("s_or_b32 s13, s9, s12")
    A("s_cbranch_scc0 L_stagefree")
    ldsspin("S", L_CNT3, 4, 4, 5)
    A("L_stagefree:")
    sidx = {}
    for k in range(NL):
        A(f"s_waitcnt vmcnt({DK - 1})")
        sidx[k] = stage_issue(k)
    stamp(1)
    ldsspin("Q", L_QF, 1, 4, 5)
    A(f"ds_read_b32 v8, v4 offset:{L_TAG}")
    A(f"ds_read_b128 v[4:7], v31 offset:{L_QL}")
    A("s_mov_b32 vcc_lo, 0xaaaaaaaa")
    A("s_mov_b32 vcc_hi, 0xaaaaaaaa")
    A("s_waitcnt lgkmcnt(0)")
    A("v_readfirstlane_b32 s45, v8")
    kslot = lambda n: n if n < NSLOT else n - NSLOT
    dreg = lambda n: 20 if n == 0 else slot(kslot(n - 1))
    nv = NVS
    for m in range(8):
        if m == 7:
            A("s_waitcnt lgkmcnt(0)")
        for n in range(8 * m, 8 * m + 8):
            A(f"v_mfma_f32_16x16x32_bf16 {vr(dreg(n))}, {vr(slot(kslot(n)))}, v[4:7], 0")
        D = [dreg(n) for n in range(8 * m, 8 * m + 8)]
        for d in D:
            A(f"v_cndmask_b32 v{d}, v{d}, v{d + 1}, vcc")
            A(f"v_cndmask_b32 v{d + 2}, v{d + 2}, v{d + 3}, vcc")
        for d in D:
            A(f"v_cndmask_b32 v{d}, v{d}, v{d + 2}, s[80:81]")
        for p in range(4):
            A(f"v_permlane16_swap_b32 v{D[2 * p]}, v{D[2 * p + 1]}")
        for p in range(4):
            A(f"v_cndmask_b32 v{D[2 * p]}, v{D[2 * p]}, v{D[2 * p + 1]}, s[82:83]")
        y = [D[0], D[2], D[4], D[6]]
        z0, z1 = D[0] + 1, D[2] + 1
        A(f"v_add_f32_dpp v{z0}, v{y[0]}, v{y[0]} row_shl:4 row_mask:0xf bank_mask:0x5")
        A(f"v_add_f32_dpp v{z1}, v{y[1]}, v{y[1]} row_shl:4 row_mask:0xf bank_mask:0x5")
        A(f"v_add_f32_dpp v{z0}, v{y[2]}, v{y[2]} row_shr:4 row_mask:0xf bank_mask:0xa")
        A(f"v_add_f32_dpp v{z1}, v{y[3]}, v{y[3]} row_shr:4 row_mask:0xf bank_mask:0xa")
        t0, t1 = D[0] + 2, D[2] + 2
        A(f"v_cndmask_b32 v{t1}, v{z1}, v{z0}, s[80:81]")
        A(f"v_cndmask_b32 v{t0}, v{z0}, v{z1}, s[80:81]")
        A(f"v_add_f32_dpp v{t0}, v{t1}, v{t0} quad_perm:[2,3,0,1] {DPPF}")
        A(f"v_add_f32_dpp v{8 + m}, v{t0}, v{t0} quad_perm:[1,0,3,2] {DPPF}")
        rnd1(8 + m)
        left = NVS + 2 * RV - nv
        cnt = min(left, {1: 5, 2: 4, 3: 4}.get(m, left if m == 4 else 0))
        for c in range(cnt):
            assert vslot(nv) < 8 * m + 7
            A(f"s_waitcnt vmcnt({DV - 1})")
            vidx[nv] = v_issue(nv)
            nv += 1
        if m == 5:
            wait_for(sidx[7])
            for k in range(8):
                stage_read(k, k)
        if m >= 5:
            mw_next(); mw_next()
    assert nv == NVS + 2 * RV
    wait_for(sidx[NL - 1])
    for n in range(4):
        stage_read(8 + n, vslot(n))
    A("v_max3_f32 v20, v8, v9, v10")
    A("v_max3_f32 v21, v11, v12, v13")
    A("v_max3_f32 v20, v20, v14, v15")
    A("v_max_f32 v20, v20, v21")
    A(f"v_max_f32_dpp v20, v20, v20 quad_perm:[2,3,0,1] {DPPF}")
    A(f"v_max_f32_dpp v20, v20, v20 row_half_mirror {DPPF}")
    rowfold("v_max_f32", 20, 21)
    A(f"s_mov_b32 s69, {f2u(LOG2E / 16):#x}")
    A("v_mul_f32 v22, s69, v20")
    for m in range(8):
        A(f"v_fma_f32 v{8 + m}, v{8 + m}, s69, -v22")
    for m in range(8):
        A(f"v_exp_f32 v{8 + m}, v{8 + m}")
    A("v_add_f32 v21, v8, v9")
    A("v_add_f32 v22, v10, v11")
    A("v_add_f32 v23, v12, v13")
    A("v_add_f32 v24, v14, v15")
    A("v_add_f32 v21, v21, v22")
    A("v_add_f32 v23, v23, v24")
    A("v_add_f32 v21, v21, v23")
    for m in range(8):
        A(f"v_cvt_pk_bf16_f32 v{8 + m}, v{8 + m}, v{8 + m}")
    A(f"v_add_f32_dpp v21, v21, v21 quad_perm:[2,3,0,1] {DPPF}")
    A(f"v_add_f32_dpp v21, v21, v21 row_half_mirror {DPPF}")
    rowfold("v_add_f32", 21, 22)
    A("s_lshl_b32 s69, s3, 4")
    A("v_add_u32 v22, s69, v1")
    A("v_mov_b32 v23, 0")
    A("v_mov_b32 v24, 1")
    A("s_mov_b64 exec, 0x101")
    A(f"ds_write_b64 v22, v[20:21] offset:{L_MLL}")
    A("s_mov_b64 exec, 1")
    A(f"ds_add_u32 v23, v24 offset:{L_CNT2}")
    A("s_mov_b64 exec, -1")
    stamp(3)

    def pv_abuild(gm):
        m, x = gm >> 2, gm & 3
        for r in range(4):
            sh = 2 * (x - r)
            d = AB[gm & 1] + r
            if sh == 0:
                A(f"v_and_b32 v{d}, v{8 + m}, v{16 + r}")
            elif sh > 0:
                A(f"v_and_b32_dpp v{d}, v{8 + m}, v{16 + r} row_shl:{sh} {DPPF} bound_ctrl:0")
            else:
                A(f"v_and_b32_dpp v{d}, v{8 + m}, v{16 + r} row_shr:{-sh} {DPPF} bound_ctrl:0")

    last_issue = 32 - RV
    pv_abuild(0)
    for gm in range(32):
        if gm + 1 < 32:
            pv_abuild(gm + 1)
        if 2 * gm < NVS:
            nxt = 2 * gm + 4 < NVS
            if nxt:
                stage_read(8 + 2 * gm + 4, vslot(2 * gm + 4))
                stage_read(8 + 2 * gm + 5, vslot(2 * gm + 5))
            later = (2 if 2 * gm + 2 < NVS else 0) + (2 if nxt else 0)
            A(f"s_waitcnt lgkmcnt({0 if (stamps or dbg) and gm == 0 else later})")
        else:
            wait_for(vidx[2 * gm + 1])
        s0, s1 = slot(vslot(2 * gm)), slot(vslot(2 * gm + 1))
        c0, c1 = ("0", "0") if gm == 0 else ("v[20:23]", "v[24:27]")
        A(f"v_mfma_f32_16x16x32_bf16 v[20:23], {vr(AB[gm & 1])}, {vr(s0)}, {c0}")
        A(f"v_mfma_f32_16x16x32_bf16 v[24:27], {vr(AB[gm & 1])}, {vr(s1)}, {c1}")
        if gm < last_issue:
            mw_next()
        if nv < 64 and 2 * gm >= NVS:
            for c in range(2):
                A(f"s_waitcnt vmcnt({DV - 1})")
                vidx[nv] = v_issue(nv)
                nv += 1
        if gm == last_issue:
            assert nmw[0] == 16 and nv == 64
            tail_setup("s", False)
            A("s_lshl_b32 s13, s3, 11")
            A("v_add_u32 v30, s13, v31")
            if hint:
                A("s_lshl_b32 s71, s4, 3")
                A("s_add_u32 s71, s71, s7")
                A("s_lshl_b32 s71, s71, 2")
                A("s_add_u32 s71, s71, s5")
                A("s_lshl_b32 s71, s71, 5")
                A("s_add_u32 s71, s71, s3")
                A("s_lshl_b32 s71, s71, 2")
                A(f"s_add_u32 s71, s71, {WS_ML + 32}")
                A("v_mov_b32 v28, s45")
                A("v_mov_b32 v29, 0")
                A("s_and_b32 s13, s4, 1")
                A("s_or_b32 s13, s13, s3")
                A("s_cmp_eq_u32 s13, 0")
                A("s_cselect_b64 s[72:73], -1, 0")
        if hint and gm == GH:
            A("s_mov_b64 exec, 1")
            A("buffer_store_dword v28, v29, s[48:51], s71 offen sc1")
            A("s_mov_b64 exec, -1")
            issued[0] += 1
        if hint and gm == GL:
            A("s_mov_b64 exec, s[72:73]")
            A("buffer_load_dwordx4 v[56:59], v193, s[48:51], s77 offen offset:16 sc1")
            A("s_mov_b64 exec, -1")
            issued[0] += 1
    A(f"ds_write_b128 v30, v[20:23] offset:{L_OB}")
    A(f"ds_write_b128 v30, v[24:27] offset:{L_OB + 1024}")
    A("s_waitcnt lgkmcnt(0)")
    stamp(2)
    A("s_barrier")
    stamp(4)
    A("s_branch L_fin" if "x" in abl else "s_branch L_tail_s")

    A("; ---------------- helper ----------------")
    A("L_helper:")
    A("v_lshlrev_b32 v2, 4, v1")
    A("v_lshrrev_b32 v3, 4, v1")
    A("v_bfe_u32 v5, v1, 1, 3")
    A("v_and_b32 v6, 1, v1")
    A("v_lshlrev_b32 v6, 4, v6")
    A("v_lshl_add_u32 v6, v3, 5, v6")
    A("v_lshl_add_u32 v7, v5, 13, v6")
    A("v_mul_u32_u24 v5, 5376, v5")
    A("v_add_u32 v6, v5, v6")
    A("v_and_b32 v4, 15, v1")
    A("s_mov_b32 s85, 0")
    A("s_or_b32 s13, s9, s12")
    A("s_cbranch_scc0 L_noprio")
    if prio:
        A(f"s_setprio {prio}")
    A("L_noprio:")
    A("s_mov_b32 s50, %d" % WS_SIZE); A("s_mov_b32 s51, 0x20000")
    A("s_mov_b32 s54, %d" % (448 * 5376)); A("s_mov_b32 s55, 0x20000")
    A("s_mov_b32 s58, %d" % (448 * 8192)); A("s_mov_b32 s59, 0x20000")
    A("v_mov_b32 v8, 0"); A("v_mov_b32 v9, 0"); A("v_mov_b32 v10, 0"); A("v_mov_b32 v11, 0")
    A(f"ds_write_b128 v8, v[8:11] offset:{L_CNT1}")
    A(f"ds_write_b32 v8, v8 offset:{L_CNT3}")
    A("s_waitcnt lgkmcnt(0)")
    A("s_load_dword s44, s[42:43], 0")
    A("s_barrier")
    if "x" in abl:
        A("v_mov_b32 v9, 1")
        A(f"ds_write_b32 v8, v9 offset:{L_QF}")
        A("s_waitcnt lgkmcnt(0)")
        if "2s" in abl:
            ldsspin("Z", L_CNT2, 4, 16, 17)
        if "b" in abl:
            A("s_barrier")
        A("s_branch L_fin")
    A("s_mov_b32 s48, s42"); A("s_mov_b32 s49, s43")
    A("s_mov_b32 s52, s36"); A("s_mov_b32 s53, s37")
    A("s_mov_b32 s56, s22"); A("s_mov_b32 s57, s23")
    A("s_cmp_lg_u32 s9, 0")
    A("s_cbranch_scc1 L_p1")
    A("s_cmp_lg_u32 s8, 2")
    A("s_cbranch_scc1 L_np2")
    if assist:
        A("s_lshr_b32 s13, s2, 3")
        A("s_mul_i32 s13, s13, 14")
        A("v_lshrrev_b32 v16, 1, v1")
        A("v_add_u32 v16, s13, v16")
        A("v_mul_u32_u24 v16, 5376, v16")
        A("v_and_b32 v17, 1, v1")
        A("v_mul_u32_u24 v17, 896, v17")
        A("s_lshl_b32 s13, s6, 7")
        A("v_add3_u32 v16, v16, v17, s13")
        A("s_mov_b64 exec, 0xfffffff")
        A("buffer_load_dword v60, v16, s[52:55], 0 offen")
        A("s_mov_b64 exec, -1")
    if pref:
        code_prefetch("a", 16)
    A("L_np2:")
    A("s_cmp_lg_u32 s12, 0")
    A("s_cbranch_scc1 L_p2")
    A("s_branch L_wts")

    def tile_dma(sd, va, rowbytes, so, lds0, pol):
        for t in range(14):
            A(f"s_add_u32 m0, s15, {lds0 + 1024 * t}")
            A(f"buffer_load_dwordx4 v{va}, {sd}, s{so} offen {pol} lds")
            if t < 13:
                A(f"s_add_u32 s{so}, s{so}, {8 * rowbytes}")

    def tile_addr():
        A("v_lshrrev_b32 v24, 1, v3")
        A("v_lshlrev_b32 v24, 10, v24")
        A("v_and_b32 v25, 1, v3")
        A("v_lshl_add_u32 v24, v25, 7, v24")
        A("v_lshl_add_u32 v24, v4, 3, v24")
        A("s_lshl_b32 s13, s8, 8")
        A(f"s_add_u32 s13, s13, {L_W1}")
        A("v_add_u32 v24, s13, v24")
        A(f"v_add_u32 v25, {56 * 1024}, v24")
        A("v_and_b32 v21, 7, v1")
        A(f"v_mul_u32_u24 v20, {SC_RS}, v21")
        A("v_lshl_add_u32 v20, v3, 3, v20")
        A(f"v_add_u32 v20, {L_SC}, v20")

    def tile_reads(kb, nh=2):
        for hf in range(nh):
            A(f"ds_read_b64_tr_b16 {vr(120 + 56 * hf + 4 * kb, 2)}, v{24 + hf} offset:{4096 * kb}")
            A(f"ds_read_b64_tr_b16 {vr(122 + 56 * hf + 4 * kb, 2)}, v{24 + hf} offset:{4096 * kb + 2048}")

    def tile_mfma(nh=2):
        for kb in range(14):
            A(f"v_mfma_f32_16x16x32_bf16 v[24:27], {vr(120 + 4 * kb)}, {vr(64 + 4 * kb)}, {'0' if kb == 0 else 'v[24:27]'}")
            if nh == 2:
                A(f"v_mfma_f32_16x16x32_bf16 v[32:35], {vr(176 + 4 * kb)}, {vr(64 + 4 * kb)}, {'0' if kb == 0 else 'v[32:35]'}")
        for r in (29, 31, 37, 39):
            A(f"v_mov_b32 v{r}, s45")

    def tile_pack():
        A("v_cvt_pk_bf16_f32 v28, v24, v25")
        A("v_cvt_pk_bf16_f32 v30, v26, v27")
        A("v_cvt_pk_bf16_f32 v36, v32, v33")
        A("v_cvt_pk_bf16_f32 v38, v34, v35")

    A("L_p1:")
    A("s_mul_i32 s13, s8, 1792")
    A("v_add_u32 v5, s13, v2")
    A("global_load_dwordx4 v[8:11], v5, s[34:35]")
    A("s_mov_b32 exec_hi, 0xffff")
    A("global_load_dwordx4 v[12:15], v5, s[34:35] offset:1024")
    A("s_mov_b32 exec_hi, -1")
    A("v_and_b32 v16, 7, v1")
    A("v_mul_u32_u24 v16, 896, v16")
    A("v_lshl_add_u32 v16, v3, 3, v16")
    A("s_lshl_b32 s13, s6, 7")
    A("s_lshl_b32 s14, s8, 5")
    A("s_add_u32 s13, s13, s14")
    A("s_cmp_eq_u32 s9, 1")
    A("s_cselect_b32 s13, s13, 0")
    A("v_add_u32 v16, s13, v16")
    A("global_load_dwordx2 v[18:19], v16, s[16:17]")
    A("v_lshrrev_b32 v16, 3, v1")
    A("v_mul_u32_u24 v16, 896, v16")
    A("v_and_b32 v17, 7, v1")
    A("v_lshl_add_u32 v16, v17, 4, v16")
    A("s_cmp_lg_u32 s8, 2")
    A("s_cbranch_scc1 L_nox")
    for t in range(7):
        A(f"global_load_dwordx4 {vr(64 + 4 * t)}, v16, s[16:17] offset:{128 * t}")
    A("L_nox:")
    A("s_lshl_b32 s11, s10, 8")
    A("s_lshl_b32 s13, s10, 7")
    A("s_add_u32 s14, s13, 2304")
    A("s_cmp_eq_u32 s9, 3")
    A("s_cselect_b32 s11, s14, s11")
    A("s_add_u32 s14, s11, 1792")
    A("s_movk_i32 s15, 128")
    A("s_cmp_eq_u32 s9, 1")
    A("s_cselect_b32 s13, s13, s14")
    A("s_cselect_b32 s14, 896, s15")
    A(f"s_mul_i32 s15, s8, {14 * 8 * 5376}")
    A("s_add_u32 s13, s13, s15")
    A("s_add_u32 s14, s13, s14")
    A(f"s_mul_i32 s15, s8, {14 * 1024}")
    tile_dma("s[52:55]", 6, 5376, 13, L_W1, ppol)
    A("s_waitcnt vmcnt(14)")
    A("s_cmp_eq_u32 s9, 3")
    A("s_cbranch_scc1 L_onehalf")
    tile_dma("s[52:55]", 6, 5376, 14, L_W1 + 56 * 1024, ppol)
    A("L_onehalf:")
    stamp(1, 2)
    A(f"s_mov_b32 s13, {f2u(-LOG2E):#x}")
    for k in range(8):
        d = 8 + k
        a, b_ = 20 + 4 * k, 21 + 4 * k
        A(f"v_lshlrev_b32 v{a}, 16, v{d}")
        A(f"v_and_b32 v{b_}, s46, v{d}")
        A(f"v_mul_f32 v{a + 2}, s13, v{a}")
        A(f"v_mul_f32 v{a + 3}, s13, v{b_}")
        A(f"v_exp_f32 v{a + 2}, v{a + 2}")
        A(f"v_exp_f32 v{a + 3}, v{a + 3}")
    for k in range(8):
        a = 20 + 4 * k
        A(f"v_add_f32 v{a + 2}, 1.0, v{a + 2}")
        A(f"v_add_f32 v{a + 3}, 1.0, v{a + 3}")
        A(f"v_rcp_f32 v{a + 2}, v{a + 2}")
        A(f"v_rcp_f32 v{a + 3}, v{a + 3}")
    for k in range(8):
        a = 20 + 4 * k
        A(f"v_mul_f32 v{a}, v{a}, v{a + 2}")
        A(f"v_mul_f32 v{a + 1}, v{a + 1}, v{a + 3}")
        A(f"v_cvt_pk_bf16_f32 v{8 + k}, v{a}, v{a + 1}")
    A(f"s_mul_i32 s13, s8, {2 * SC_RS}")
    A("v_add_u32 v16, s13, v2")
    A("v_add_u32 v17, 16, v16")
    A("v_cmp_le_u32 vcc, 56, v1")
    A("v_cndmask_b32 v16, v16, v17, vcc")
    A(f"ds_write_b128 v16, v[8:11] offset:{L_SC}")
    A("s_mov_b32 exec_hi, 0xffff")
    A(f"ds_write_b128 v17, v[12:15] offset:{L_SC + 1024}")
    A("s_mov_b32 exec_hi, -1")
    A("s_cmp_lg_u32 s8, 2")
    A("s_cbranch_scc1 L_nostat")
    A("v_mov_b32 v20, 0"); A("v_mov_b32 v21, 0"); A("v_mov_b32 v22, 0"); A("v_mov_b32 v23, 0")
    A("v_mov_b32 v24, 0x3f803f80")
    for k in range(28):
        A(f"v_dot2c_f32_bf16 v{20 + 2 * (k & 1)}, v{64 + k}, v24")
        A(f"v_dot2c_f32_bf16 v{21 + 2 * (k & 1)}, v{64 + k}, v{64 + k}")
    A("v_add_f32 v20, v20, v22")
    A("v_add_f32 v21, v21, v23")
    for ctl in ("quad_perm:[1,0,3,2]", "quad_perm:[2,3,0,1]", "row_half_mirror"):
        A(f"v_add_f32_dpp v20, v20, v20 {ctl} {DPPF}")
        A(f"v_add_f32_dpp v21, v21, v21 {ctl} {DPPF}")
    A(f"s_mov_b32 s13, {f2u(1.0 / 448):#x}")
    A("v_mul_f32 v20, s13, v20")
    A("v_mul_f32 v21, s13, v21")
    A("v_fma_f32 v21, -v20, v20, v21")
    A("v_max_f32 v21, 0, v21")
    rnd2(20, 21, 22)
    A(f"v_add_f32 v21, {f2u(1e-5):#x}, v21")
    rnd1(21)
    A("v_sqrt_f32 v21, v21")
    rnd1(21)
    A("v_rcp_f32 v21, v21")
    A("v_and_b32 v22, 0x38, v1")
    A(f"ds_write_b64 v22, v[20:21] offset:{L_ST1}")
    A("L_nostat:")
    tile_addr()
    A("v_lshlrev_b32 v21, 3, v21")
    stamp(2, 2)
    A("s_waitcnt vmcnt(0) lgkmcnt(0)")
    stamp(3, 2)
    tag_from_epoch()
    hbar()
    A(f"ds_read_b64 v[22:23], v21 offset:{L_ST1}")
    for kb in range(14):
        A(f"ds_read2_b64 {vr(64 + 4 * kb)}, v20 offset0:{8 * kb} offset1:{8 * kb + 4}")
        tile_reads(kb)
    A("s_waitcnt lgkmcnt(0)")
    ldsinc(L_CNT3, 16, 17)
    tile_mfma()
    A("s_cmp_eq_u32 s9, 1")
    A("s_cbranch_scc1 L_hepi")
    A("v_lshlrev_b32 v16, 13, v4")
    A("v_lshl_add_u32 v16, v3, 4, v16")
    A("s_lshl_b32 s13, s11, 1")
    A("s_lshl_b32 s14, s8, 6")
    A("s_add_u32 s13, s13, s14")
    A(f"s_add_u32 s13, s13, {WS_G}")
    tile_pack()
    A("s_mov_b32 exec_lo, 0x00ff00ff"); A("s_mov_b32 exec_hi, 0x00ff00ff")
    A("buffer_store_dwordx4 v[28:31], v16, s[48:51], s13 offen sc1")
    A("s_cmp_eq_u32 s9, 3")
    A("s_cbranch_scc1 L_p1done")
    A("buffer_store_dwordx4 v[36:39], v16, s[48:51], s13 offen offset:256 sc1")
    A("s_branch L_p1done")
    A("L_hepi:")
    A("v_lshlrev_b32 v40, 16, v18"); A("v_and_b32 v41, s46, v18"); A("v_lshlrev_b32 v42, 16, v19"); A("v_and_b32 v43, s46, v19")
    for r in range(4):
        A(f"v_sub_f32 v{40 + r}, v{40 + r}, v22")
    rnd2(40, 41, 46); rnd2(42, 43, 47)
    for r in range(4):
        A(f"v_mul_f32 v{40 + r}, v{40 + r}, v23")
    rnd2(40, 41, 46); rnd2(42, 43, 47)
    rnd2(32, 33, 46); rnd2(34, 35, 47); rnd2(24, 25, 48); rnd2(26, 27, 49)
    for r in range(4):
        A(f"v_add_f32 v{32 + r}, 1.0, v{32 + r}")
    rnd2(32, 33, 46); rnd2(34, 35, 47)
    for r in range(4):
        A(f"v_mul_f32 v{40 + r}, v{40 + r}, v{32 + r}")
    rnd2(40, 41, 46); rnd2(42, 43, 47)
    for r in range(4):
        A(f"v_add_f32 v{40 + r}, v{40 + r}, v{24 + r}")
    A("v_cvt_pk_bf16_f32 v28, v40, v41")
    A("v_cvt_pk_bf16_f32 v30, v42, v43")
    A("v_lshlrev_b32 v16, 6, v4")
    A("v_lshl_add_u32 v16, v3, 4, v16")
    A("s_lshl_b32 s13, s10, 2")
    A("s_add_u32 s13, s13, s8")
    A("s_lshl_b32 s13, s13, 9")
    A(f"s_add_u32 s13, s13, {WS_H}")
    A("s_mov_b32 exec_lo, 0x00ff00ff"); A("s_mov_b32 exec_hi, 0x00ff00ff")
    A("buffer_store_dwordx4 v[28:31], v16, s[48:51], s13 offen sc1")
    A("L_p1done:")
    A("s_mov_b64 exec, -1")
    stamp(1)
    stamp(4, 2)
    A("s_setprio 0")
    A("s_branch L_wts")

    A("L_p2:")
    A(f"s_add_u32 s11, s7, {qx}")
    A("s_and_b32 s11, s11, 7")
    A("s_lshl_b32 s13, s11, 10")
    A("s_lshl_b32 s14, s4, 7")
    A("s_add_u32 s13, s13, s14")
    A(f"s_mul_i32 s14, s8, {112 * 8192}")
    A("s_add_u32 s13, s13, s14")
    if p2s:
        A("s_and_b32 s14, s5, 1")
        A("s_lshl_b32 s14, s14, 7")
        A("s_add_u32 s13, s13, s14")
    else:
        A("s_add_u32 s14, s13, 128")
    A(f"s_mul_i32 s15, s8, {14 * 1024}")
    tile_dma("s[56:59]", 7, 8192, 13, L_W1, qpol)
    if not p2s:
        tile_dma("s[56:59]", 7, 8192, 14, L_W1 + 56 * 1024, qpol)
    tile_addr()
    A("v_lshlrev_b32 v18, 6, v21")
    A("v_lshl_add_u32 v18, v3, 4, v18")
    A("v_bfe_u32 v21, v1, 3, 1")
    A("v_lshl_add_u32 v19, v21, 9, v18")
    A("s_mul_i32 s13, s8, 224")
    A("v_add_u32 v54, s13, v20")
    A("v_lshl_add_u32 v55, v21, 5, v54")
    A("s_lshl_b32 s15, s11, 5")
    A("s_lshl_b32 s13, s4, 2")
    A("s_add_u32 s15, s15, s13")
    A("s_add_u32 s15, s15, s8")
    if p2s:
        A("s_and_b32 s13, s5, 1")
        A("s_lshl_b32 s13, s13, 2")
        A("s_add_u32 s15, s15, s13")
    A("s_lshl_b32 s15, s15, 9")
    A(f"s_add_u32 s15, s15, {WS_Q}")
    A("s_mul_i32 s11, s8, 3584")
    A(f"s_add_u32 s11, s11, {WS_H}")
    A("s_waitcnt vmcnt(0) lgkmcnt(0)")
    tag_from_epoch()
    hbar()
    stamp(5, 2)
    for kb in range(14):
        tile_reads(kb, 1 if p2s else 2)
    A("s_waitcnt lgkmcnt(0)")
    ldsinc(L_CNT3, 16, 17)

    def issueH():
        for n in range(4):
            A(f"buffer_load_dwordx4 {vr(24 + 4 * n)}, v{19 if n < 3 else 18}, s[48:51], s11 offen offset:{1024 * n} sc1")
    poll("H", issueH, [24 + 4 * n for n in range(4)], 22)
    stamp(2)
    stamp(6, 2)
    for n in range(4):
        A(f"v_mov_b32 v{25 + 4 * n}, v{26 + 4 * n}")
    for n in range(4):
        A(f"ds_write_b64 v{55 if n < 3 else 54}, {vr(24 + 4 * n, 2)} offset:{64 * n}")
    A("s_waitcnt lgkmcnt(0)")
    hbar()
    for kb in range(14):
        A(f"ds_read2_b64 {vr(64 + 4 * kb)}, v20 offset0:{8 * kb} offset1:{8 * kb + 4}")
    A("s_waitcnt lgkmcnt(0)")
    tile_mfma(1 if p2s else 2)
    tile_pack()
    A("s_mov_b32 exec_lo, 0x00ff00ff"); A("s_mov_b32 exec_hi, 0x00ff00ff")
    if "s" not in abl:
        A("buffer_store_dwordx4 v[28:31], v18, s[48:51], s15 offen sc1")
        if not p2s:
            A("buffer_store_dwordx4 v[36:39], v18, s[48:51], s15 offen offset:2048 sc1")
    A("s_mov_b64 exec, -1")
    A("s_setprio 0")

    A("L_wts:")
    mw_setup("h", True)
    A("s_cmp_lt_u32 s47, 28")
    A("s_cbranch_scc1 L_wf")
    A("s_cmp_eq_u32 s8, 3")
    A("s_cselect_b32 s13, s12, 0")
    A("s_cmp_lg_u32 s13, 0")
    A("s_cbranch_scc1 L_q")
    A("L_wt1:")
    for t in range(16):
        if t == R1T:
            A("s_cmp_eq_u32 s8, 3")
            A("s_cselect_b32 s13, s12, 1")
            A("s_cmp_eq_u32 s13, 0")
            A("s_cbranch_scc1 L_q")
            A("L_wt2:")
        if t >= W:
            A(f"s_waitcnt vmcnt({W - 1})")
        mw_issue(t)
    if R1T >= 16:
        A("s_cmp_eq_u32 s8, 3")
        A("s_cselect_b32 s13, s12, 1")
        A("s_cmp_eq_u32 s13, 0")
        A("s_cbranch_scc1 L_q")
        A("L_wt2:")
    A("s_branch L_duty")
    A("L_wf:")
    srd(64, 32, 1792 * 896)
    A("s_cmp_eq_u32 s8, 3")
    A("s_cselect_b32 s13, 7, 15")
    A("v_and_b32 v5, s13, v1")
    A("v_mul_u32_u24 v59, 1792, v3")
    A("v_lshl_add_u32 v59, v5, 4, v59")
    A(f"s_mul_i32 s11, s47, {64 * 896}")
    A("s_lshl_b32 s13, s8, 8")
    A("s_add_u32 s11, s11, s13")
    for n in range(28):
        if n == R1F:
            A("s_cmp_eq_u32 s8, 3")
            A("s_cbranch_scc1 L_q")
            A("L_wf2:")
        if n >= W:
            A(f"s_waitcnt vmcnt({W - 1})")
        if n < 12:
            mw_issue(n)
        elif "w" not in abl:
            t = n - 12
            A(f"buffer_load_dwordx4 {vr(WD(t))}, v59, s[64:67], s11 offen offset:{(t & 1) * 896} {wpol}")
            if t & 1 and t < 15:
                A("s_add_u32 s11, s11, 7168")
    if R1F >= 28:
        A("s_cmp_eq_u32 s8, 3")
        A("s_cbranch_scc1 L_q")
        A("L_wf2:")
    A("s_branch L_duty")
    A("L_q:")
    if prio:
        A(f"s_setprio {prio}")
    A("v_bfe_u32 v52, v1, 3, 1")
    A("v_lshlrev_b32 v52, 13, v52")
    A("v_lshl_add_u32 v52, v3, 11, v52")
    A("v_bfe_u32 v53, v1, 1, 2")
    A("v_lshl_add_u32 v52, v53, 9, v52")
    A("v_and_b32 v53, 1, v1")
    A("v_lshl_add_u32 v52, v53, 5, v52")
    A("s_lshl_b32 s68, s7, 14")
    A("s_lshl_b32 s13, s4, 6")
    A("s_add_u32 s68, s68, s13")
    A(f"s_add_u32 s68, s68, {WS_Q}")
    A("s_waitcnt lgkmcnt(0)")
    tag_from_epoch()
    A("v_mov_b32 v16, s45")
    A("s_lshl_b32 s13, s2, 2")
    A(f"s_add_u32 s13, s13, {WS_R}")
    A("v_mov_b32 v17, 0")
    A("s_mov_b64 exec, 1")
    if "r" not in abl:
        A("buffer_store_dword v16, v17, s[48:51], s13 offen sc1")
    A("s_mov_b64 exec, -1")

    def issueQ():
        A("buffer_load_dwordx4 v[32:35], v52, s[48:51], s68 offen sc1")
        A("buffer_load_dwordx4 v[36:39], v52, s[48:51], s68 offen offset:16 sc1")
    poll("Q", issueQ, [32, 36], 22)
    A("v_mov_b32 v33, v34")
    A("v_mov_b32 v34, v36")
    A("v_mov_b32 v35, v38")
    A("v_mov_b32 v16, 0")
    A("v_mov_b32 v22, 1")
    A("v_mov_b32 v23, s45")
    A(f"ds_write_b128 v2, v[32:35] offset:{L_QL}")
    A(f"ds_write_b64 v16, v[22:23] offset:{L_QF}")
    stamp(3)
    A("s_setprio 0")
    A("s_cmp_lt_u32 s47, 28")
    A("s_cbranch_scc1 L_wf2")
    A("s_cmp_lg_u32 s12, 0")
    A("s_cbranch_scc1 L_wt1")
    A("s_branch L_wt2")

    A("L_duty:")
    ldsspin("T", L_QF, 1, 4, 5)
    A(f"ds_read_b32 v5, v4 offset:{L_TAG}")
    A("s_waitcnt lgkmcnt(0)")
    A("v_readfirstlane_b32 s45, v5")
    masks(16, 4)
    tail_setup("h", True)
    A("v_lshrrev_b32 v240, 5, v1")
    A("v_lshlrev_b32 v241, 4, v240")
    A("v_lshlrev_b32 v240, 9, v240")
    A("v_bfe_u32 v4, v1, 1, 1")
    A("v_lshl_add_u32 v240, v4, 8, v240")
    A("v_bfe_u32 v4, v1, 2, 3")
    A("v_lshl_add_u32 v240, v4, 4, v240")
    A("v_and_b32 v4, 1, v1")
    A("v_lshl_add_u32 v240, v4, 3, v240")
    A("s_lshr_b32 s13, s8, 1")
    A("s_lshl_b32 s13, s13, 10")
    A("s_and_b32 s14, s8, 1")
    A("s_lshl_b32 s14, s14, 7")
    A("s_add_u32 s13, s13, s14")
    A("v_add_u32 v240, s13, v240")
    A("s_lshl_b32 s72, s4, 3")
    A("s_add_u32 s72, s72, s7")
    A("s_lshl_b32 s72, s72, 2")
    A("s_add_u32 s72, s72, s8")
    A("s_lshl_b32 s72, s72, 2")
    A("s_add_u32 s72, s72, s5")
    A("s_lshl_b32 s72, s72, 10")
    A(f"s_add_u32 s72, s72, {WS_OA}")
    A("v_mov_b32 v24, 0"); A("v_mov_b32 v26, 0")
    A("s_not_b32 s13, s45")
    A("v_mov_b32 v25, s13"); A("v_mov_b32 v27, s13")
    if apre:
        A("buffer_load_dwordx4 v[60:63], v2, s[48:51], s72 offen sc1")
    A("s_cmp_lt_u32 s47, 28")
    A("s_cbranch_scc1 L_dutyf")
    if ypre:
        A("s_bitcmp1_b32 s4, 0")
        A("s_cbranch_scc1 L_duty2")
        A("s_cmp_ge_u32 s8, 2")
        A("s_cbranch_scc1 L_duty2")
        A("s_mov_b64 exec, s[78:79]")
        A("buffer_store_dwordx2 v[24:25], v196, s[48:51], s73 offen sc1")
        A("s_mov_b64 exec, -1")
    A("s_branch L_duty2")
    A("L_dutyf:")
    A("v_bfe_u32 v5, v1, 3, 1")
    A("v_and_b32 v6, 7, v1")
    A("v_and_b32 v4, 15, v1")
    A("v_lshlrev_b32 v234, 6, v4")
    A("v_and_b32 v4, 1, v3")
    A("v_lshl_add_u32 v234, v4, 5, v234")
    A("v_lshrrev_b32 v4, 1, v3")
    A("v_lshl_add_u32 v234, v4, 4, v234")
    A("s_sub_u32 s14, s4, 1")
    A("s_lshl_b32 s73, s14, 5")
    A("s_add_u32 s73, s73, s47")
    A("s_lshl_b32 s73, s73, 12")
    A("s_lshl_b32 s13, s8, 10")
    A("s_add_u32 s73, s73, s13")
    A(f"s_add_u32 s73, s73, {WS_C}")
    A("s_add_u32 s71, s73, 0x20000")
    A("s_cmp_eq_u32 s8, 3")
    A("s_cselect_b32 s78, 0x00ff00ff, -1")
    A("s_mov_b32 s79, s78")
    A("v_lshrrev_b32 v235, 3, v1")
    A("v_lshlrev_b32 v235, 12, v235")
    A("v_lshl_add_u32 v235, v6, 4, v235")
    A("v_and_b32 v236, 0x3fff, v235")
    A("s_and_b32 s13, s8, 1")
    A("s_add_u32 s14, s14, s13")
    A("s_lshl_b32 s80, s14, 17")
    A("s_lshl_b32 s15, s47, 7")
    A("s_add_u32 s80, s80, s15")
    A(f"s_add_u32 s80, s80, {WS_C}")
    A("s_add_u32 s81, s80, 0x8000")
    A("s_add_u32 s82, s80, 0x10000")
    A("s_add_u32 s83, s80, 0x18000")
    A("s_lshl_b32 s15, s47, 5")
    A("v_lshl_add_u32 v4, v6, 2, s15")
    A("s_mul_i32 s15, s13, 896")
    A("v_add_u32 v237, s15, v4")
    A("s_lshl_b32 s15, s14, 13")
    A(f"s_add_u32 s15, s15, {WS_G + 1344 * 4}")
    A("v_lshl_add_u32 v238, v4, 1, s15")
    A("s_mul_i32 s15, s14, 896")
    A("v_add_u32 v239, s15, v4")
    if cpre:
        A("s_mov_b64 exec, s[78:79]")
        A("buffer_store_dwordx4 v[24:27], v234, s[48:51], s73 offen sc1")
        A("buffer_store_dwordx4 v[24:27], v234, s[48:51], s71 offen sc1")
        A("s_mov_b64 exec, -1")
    A("L_duty2:")
    A("s_cmp_eq_u32 s8, 0")
    A("s_cbranch_scc1 L_ml")
    A("s_cmp_lg_u32 s8, 2")
    A("s_cbranch_scc1 L_pre_x")
    if pref2:
        code_prefetch("b", 54)
    A("s_cmp_lg_u32 s2, 0" if "r" not in abl else "s_cmp_lg_u32 s2, 999")
    A("s_cbranch_scc1 L_pre_x")
    A(f"s_movk_i32 s14, {WS_R}")
    A("L_pollR:")
    A("buffer_load_dwordx4 v[28:31], v2, s[48:51], s14 offen sc1")
    A("s_waitcnt vmcnt(0)")
    A("v_xor_b32 v32, s45, v28")
    for r in (29, 30, 31):
        A(f"v_bitop3_b32 v32, v32, v{r}, s45 bitop3:0xf6")
    A("v_cmp_ne_u32 vcc, 0, v32")
    A("s_cbranch_vccz L_gotR")
    spin_fail()
    A("s_branch L_pollR")
    A("L_gotR:")
    A("s_add_u32 s44, s44, 1")
    A("v_mov_b32 v28, 0")
    A("v_mov_b32 v29, s44")
    A("s_mov_b64 exec, 1")
    A("buffer_store_dword v29, v28, s[48:51], 0 offen sc1")
    A("s_mov_b64 exec, -1")
    A("s_branch L_pre_x")
    A("L_ml:")
    ldsspin("2", L_CNT2, 4, 54, 55)
    A("v_lshrrev_b32 v54, 1, v241")
    A(f"v_add_u32 v54, {L_MLL}, v54")
    A("ds_read2_b64 v[36:39], v54 offset0:0 offset1:2")
    A("ds_read2_b64 v[40:43], v54 offset0:4 offset1:6")
    A(f"s_mov_b32 s15, {f2u(LOG2E / 16):#x}")
    A("s_lshl_b32 s13, s4, 3")
    A("s_add_u32 s13, s13, s7")
    A("s_lshl_b32 s13, s13, 2")
    A("s_add_u32 s13, s13, s5")
    A("s_lshl_b32 s13, s13, 7")
    A(f"s_add_u32 s13, s13, {WS_ML}")
    A("s_waitcnt lgkmcnt(0)")
    A("v_max3_f32 v28, v36, v38, v40")
    A("v_max_f32 v28, v28, v42")
    for w in range(4):
        A(f"v_sub_f32 v{32 + w}, v{36 + 2 * w}, v28")
        A(f"v_mul_f32 v{32 + w}, s15, v{32 + w}")
        A(f"v_exp_f32 v{32 + w}, v{32 + w}")
    A("v_mul_f32 v30, v32, v37")
    A("v_fmac_f32 v30, v33, v39")
    A("v_fmac_f32 v30, v34, v41")
    A("v_fmac_f32 v30, v35, v43")
    A("v_mov_b32 v29, s45")
    A("v_mov_b32 v31, s45")
    A("s_mov_b32 exec_lo, 1"); A("s_mov_b32 exec_hi, 1")
    A("buffer_store_dwordx4 v[28:31], v241, s[48:51], s13 offen sc1")
    A("s_mov_b64 exec, -1")
    A(f"ds_write_b128 v241, v[32:35] offset:{L_FL}")
    A("L_pre_x:")
    A("v_mov_b32 v9, s45")
    A("v_mov_b32 v11, s45")
    A("v_mov_b32 v13, s45")
    A("v_mov_b32 v15, s45")
    A("s_waitcnt vmcnt(0) lgkmcnt(0)")
    stamp(4)
    A("s_barrier")
    stamp(4, 4)

    def issueM():
        A("buffer_load_dwordx4 v[48:51], v193, s[48:51], s77 offen sc1")

    def issueA():
        for k in range(4):
            A(f"buffer_load_dwordx4 {vr(32 + 4 * k)}, v192, s[48:51], s76 offen offset:{128 * k} sc1")

    def issueG():
        for sec in range(3):
            for p in range(2):
                A(f"buffer_load_dwordx4 {vr(32 + 8 * sec + 4 * p)}, v{196 + p}, s[48:51], s67 offen offset:{1792 * sec} sc1")

    def first_loads(tag):
        A("s_cmp_lt_u32 s47, 28")
        A(f"s_cbranch_scc0 L_flj{tag}" if hint else f"s_cbranch_scc1 L_flf{tag}")
        if not hint:
            A("s_bitcmp1_b32 s4, 0")
            A(f"s_cbranch_scc1 L_flj{tag}")
            issueM()
            issueA()
            A(f"s_branch L_flj{tag}")
            A(f"L_flf{tag}:")
        A("global_load_short_d16_hi v212, v194, s[64:65]")
        A("global_load_short_d16_hi v213, v195, s[64:65]")
        issueG()
        A(f"L_flj{tag}:")

    def alltags(base, n, acc):
        A(f"v_xor_b32 v{acc}, s45, v{base}")
        for r in range(1, n):
            A(f"v_bitop3_b32 v{acc}, v{acc}, v{base + r}, s45 bitop3:0xf6")
        A(f"v_cmp_ne_u32 vcc, 0, v{acc}")
    A(f"ds_read_b128 v[24:27], v241 offset:{L_FL}")
    for w in range(4):
        A(f"ds_read_b64 {vr(56 + 2 * w, 2)}, v240 offset:{L_OB + 2048 * w}")
    A("s_waitcnt lgkmcnt(0)")
    A("v_mul_f32 v8, v24, v56")
    A("v_mul_f32 v10, v24, v57")
    for w in range(1, 4):
        A(f"v_fmac_f32 v8, v{24 + w}, v{56 + 2 * w}")
        A(f"v_fmac_f32 v10, v{24 + w}, v{57 + 2 * w}")
    A("buffer_store_dwordx4 v[8:11], v2, s[48:51], s72 offen sc1")
    stamp(1, 4)
    A("L_tail_s:")
    A("s_barrier")
    first_loads("s")

    A("L_tail:")
    if "t" in abl:
        A("s_branch L_fin")
    A("s_cmp_lt_u32 s47, 28")
    A("s_cbranch_scc1 L_ffn")
    A("s_bitcmp1_b32 s4, 0")
    A("s_cbranch_scc1 L_fin")
    A(f"s_mov_b32 s69, {f2u(LOG2E / 16):#x}")
    if hint:
        A("s_cmp_lg_u32 s3, 0")
        A("s_cbranch_scc1 L_ah")
        A("L_pollAH:")
        alltags(56, 4, 24)
        A("s_mov_b64 exec, vcc")
        A("s_cbranch_execz L_gotAH")
        spin_fail()
        A("buffer_load_dwordx4 v[56:59], v193, s[48:51], s77 offen offset:16 sc1")
        A("s_waitcnt vmcnt(0)")
        A("s_branch L_pollAH")
        A("L_gotAH:")
        A("s_mov_b64 exec, -1")
        A("L_ah:")
        A("s_barrier")
        issueM()
        issueA()
        A("s_waitcnt vmcnt(4)")
    else:
        A("s_waitcnt vmcnt(4)")
    tagacc([48], 24)
    A("s_cbranch_vccz L_mok")
    poll("M", issueM, [48], 24)
    A("L_mok:")
    A("v_mov_b32 v52, v48")
    rowfold("v_max_f32", 52, 53)
    A("v_sub_f32 v48, v48, v52")
    A("v_mul_f32 v48, s69, v48")
    A("v_exp_f32 v48, v48")
    A("v_mul_f32 v52, v48, v50")
    rowfold("v_add_f32", 52, 53)
    A("v_rcp_f32 v52, v52")
    A("v_mul_f32 v48, v48, v52")
    A("s_waitcnt vmcnt(0)")
    tagacc([32 + 4 * k for k in range(4)], 24)
    A("s_mov_b64 exec, vcc")
    A("s_cbranch_execz L_gotA")
    poll("A", issueA, [32 + 4 * k for k in range(4)], 24)
    stamp(2, 4)
    if hint:
        A("s_cmp_lg_u32 s3, 0")
        A("s_cbranch_scc1 L_nyh")
        A("s_mov_b64 exec, 1")
        A("buffer_store_dword v28, v29, s[48:51], s70 offen sc1")
        A("s_mov_b64 exec, -1")
        A("L_nyh:")
    for k in range(4):
        for c in (0, 2):
            A(f"v_mul_f32 v{32 + 4 * k + c}, v{32 + 4 * k + c}, v48")
    for c in (0, 2):
        A(f"v_permlane16_swap_b32 v{32 + c}, v{36 + c}")
        A(f"v_permlane16_swap_b32 v{40 + c}, v{44 + c}")
    for c in (0, 2):
        A(f"v_add_f32 v{32 + c}, v{32 + c}, v{36 + c}")
        A(f"v_add_f32 v{40 + c}, v{40 + c}, v{44 + c}")
    for c in (0, 2):
        A(f"v_permlane32_swap_b32 v{32 + c}, v{40 + c}")
    for c in (0, 2):
        A(f"v_add_f32 v{32 + c}, v{32 + c}, v{40 + c}")
    A("v_cvt_pk_bf16_f32 v52, v32, v32")
    A("v_cvt_pk_bf16_f32 v54, v34, v34")
    quadswap(53, 52)
    quadswap(55, 54)
    stamp(3, 4)
    gemv([(52 + 2 * (t & 1), 53 + 2 * (t & 1), t >> 1) for t in range(16)], MW)
    A(f"ds_write_b128 v194, v[20:23] offset:{L_PT}")
    A("s_waitcnt lgkmcnt(0)")
    stamp(5, 4)
    A("s_barrier")
    A("s_sub_u32 s13, s3, 4")
    A("s_cmp_ge_u32 s13, 2")
    A("s_cbranch_scc1 L_ypub")
    for w in range(4):
        A(f"ds_read2st64_b64 {vr(32 + 4 * w)}, v195 offset0:{4 * w} offset1:{4 * w + 2}")
    A("s_mov_b64 exec, s[78:79]")
    A("s_waitcnt lgkmcnt(0)")
    for a, b_ in ((32, 34), (36, 38), (40, 42), (44, 46), (32, 36), (40, 44), (32, 40)):
        pkadd(a, b_)
    A("v_cvt_pk_bf16_f32 v8, v32, v33")
    A("buffer_store_dwordx2 v[8:9], v196, s[48:51], s73 offen sc1")
    A("L_ypub:")
    stamp(5)
    stamp(6, 4)
    A("s_branch L_fin")

    A("L_ffn:")
    A("s_waitcnt vmcnt(0)")
    tagacc([32 + 4 * n for n in range(6)], 24)
    A("s_mov_b64 exec, vcc")
    A("s_cbranch_execz L_gotG")
    poll("G", issueG, [32 + 4 * n for n in range(6)], 24)
    for n in range(6):
        A(f"v_perm_b32 v{214 + n}, v{34 + 4 * n}, v{32 + 4 * n}, v201")
    A("v_add_f32 v218, 1.0, v218")
    A("v_add_f32 v219, 1.0, v219")
    rnd2(218, 219, 4)
    A("s_cmp_lt_u32 s3, 6")
    A("s_cbranch_scc1 L_nogb")
    A("L_pollB:")
    A("buffer_load_dwordx2 v[62:63], v238, s[48:51], 0 offen sc1")
    A("s_waitcnt vmcnt(0)")
    A("v_cmp_ne_u32 vcc, s45, v63")
    A("s_cbranch_vccz L_nogb")
    spin_fail()
    A("s_branch L_pollB")
    A("L_nogb:")
    if hint:
        A("s_cmp_lg_u32 s3, 0")
        A("s_cbranch_scc1 L_yh")
        A("L_pollYH:")
        A("buffer_load_dword v56, v202, s[48:51], s70 offen sc1")
        A("s_waitcnt vmcnt(0)")
        A("v_cmp_ne_u32 vcc, s45, v56")
        A("s_cbranch_vccz L_yh")
        spin_fail()
        A("s_branch L_pollYH")
        A("L_yh:")
        A("s_barrier")
    elif probe:
        def issueP():
            A("buffer_load_dwordx4 v[32:35], v192, s[48:51], s70 offen sc1")
        A("s_mov_b64 exec, s[68:69]")
        poll("P", issueP, [32], 24)

    def issueY():
        for U in range(2):
            A(f"buffer_load_dwordx4 {vr(32 + 8 * U)}, v192, s[48:51], s{76 + U} offen sc1")
            A(f"buffer_load_dwordx4 {vr(36 + 8 * U)}, v193, s[48:51], s{76 + U} offen sc1")
    poll("Y", issueY, [32 + 4 * n for n in range(4)], 24)
    stamp(0, 3)
    for U in range(2):
        A(f"v_mfma_f32_16x16x32_bf16 v[24:27], v[204:207], {vr(32 + 8 * U)}, {'0' if U == 0 else 'v[24:27]'}")
        A(f"v_mfma_f32_16x16x32_bf16 v[24:27], v[208:211], {vr(36 + 8 * U)}, v[24:27]")
    stamp(5)
    rnd2(24, 25, 4)
    pkmul(24, 214)
    rnd2(24, 25, 4)
    pkadd(24, 212)
    rnd2(24, 25, 4)
    A("v_cndmask_b32 v5, 0, v25, s[74:75]")
    A("v_add_f32 v6, v24, v5")
    A("v_mul_f32 v7, v24, v24")
    A("v_fmac_f32 v7, v5, v5")
    A(f"ds_write_b16 v194, v4 offset:{L_X1}")
    A(f"ds_write_b16_d16_hi v195, v4 offset:{L_X1}")
    for ctl in ("quad_perm:[1,0,3,2]", "quad_perm:[2,3,0,1]", "row_half_mirror"):
        A(f"v_add_f32_dpp v6, v6, v6 {ctl} {DPPF}")
        A(f"v_add_f32_dpp v7, v7, v7 {ctl} {DPPF}")
    A("v_permlane16_swap_b32 v6, v7")
    A("v_add_f32 v6, v6, v7")
    A("v_mov_b32 v7, v6")
    A("v_permlane32_swap_b32 v6, v7")
    A("v_add_f32 v6, v6, v7")
    A("s_mov_b64 exec, 0x01010101")
    A(f"ds_write_b32 v199, v6 offset:{L_ST2}")
    A("s_mov_b64 exec, -1")
    A("s_waitcnt lgkmcnt(0)")
    stamp(1, 3)
    A("s_barrier")
    for k in range(4):
        A(f"ds_read_b128 {vr(32 + 4 * k)}, v200 offset:{L_ST2 + 16 * k}")
    A(f"s_mov_b32 s69, {f2u(1.0 / 448):#x}")
    A("s_waitcnt lgkmcnt(0)")
    for a, b_ in ((32, 34), (36, 38), (40, 42), (44, 46), (32, 36), (40, 44), (32, 40)):
        pkadd(a, b_)
    A("v_mul_f32 v32, s69, v32")
    A("v_mul_f32 v33, s69, v33")
    A("v_fma_f32 v33, -v32, v32, v33")
    A("v_max_f32 v33, 0, v33")
    rnd2(32, 33, 4)
    A(f"v_add_f32 v33, {f2u(1e-5):#x}, v33")
    A("v_sub_f32 v24, v24, v32")
    A("v_sub_f32 v25, v25, v32")
    rnd1(33)
    rnd2(24, 25, 4)
    A("v_sqrt_f32 v33, v33")
    rnd1(33)
    A("v_rcp_f32 v33, v33")
    A("v_mul_f32 v24, v24, v33")
    A("v_mul_f32 v25, v25, v33")
    rnd2(24, 25, 4)
    pkmul(24, 218)
    rnd2(24, 25, 4)
    pkadd(24, 216)
    A("v_cvt_pk_bf16_f32 v52, v24, v24")
    A("v_cvt_pk_bf16_f32 v54, v25, v25")
    quadswap(53, 52)
    quadswap(55, 54)
    stamp(2, 3)
    A("s_cmp_ge_u32 s3, 4")
    gemv([(52 + 2 * (t >> 3), 53 + 2 * (t >> 3), t & 7) for t in range(16)], MW, skip_at=12, skip_label="L_gu")
    A("L_gu:")
    A("s_nop 7")
    A("ds_write2_b64 v198, v[20:21], v[22:23] offset0:0 offset1:32")
    A("s_waitcnt lgkmcnt(0)")
    stamp(3, 3)
    A("s_barrier")
    stamp(4, 3)
    A("s_cmp_lt_u32 s3, 4")
    if stamps == 1 or dbg:
        A("s_cbranch_scc0 L_t3")
        stamp(6)
        A("s_branch L_fin")
        A("L_t3:")
    else:
        A("s_cbranch_scc1 L_fin")
    for w in range(8):
        A(f"ds_read_b128 {vr(24 + 4 * w)}, v2 offset:{L_PT + 1024 * w}")
    A(f"ds_read_b32 v60, v237 offset:{L_X1}")
    A(f"s_mov_b32 s13, {f2u(-LOG2E):#x}")
    A("s_waitcnt lgkmcnt(0)")
    for a, b_ in ((0, 4), (8, 12), (16, 20), (24, 28), (0, 8), (16, 24), (0, 16)):
        pkadd(24 + a, 24 + b_)
        pkadd(26 + a, 26 + b_)
    rnd2(24, 25, 4)
    A("v_mul_f32 v24, s13, v24")
    A("v_mul_f32 v25, s13, v25")
    A("v_exp_f32 v24, v24")
    A("v_exp_f32 v25, v25")
    rnd2(26, 27, 5)
    A("v_add_f32 v24, 1.0, v24")
    A("v_add_f32 v25, 1.0, v25")
    A("v_rcp_f32 v24, v24")
    A("v_rcp_f32 v25, v25")
    rnd2(24, 25, 4)
    pkmul(24, 26)
    A("v_cvt_pk_bf16_f32 v52, v24, v24")
    A("v_cvt_pk_bf16_f32 v54, v25, v25")
    quadswap(53, 52)
    quadswap(55, 54)
    stamp(5, 3)
    gemv([(52 + 2 * (t & 1), 53 + 2 * (t & 1), t >> 1) for t in range(16)], WD)
    A("v_permlane32_swap_b32 v20, v22")
    A("v_permlane32_swap_b32 v21, v23")
    A("v_mov_b32 v8, v20")
    A("v_mov_b32 v10, v21")
    A("v_mov_b32 v12, v22")
    A("v_mov_b32 v14, v23")
    A("s_mov_b64 exec, s[78:79]")
    A("buffer_store_dwordx4 v[8:11], v234, s[48:51], s73 offen sc1")
    A("buffer_store_dwordx4 v[12:15], v234, s[48:51], s71 offen sc1")
    A("s_mov_b64 exec, -1")
    stamp(6)
    stamp(6, 3)
    A("s_cmp_lt_u32 s8, 2")
    A("s_cbranch_scc1 L_fin")

    def issueC():
        for t in range(4):
            A(f"buffer_load_dwordx4 {vr(28 + 4 * t)}, v{235 if t < 3 else 236}, s[48:51], s{80 + t} offen sc1")
    poll("C", issueC, [28 + 4 * t for t in range(4)], 44)
    A("v_add_f32 v28, v28, v32")
    A("v_add_f32 v30, v30, v34")
    A("s_mov_b32 exec_hi, 0")
    A("v_add_f32 v36, v36, v40")
    A("v_add_f32 v38, v38, v42")
    A("s_mov_b32 exec_hi, -1")
    A("v_add_f32 v28, v28, v36")
    A("v_add_f32 v30, v30, v38")
    A(f"v_add_f32_dpp v28, v28, v28 row_ror:8 {DPPF}")
    A(f"v_add_f32_dpp v30, v30, v30 row_ror:8 {DPPF}")
    A("v_permlane16_swap_b32 v28, v30")
    A("v_add_f32 v28, v28, v30")
    A("v_mov_b32 v30, v28")
    A("v_permlane32_swap_b32 v28, v30")
    A("v_add_f32 v28, v28, v30")
    A("v_mov_b32 v30, v28")
    A("v_permlane16_swap_b32 v28, v30")
    rnd2(28, 30, 29)
    A("v_lshlrev_b32 v32, 16, v62"); A("v_and_b32 v33, s46, v62")
    A("v_mul_f32 v28, v28, v32")
    A("v_mul_f32 v30, v30, v33")
    rnd2(28, 30, 29)
    A("v_lshlrev_b32 v32, 16, v60"); A("v_and_b32 v33, s46, v60")
    A("v_add_f32 v28, v28, v32")
    A("v_add_f32 v30, v30, v33")
    A("v_cvt_pk_bf16_f32 v28, v28, v30")
    A("s_mov_b64 exec, 0xff")
    A("global_store_dword v239, v28, s[38:39]")
    A("L_fin:")
    if padto:
        A("s_cmp_lg_u32 s2, 0")
        A("s_cbranch_scc1 L_end")
        A("L_padloop:")
        A("s_memrealtime s[100:101]")
        A("s_waitcnt lgkmcnt(0)")
        A("s_sub_u32 s14, s100, s86")
        A(f"s_cmp_lt_u32 s14, {padto}")
        A("s_cbranch_scc1 L_padloop")
    if dbg:
        A("s_cmp_lg_u32 s2, 32")
        A("s_cbranch_scc1 L_end")
        A("s_add_u32 s13, s3, 1")
        A("s_and_b32 s13, s13, 6")
        A("s_cmp_lg_u32 s13, 0")
        A("s_cbranch_scc1 L_end")
        A("s_mov_b64 exec, 1")
        A("s_memrealtime s[100:101]")
        A("s_lshr_b32 s13, s3, 2")
        A("s_lshl_b32 s13, s13, 5")
        A("s_waitcnt lgkmcnt(0)")
        A("v_mov_b32 v2, s13")
        for k in range(8):
            A(f"s_sub_u32 s14, s{86 + 2 * k}, s86")
            A(f"v_mov_b32 v{4 + k}, s14")
        for k in range(2):
            A(f"global_store_dwordx4 v2, {vr(4 + 4 * k)}, s[40:41] offset:{16 * k}")
    if stamps:
        A("s_mov_b64 exec, 1")
        A("s_memrealtime s[100:101]" if stamps != 3 else "s_memtime s[100:101]")
        A("s_lshl_b32 s13, s2, 3")
        A("s_add_u32 s13, s13, s3")
        A("s_lshl_b32 s13, s13, 6")
        A(f"s_add_u32 s42, s42, {512 << 20}")
        A("s_addc_u32 s43, s43, 0")
        A("s_waitcnt lgkmcnt(0)")
        A("v_mov_b32 v2, s13")
        A("s_getreg_b32 s14, hwreg(HW_REG_XCC_ID)")
        A("s_and_b32 s14, s14, 15")
        A("s_lshl_b32 s14, s14, 24")
        A("s_add_u32 s101, s101, s14")
        for k in range(16):
            A(f"v_mov_b32 v{4 + k}, s{86 + k}")
        for k in range(4):
            A(f"global_store_dwordx4 v2, {vr(4 + 4 * k)}, s[42:43] offset:{16 * k}")
    A("L_end:")
    A("s_endpgm")
    A("L_codeend:")
    A(f".fill ({NPF * 1024} - (L_codeend - L_start)) / 4, 4, 0xbf800000")
    A('.section .rodata,"a"')
    A(".p2align 6")
    A(f".amdhsa_kernel {NAME}_kernel")
    A("  .amdhsa_next_free_vgpr 256")
    A("  .amdhsa_next_free_sgpr 102")
    A("  .amdhsa_accum_offset 256")
    A("  .amdhsa_group_segment_fixed_size 0")
    A("  .amdhsa_kernarg_size 112")
    A("  .amdhsa_user_sgpr_count 2")
    A("  .amdhsa_user_sgpr_kernarg_segment_ptr 1")
    A("  .amdhsa_system_sgpr_workgroup_id_x 1")
    A(".end_amdhsa_kernel")
    txt = A.finish()
    return txt, A.npad


if __name__ == "__main__":
    out = sys.argv[1]
    kw = {}
    for a in sys.argv[2:]:
        k, v = a.split("=")
        kw[k] = int(v) if v.lstrip("-").isdigit() else v.replace("+", " ")
    txt, npad = gen(**kw)
    open(out, "w").write(txt)
    print(out, "lines", txt.count("\n"), "pads", npad)
```

```python
import sys, os, struct
sys.path.insert(0, os.path.dirname(os.path.abspath(__file__)))
from asmlib import Asm

NAME = "adaLN_cond__sliding_block_cached__glu_gated_glu__decode"

WS_YH = 0x400
WS_R, WS_H, WS_ML, WS_G, WS_Y, WS_Q, WS_OA, WS_C = 0x800, 0x1000, 0x8000, 0x10000, 0x20000, 0x40000, 0x100000, 0x200000
WS_SIZE = 0x300000
L_LOC = 20
L_CNT1, L_CNT2, L_QF, L_TAG, L_CNT3, L_FL, L_ST1, L_MLL = 0, 4, 8, 12, 16, 32, 64, 128
L_QL, L_ST2, L_X1, L_PT, L_SC, L_OB, L_W1 = 256, 1280, 1536, 4096, 12288, 19712, 32768
SC_RS = 912
LOG2E = 1.4426950408889634
NPF = 26


def f2u(x):
    return struct.unpack("<I", struct.pack("<f", x))[0]


def gen(DK=8, DV=10, RV=8, W=8, NL=32, R1T=16, R1F=24, stamps=0, dbg=0, padto=0, abl="",
        spol="nt", wpol="", ppol="", qpol="nt", rot=4096, pref=1, pref2=1, assist=1, pause=0, prio=3, qx=1,
        apre=0, aack=1, ypre=0, cpre=0, xa=1, probe=1, lsl=0, gsl=0, ax=0, GH=29, GL=30, hint=0, p2s=0, rotb=0, step=0x4000, DKL=0, DVL=0, hcls=7, W2=4, qsl=0, hsl=0, NE=8, loc=1):
    A = Asm()
    NSLOT = 56
    LDS_BYTES = L_W1 + max(112, 4 * NL) * 1024
    slot = lambda n: 32 + 4 * n
    vr = lambda r, n=4: f"v[{r}:{r + n - 1}]"
    MW = lambda t: 128 + 4 * t
    WD = lambda t: 64 + 4 * t
    AB = [224, 228]
    DPPF = "row_mask:0xf bank_mask:0xf"

    def stamp(i, mode=1):
        if stamps == 3:
            if mode == 3:
                A(f"s_memtime s[{86 + 2 * i}:{87 + 2 * i}]")
            return
        if stamps == 4:
            if mode == 4 or (mode == 1 and i == 0):
                A(f"s_memrealtime s[{86 + 2 * i}:{87 + 2 * i}]")
            return
        if ((stamps == 1 or dbg) and mode == 1) or (stamps == 2 and mode == 2) or (stamps == 2 and i == 0) or (padto and i == 0):
            A(f"s_memrealtime s[{86 + 2 * i}:{87 + 2 * i}]")

    def spin_fail():
        A("s_sub_u32 s84, s84, 1")
        A("s_cbranch_scc1 L_fin")

    def rnd2(a, b, t):
        A(f"v_cvt_pk_bf16_f32 v{t}, v{a}, v{b}")
        A(f"v_lshlrev_b32 v{a}, 16, v{t}")
        A(f"v_and_b32 v{b}, s46, v{t}")

    def rnd1(a):
        A(f"v_cvt_pk_bf16_f32 v{a}, v{a}, v{a}")
        A(f"v_and_b32 v{a}, s46, v{a}")

    def tagacc(bases, acc):
        for k, r in enumerate(bases):
            if k == 0:
                A(f"v_xor_b32 v{acc}, s45, v{r + 1}")
                A(f"v_xor_b32 v{acc + 1}, s45, v{r + 3}")
            else:
                A(f"v_bitop3_b32 v{acc}, v{acc}, v{r + 1}, s45 bitop3:0xf6")
                A(f"v_bitop3_b32 v{acc + 1}, v{acc + 1}, v{r + 3}, s45 bitop3:0xf6")
        A(f"v_or_b32 v{acc}, v{acc}, v{acc + 1}")
        A(f"v_cmp_ne_u32 vcc, 0, v{acc}")

    def poll(name, issue, bases, acc):
        if name.lower() in abl or name in abl:
            if name in abl:
                issue()
                A("s_waitcnt vmcnt(0)")
            A(f"L_got{name}:")
            A("s_mov_b64 exec, -1")
            return
        A(f"L_poll{name}:")
        issue()
        A("s_waitcnt vmcnt(0)")
        tagacc(bases, acc)
        A("s_mov_b64 exec, vcc")
        A(f"s_cbranch_execz L_got{name}")
        sl = {"Q": qsl, "H": hsl}.get(name, gsl if name in ("P", "M", "A") else 0)
        if sl:
            A(f"s_sleep {sl}")
        spin_fail()
        A(f"s_branch L_poll{name}")
        A(f"L_got{name}:")
        A("s_mov_b64 exec, -1")

    def ldsspin(name, off, n, va, vt):
        A(f"v_mov_b32 v{va}, 0")
        A(f"L_spin{name}:")
        A(f"ds_read_b32 v{vt}, v{va} offset:{off}")
        A("s_waitcnt lgkmcnt(0)")
        A(f"v_readfirstlane_b32 s13, v{vt}")
        A(f"s_cmp_ge_u32 s13, {n}")
        A(f"s_cbranch_scc1 L_spun{name}")
        if lsl and name in ("2", "S", "Q", "P", "T"):
            A(f"s_sleep {lsl}")
        spin_fail()
        A(f"s_branch L_spin{name}")
        A(f"L_spun{name}:")

    def ldsinc(off, va, vt):
        A(f"v_mov_b32 v{va}, 0")
        A(f"v_mov_b32 v{vt}, 1")
        A("s_mov_b64 exec, 1")
        A(f"ds_add_u32 v{va}, v{vt} offset:{off}")
        A("s_mov_b64 exec, -1")

    hb = [0]

    def hbar():
        hb[0] += 1
        ldsinc(L_CNT1, 16, 17)
        A("s_add_u32 s85, s85, 4")
        ldsspin(f"H{hb[0]}", L_CNT1, "s85", 16, 17)

    def masks(r0, t0):
        A(f"v_and_b32 v{t0}, 1, v1")
        A(f"v_lshlrev_b32 v{t0}, 4, v{t0}")
        A(f"v_mov_b32 v{t0 + 1}, 0xffff")
        A(f"v_lshlrev_b32 v{t0}, v{t0}, v{t0 + 1}")
        A(f"v_bfe_u32 v{t0 + 1}, v1, 1, 2")
        for r in range(4):
            A(f"v_cmp_eq_u32 vcc, {r}, v{t0 + 1}")
            A(f"v_cndmask_b32 v{r0 + r}, 0, v{t0}, vcc")

    def abuild(dst, P, Psw, x):
        for r in range(4):
            src = P if (x >> 2) == (r >> 1) else Psw
            q = x & 3
            A(f"v_and_b32_dpp v{dst + r}, v{src}, v{16 + r} quad_perm:[{q},{q},{q},{q}] {DPPF}")

    def quadswap(dst, src):
        A(f"v_mov_b32_dpp v{dst}, v{src} row_shl:4 row_mask:0xf bank_mask:0x5")
        A(f"v_mov_b32_dpp v{dst}, v{src} row_shr:4 row_mask:0xf bank_mask:0xa")

    def gemv(groups, wreg, skip_at=None, skip_label=None):
        A(".p2align 3")
        abuild(AB[0], *groups[0])
        for t in range(len(groups)):
            if t + 1 < len(groups):
                abuild(AB[(t + 1) & 1], *groups[t + 1])
            A(f"v_mfma_f32_16x16x32_bf16 v[20:23], {vr(AB[t & 1])}, {vr(wreg(t))}, {'0' if t == 0 else 'v[20:23]'}")
            if skip_at is not None and t + 1 == skip_at:
                A(f"s_cbranch_scc1 {skip_label}")

    def pkadd(a, b):
        A(f"v_pk_add_f32 v[{a}:{a + 1}], v[{a}:{a + 1}], v[{b}:{b + 1}]")

    def pkmul(a, b):
        A(f"v_pk_mul_f32 v[{a}:{a + 1}], v[{a}:{a + 1}], v[{b}:{b + 1}]")

    def rowfold(op, a, t):
        A(f"v_mov_b32 v{t}, v{a}")
        A(f"v_permlane16_swap_b32 v{a}, v{t}")
        A(f"{op} v{a}, v{a}, v{t}")
        A(f"v_mov_b32 v{t}, v{a}")
        A(f"v_permlane32_swap_b32 v{a}, v{t}")
        A(f"{op} v{a}, v{a}, v{t}")

    def srd(n, lo, size):
        A(f"s_mov_b32 s{n}, s{lo}"); A(f"s_mov_b32 s{n + 1}, s{lo + 1}"); A(f"s_mov_b32 s{n + 2}, {size}"); A(f"s_mov_b32 s{n + 3}, 0x20000")

    def code_prefetch(tag, vtmp):
        A("s_lshr_b32 s13, s2, 3")
        A(f"s_cmp_ge_u32 s13, {NPF}")
        A(f"s_cbranch_scc1 L_nopf{tag}")
        A("s_getpc_b64 s[14:15]")
        A(f"L_pc{tag}:")
        A(f"s_sub_u32 s14, s14, L_pc{tag}-L_start")
        A("s_subb_u32 s15, s15, 0")
        A("s_lshl_b32 s13, s13, 10")
        A(f"v_add_u32 v{vtmp}, s13, v2")
        A(f"global_load_dwordx4 v[60:63], v{vtmp}, s[14:15]")
        A(f"L_nopf{tag}:")

    def tag_from_epoch():
        A("s_add_u32 s45, s44, 1")
        A("s_and_b32 s45, s45, 0xbfffbfff")

    def mw_setup(tag, helper):
        A("v_lshrrev_b32 v4, 4, v1")
        A("s_cmp_lt_u32 s47, 28")
        A(f"s_cbranch_scc1 L_mwf{tag}")
        A(f"v_mul_u32_u24 v4, {16 * 896}, v4")
        A("s_cmp_eq_u32 s5, 3")
        A("s_cselect_b32 s13, 7, 15")
        A("v_and_b32 v5, s13, v1")
        A("v_lshl_add_u32 v4, v5, 4, v4")
        A("s_lshl_b32 s13, s6, 3")
        A("s_add_u32 s13, s13, s8")
        if not helper:
            A("s_add_u32 s13, s13, 4")
        A(f"s_mul_i32 s13, s13, {64 * 896}")
        A("s_lshl_b32 s14, s5, 8")
        A("s_add_u32 s13, s13, s14")
        A("s_bitcmp0_b32 s4, 0")
        A("s_cselect_b32 s72, 896, 0")
        A("s_cselect_b32 s14, -1, 0")
        A("v_and_b32 v4, s14, v4")
        A("v_mov_b32 v6, s24")
        A("v_mov_b32 v7, s25")
        A(f"s_branch L_mwj{tag}")
        A(f"L_mwf{tag}:")
        A("v_mul_u32_u24 v4, 3584, v4")
        A("v_and_b32 v5, 7, v1")
        A("v_lshl_add_u32 v4, v5, 4, v4")
        if helper:
            A(f"s_mul_i32 s13, s8, {48 * 3584}")
            A(f"s_add_u32 s13, s13, {256 * 3584}")
        else:
            A(f"s_mul_i32 s13, s8, {64 * 3584}")
        A("s_lshl_b32 s14, s47, 7")
        A("s_add_u32 s13, s13, s14")
        A("s_movk_i32 s72, 14336")
        A("s_mov_b32 vcc_lo, 0xff00ff00")
        A("s_mov_b32 vcc_hi, 0xff00ff00")
        A("v_mov_b32 v5, s28")
        A("v_mov_b32 v6, s30")
        A("v_cndmask_b32 v6, v5, v6, vcc")
        A("v_mov_b32 v5, s29")
        A("v_mov_b32 v7, s31")
        A("v_cndmask_b32 v7, v5, v7, vcc")
        A(f"L_mwj{tag}:")
        A("v_add_u32 v4, s13, v4")
        ar = 56 if helper else 28
        A(f"v_add_co_u32 v{ar}, vcc, v6, v4")
        A(f"v_addc_co_u32 v{ar + 1}, vcc, 0, v7, vcc")

    def mw_issue(t, ar=56):
        if "w" in abl:
            return 0
        A(f"global_load_dwordx4 {vr(MW(t))}, v[{ar}:{ar + 1}], off {wpol}")
        A(f"v_add_co_u32 v{ar}, s[14:15], s72, v{ar}")
        A(f"v_addc_co_u32 v{ar + 1}, s[14:15], 0, v{ar + 1}, s[14:15]")
        return 1

    def tail_setup(tag, helper):
        A("v_lshrrev_b32 v4, 4, v1")
        A("v_bfe_u32 v5, v1, 3, 1")
        A("v_and_b32 v6, 7, v1")
        A("s_cmp_lt_u32 s47, 28")
        A(f"s_cbranch_scc1 L_tsf{tag}")
        A("v_lshlrev_b32 v192, 17, v5")
        A("v_lshl_add_u32 v192, v4, 10, v192")
        A("v_lshl_add_u32 v192, v6, 4, v192")
        A("v_lshlrev_b32 v193, 12, v5")
        A("v_lshl_add_u32 v193, v4, 7, v193")
        A("s_lshl_b32 s13, s4, 3")
        A("s_add_u32 s13, s13, s6")
        A("s_lshl_b32 s76, s13, 14")
        A("s_lshl_b32 s14, s8, 12")
        A("s_add_u32 s76, s76, s14")
        A(f"s_add_u32 s76, s76, {WS_OA + (0 if helper else 512)}")
        A("s_lshl_b32 s77, s13, 9")
        A(f"s_add_u32 s77, s77, {WS_ML + (0 if helper else 16)}")
        A("s_lshl_b32 s70, s4, 4")
        A("s_lshl_b32 s14, s6, 2")
        A("s_add_u32 s70, s70, s14")
        A("s_add_u32 s70, s70, s5")
        A("s_lshl_b32 s70, s70, 2")
        A(f"s_add_u32 s70, s70, {WS_YH}")
        A("v_lshrrev_b32 v194, 1, v4")
        A("v_lshlrev_b32 v194, 9, v194")
        A("v_and_b32 v7, 15, v1")
        A("v_lshl_add_u32 v194, v7, 5, v194")
        A("v_and_b32 v7, 1, v4")
        A("v_lshl_add_u32 v194, v7, 4, v194")
        A("s_lshl_b32 s14, s3, 10")
        A("v_add_u32 v194, s14, v194")
        if helper:
            A("s_lshl_b32 s14, s8, 9")
            A("v_lshlrev_b32 v196, 3, v1")
            A(f"s_add_u32 s14, s14, {L_PT}")
            A("v_add_u32 v195, s14, v196")
            A("s_lshl_b32 s73, s13, 11")
            A("s_lshl_b32 s14, s8, 14")
            A("s_add_u32 s73, s73, s14")
            A("s_lshl_b32 s14, s5, 9")
            A("s_add_u32 s73, s73, s14")
            A(f"s_add_u32 s73, s73, {WS_Y}")
            A("s_mov_b32 s78, -1")
            A("s_cmp_eq_u32 s5, 3")
            A("s_cselect_b32 s79, 0, -1")
        A(f"s_branch L_tsj{tag}")
        A(f"L_tsf{tag}:")
        if helper:
            A("s_mul_i32 s13, s8, 48")
            A("s_add_u32 s13, s13, 256")
            A("v_min_u32 v7, 3, v6")
            A("v_cmp_gt_u32 s[74:75], 4, v6")
        else:
            A("s_lshl_b32 s13, s8, 6")
            A("v_mov_b32 v7, v6")
            A("s_mov_b64 s[74:75], -1")
        A("v_lshlrev_b32 v192, 14, v5")
        A("v_lshl_add_u32 v192, v4, 11, v192")
        A("v_lshl_add_u32 v193, v7, 4, v192")
        A("v_add_u32 v193, 128, v193")
        A("v_lshl_add_u32 v192, v6, 4, v192")
        A("s_sub_u32 s14, s4, 1")
        A("s_lshl_b32 s76, s14, 14")
        A("s_lshl_b32 s14, s13, 2")
        A("s_add_u32 s76, s76, s14")
        A(f"s_add_u32 s76, s76, {WS_Y}")
        A("s_add_u32 s77, s76, 0x2000")
        A("v_add_u32 v194, s13, v4")
        A("v_lshl_add_u32 v195, v7, 2, v194")
        A("v_add_u32 v195, 32, v195")
        A("v_lshl_add_u32 v194, v6, 2, v194")
        A("v_lshlrev_b32 v196, 13, v5")
        A("v_lshl_add_u32 v197, v7, 4, v196")
        A("v_add_u32 v197, 128, v197")
        A("v_lshl_add_u32 v196, v6, 4, v196")
        A("s_sub_u32 s14, s4, 1")
        A("s_lshl_b32 s15, s14, 13")
        A("s_lshl_b32 s13, s13, 2")
        A("s_add_u32 s15, s15, s13")
        A(f"s_add_u32 s67, s15, {WS_G}")
        A("s_mul_i32 s14, s14, 896")
        A("s_add_u32 s64, s16, s14")
        A("s_addc_u32 s65, s17, 0")
        A("v_mul_u32_u24 v7, 448, v5")
        A("v_add_lshl_u32 v194, v194, v7, 1")
        A("v_add_lshl_u32 v195, v195, v7, 1")
        A("v_mul_u32_u24 v201, 0x0202, v4")
        A("v_add_u32 v201, 0x0100, v201")
        A("v_lshlrev_b32 v201, 16, v201")
        A("v_or_b32 v201, 0x0c0c, v201")
        A("v_lshrrev_b32 v198, 1, v4")
        A("v_lshlrev_b32 v198, 7, v198")
        A("v_lshl_add_u32 v198, v5, 3, v198")
        A("v_lshl_add_u32 v198, v6, 4, v198")
        A("v_and_b32 v7, 1, v4")
        A("v_lshl_add_u32 v198, v7, 9, v198")
        A("s_lshl_b32 s14, s3, 10")
        A(f"s_add_u32 s14, s14, {L_PT}")
        A("v_add_u32 v198, s14, v198")
        A("v_lshlrev_b32 v200, 6, v5")
        A("v_lshl_add_u32 v199, v7, 2, v200")
        A("s_lshl_b32 s14, s3, 3")
        A("v_add_u32 v199, s14, v199")
        A("v_bfe_u32 v4, v1, 2, 1")
        A("v_lshlrev_b32 v4, 4, v4")
        A("v_mov_b32 v5, 0x3f80")
        A("v_lshlrev_b32 v4, v4, v5")
        A("v_and_b32 v5, 11, v1")
        for val, r in ((0, 204), (8, 206), (1, 208), (9, 210)):
            A(f"v_cmp_eq_u32 vcc, {val}, v5")
            A(f"v_cndmask_b32 v{r}, 0, v4, vcc")
            A(f"v_mov_b32 v{r + 1}, 0")
        A("v_mov_b32 v212, 0")
        A("v_mov_b32 v213, 0")
        if hint:
            A("s_lshr_b32 s70, s4, 1")
            A("s_lshl_b32 s70, s70, 7")
            A(f"s_add_u32 s70, s70, {WS_YH}")
            A("v_and_b32 v202, 31, v1")
            A("v_lshlrev_b32 v202, 2, v202")
        else:
            A("s_lshr_b32 s13, s7, 2")
            A("s_lshl_b32 s13, s13, 13")
            A("s_add_u32 s70, s76, s13")
            A("s_and_b32 s13, s7, 3")
            A("s_lshl_b32 s13, s13, 4")
            A("s_lshl_b64 s[68:69], 0xffff, s13")
        A(f"L_tsj{tag}:")

    hdr = open(os.path.join(os.path.dirname(os.path.abspath(__file__)), "header.txt")).read().rstrip("\n")
    A(hdr)
    A(f"; @launch grid=(256,1,1) block=(512,1,1) lds={LDS_BYTES}")
    A('.amdgcn_target "amdgcn-amd-amdhsa--gfx950"')
    A(".text")
    A(f".globl {NAME}_kernel")
    A(".p2align 8")
    A(f".type {NAME}_kernel,@function")
    A(f"{NAME}_kernel:")
    A("L_start:")
    A("s_cmp_ge_u32 s2, 256")
    A("s_cbranch_scc1 L_end")
    stamp(0)
    A("s_load_dwordx16 s[16:31], s[0:1], 0")
    A("s_load_dwordx8 s[32:39], s[0:1], 64")
    A("s_load_dwordx4 s[40:43], s[0:1], 96")
    A("v_lshrrev_b32 v2, 6, v0")
    A("v_and_b32 v1, 63, v0")
    A("v_readfirstlane_b32 s3, v2")
    A("s_lshr_b32 s4, s2, 5")
    A("s_bfe_u32 s5, s2, 0x20003")
    A("s_and_b32 s6, s2, 7")
    A("s_mov_b32 s9, 0")
    A("s_mov_b32 s10, s6")
    A("s_mov_b32 s12, 0")
    A("s_mov_b32 s47, 28")
    A("s_bitcmp1_b32 s4, 0")
    A("s_cbranch_scc1 L_odd")
    A("s_cmp_ge_u32 s5, 2" if p2s else "s_cmp_eq_u32 s5, 3")
    A("s_cselect_b32 s12, 1, 0")
    A("s_cmp_lg_u32 s5, 0")
    A("s_cbranch_scc1 L_roled")
    A("s_lshl_b32 s10, s4, 2")
    A("s_add_u32 s10, s10, s6")
    A("s_cmp_lt_u32 s10, 10")
    A("s_cselect_b32 s9, 3, 0")
    A("s_branch L_roled")
    A("L_odd:")
    A("s_mul_i32 s47, s6, 3")
    A("s_add_u32 s47, s47, s5")
    A("s_cmp_lg_u32 s5, 3")
    A("s_cbranch_scc1 L_roled")
    A("s_lshr_b32 s47, s6, 1")
    A("s_add_u32 s47, s47, 24")
    A("s_and_b32 s13, s6, 1")
    A("s_lshr_b32 s14, s4, 2")
    A("s_cmp_eq_u32 s13, s14")
    A("s_cbranch_scc1 L_roled")
    A("s_mov_b32 s47, 28")
    A("s_mov_b32 s9, 2")
    A("s_bitcmp1_b32 s4, 1")
    A("s_cbranch_scc1 L_roled")
    A("s_cmp_lt_u32 s6, 7")
    A("s_cselect_b32 s9, 1, 2")
    A("s_cselect_b32 s10, s6, 8")
    A("L_roled:")
    if "1" in abl:
        A("s_mov_b32 s9, 0")
    if "2" in abl:
        A("s_mov_b32 s12, 0")
    A("s_and_b32 s8, s3, 3")
    A(f"s_add_u32 s7, s6, {ax}")
    A("s_and_b32 s7, s7, 7")
    A("s_mov_b32 s46, 0xffff0000")
    A("s_mov_b32 s84, 0x20000")
    A("s_cmp_ge_u32 s3, 4")
    A("s_cbranch_scc1 L_helper")

    A("; ---------------- streamer ----------------")
    A("v_bfe_u32 v2, v1, 3, 1")
    A("v_lshlrev_b32 v2, 9, v2")
    A("v_and_b32 v3, 7, v1")
    A("v_lshl_add_u32 v2, v3, 4, v2")
    A("v_lshrrev_b32 v3, 4, v1")
    A("v_lshl_add_u32 v2, v3, 7, v2")
    A("s_lshl_b32 s68, s4, 3")
    A("s_add_u32 s68, s68, s7")
    A("s_lshl_b32 s68, s68, 22")
    A("s_lshl_b32 s69, s5, 18")
    A("s_add_u32 s68, s68, s69")
    A(f"s_add_u32 s68, s68, {6144 * 512}")
    A(f"s_mul_i32 s70, s2, {rot}")
    if rotb:
        A("s_lshr_b32 s69, s2, 6")
        A(f"s_mul_i32 s69, s69, {rotb}")
        A("s_add_u32 s70, s70, s69")
    A("s_lshl_b32 s69, s3, 12")
    A("s_add_u32 s70, s70, s69")
    A("s_and_b32 s70, s70, 0x3ffff")
    A("s_mov_b32 s71, s70")
    A("s_mov_b32 s54, 0x40000")
    A("s_mov_b32 s55, 0x20000")
    A("s_waitcnt lgkmcnt(0)")
    A("s_add_u32 s52, s18, s68")
    A("s_addc_u32 s53, s19, 0")
    if pause:
        A("s_cmp_lg_u32 s9, 1")
        A("s_cbranch_scc1 L_go")
        A("s_barrier")
        ldsspin("P", L_CNT1, 4, 4, 5)
        A("L_go:")
    issued = [0]
    NVS = NL - 8
    assert NVS % 2 == 0 and NVS >= 4 and NVS + 2 * RV <= 64 and RV <= 8
    vslot = lambda n: (n % 8) if n < NVS else 8 + (n - NVS) % (2 * RV)

    def bump(so):
        A(f"s_add_u32 s{so}, s{so}, {step}")
        A(f"s_and_b32 s{so}, s{so}, 0x3ffff")

    def k_issue(n, sl):
        A(f"buffer_load_dwordx4 {vr(slot(sl))}, v2, s[52:55], s70 offen offset:{(n % 4) * 1024} {spol}")
        if n % 4 == 3:
            bump(70)
        issued[0] += 1
        return issued[0] - 1

    def v_issue(n):
        A(f"buffer_load_dwordx4 {vr(slot(vslot(n)))}, v3, s[56:59], s71 offen offset:{[0, 256, 2048, 2304][n % 4]} {spol}")
        if n % 4 == 3 and n < 63:
            bump(71)
        issued[0] += 1
        return issued[0] - 1

    def stage_issue(k):
        if k < 8:
            n = NSLOT + k
            off, va, sd, so = (n % 4) * 1024, 2, "s[52:55]", 70
        else:
            n = k - 8
            off, va, sd, so = [0, 256, 2048, 2304][n % 4], 3, "s[56:59]", 71
        A(f"s_add_u32 m0, s85, {1024 * k - off + 4096}")
        A(f"buffer_load_dwordx4 v{va}, {sd}, s{so} offen offset:{off} {spol} lds")
        if n % 4 == 3 and not (k < 8 and n == 63):
            bump(so)
        issued[0] += 1
        return issued[0] - 1

    def stage_read(k, sl):
        A(f"ds_read_b128 {vr(slot(sl))}, v30 offset:{1024 * k}")

    def wait_for(idx):
        A(f"s_waitcnt vmcnt({min(63, issued[0] - 1 - idx)})")

    npace = [0]

    def pace(d, dl):
        if dl and dl < d:
            npace[0] += 1
            A(f"s_cbranch_vccnz L_pc{npace[0]}")
            A(f"s_waitcnt vmcnt({dl - 1})")
            A(f"L_pc{npace[0]}:")
        A(f"s_waitcnt vmcnt({d - 1})")

    def heavy_flag():
        A("s_mov_b32 s13, 0")
        if hcls & 1:
            A("s_or_b32 s13, s13, s12")
        if hcls & 2:
            A("s_or_b32 s13, s13, s9")
        if hcls & 4:
            A("s_and_b32 s14, s47, 3")
            A("s_cmp_eq_u32 s14, 3")
            A("s_cselect_b32 s14, 1, 0")
            A("s_or_b32 s13, s13, s14")
        if hcls & 8:
            A("s_cmp_lt_u32 s47, 28")
            A("s_cselect_b32 s14, 1, 0")
            A("s_or_b32 s13, s13, s14")
        A("s_mov_b32 vcc_lo, s13")
        A("s_mov_b32 vcc_hi, 0")

    nmw = [0]

    def mw_next():
        if nmw[0] < 16:
            A(f"s_waitcnt vmcnt({DV - 1})")
            issued[0] += mw_issue(nmw[0], 28)
            nmw[0] += 1

    vidx = {}
    for n in range(DK):
        k_issue(n, n)
    if pause:
        A("s_cmp_eq_u32 s9, 1")
        A("s_cbranch_scc1 L_nob0")
    A("s_barrier")
    A("L_nob0:")
    A("s_add_u32 s56, s20, s68")
    A("s_addc_u32 s57, s21, 0")
    A("s_mov_b32 s58, 0x40000")
    A("s_mov_b32 s59, 0x20000")
    A("v_and_b32 v4, 1, v3")
    A("v_lshlrev_b32 v4, 10, v4")
    A("v_lshrrev_b32 v5, 1, v3")
    A("v_lshl_add_u32 v4, v5, 9, v4")
    A("v_and_b32 v5, 15, v1")
    A("v_lshl_add_u32 v3, v5, 4, v4")
    masks(16, 4)
    mw_setup("s", False)
    srd(48, 42, WS_SIZE)
    A("s_mov_b32 s80, 0xcccccccc"); A("s_mov_b32 s81, 0xcccccccc")
    A("s_mov_b32 s82, 0xf0f0f0f0"); A("s_mov_b32 s83, 0xf0f0f0f0")
    A("v_lshlrev_b32 v31, 4, v1")
    A(f"s_mul_i32 s85, s3, {NL * 1024}")
    A(f"s_add_u32 s85, s85, {L_W1}")
    A("v_add_u32 v30, s85, v31")
    A("s_sub_u32 s85, s85, 4096")
    heavy_flag()
    for n in range(DK, NSLOT):
        pace(DK, DKL)
        if "n" in abl:
            A("s_nop 7")
        k_issue(n, n)
    A("s_or_b32 s13, s9, s12")
    A("s_cbranch_scc0 L_stagefree")
    ldsspin("S", L_CNT3, 4, 4, 5)
    A("L_stagefree:")
    sidx = {}
    for k in range(NL):
        pace(DK, DKL)
        sidx[k] = stage_issue(k)
    stamp(1)
    ldsspin("Q", L_QF, 1, 4, 5)
    A(f"ds_read_b32 v8, v4 offset:{L_TAG}")
    A(f"ds_read_b128 v[4:7], v31 offset:{L_QL}")
    A("s_mov_b32 vcc_lo, 0xaaaaaaaa")
    A("s_mov_b32 vcc_hi, 0xaaaaaaaa")
    A("s_waitcnt lgkmcnt(0)")
    A("v_readfirstlane_b32 s45, v8")
    kslot = lambda n: n if n < NSLOT else n - NSLOT
    dreg = lambda n: 20 if n == 0 else slot(kslot(n - 1))
    nv = NVS
    for m in range(8):
        if m == 7:
            A("s_waitcnt lgkmcnt(0)")
        for n in range(8 * m, 8 * m + 8):
            A(f"v_mfma_f32_16x16x32_bf16 {vr(dreg(n))}, {vr(slot(kslot(n)))}, v[4:7], 0")
        D = [dreg(n) for n in range(8 * m, 8 * m + 8)]
        for d in D:
            A(f"v_cndmask_b32 v{d}, v{d}, v{d + 1}, vcc")
            A(f"v_cndmask_b32 v{d + 2}, v{d + 2}, v{d + 3}, vcc")
        for d in D:
            A(f"v_cndmask_b32 v{d}, v{d}, v{d + 2}, s[80:81]")
        for p in range(4):
            A(f"v_permlane16_swap_b32 v{D[2 * p]}, v{D[2 * p + 1]}")
        for p in range(4):
            A(f"v_cndmask_b32 v{D[2 * p]}, v{D[2 * p]}, v{D[2 * p + 1]}, s[82:83]")
        y = [D[0], D[2], D[4], D[6]]
        z0, z1 = D[0] + 1, D[2] + 1
        A(f"v_add_f32_dpp v{z0}, v{y[0]}, v{y[0]} row_shl:4 row_mask:0xf bank_mask:0x5")
        A(f"v_add_f32_dpp v{z1}, v{y[1]}, v{y[1]} row_shl:4 row_mask:0xf bank_mask:0x5")
        A(f"v_add_f32_dpp v{z0}, v{y[2]}, v{y[2]} row_shr:4 row_mask:0xf bank_mask:0xa")
        A(f"v_add_f32_dpp v{z1}, v{y[3]}, v{y[3]} row_shr:4 row_mask:0xf bank_mask:0xa")
        t0, t1 = D[0] + 2, D[2] + 2
        A(f"v_cndmask_b32 v{t1}, v{z1}, v{z0}, s[80:81]")
        A(f"v_cndmask_b32 v{t0}, v{z0}, v{z1}, s[80:81]")
        A(f"v_add_f32_dpp v{t0}, v{t1}, v{t0} quad_perm:[2,3,0,1] {DPPF}")
        A(f"v_add_f32_dpp v{8 + m}, v{t0}, v{t0} quad_perm:[1,0,3,2] {DPPF}")
        rnd1(8 + m)
        left = NVS + 2 * RV - nv
        cnt = min(left, {1: 5, 2: 4, 3: 4}.get(m, left if m == 4 else 0))
        for c in range(cnt):
            assert vslot(nv) < 8 * m + 7
            A(f"s_waitcnt vmcnt({DV - 1})")
            vidx[nv] = v_issue(nv)
            nv += 1
        if m == 5:
            wait_for(sidx[7])
            for k in range(8):
                stage_read(k, k)
        if m >= 5:
            mw_next(); mw_next()
    assert nv == NVS + 2 * RV
    wait_for(sidx[NL - 1])
    for n in range(4):
        stage_read(8 + n, vslot(n))
    A("v_max3_f32 v20, v8, v9, v10")
    A("v_max3_f32 v21, v11, v12, v13")
    A("v_max3_f32 v20, v20, v14, v15")
    A("v_max_f32 v20, v20, v21")
    A(f"v_max_f32_dpp v20, v20, v20 quad_perm:[2,3,0,1] {DPPF}")
    A(f"v_max_f32_dpp v20, v20, v20 row_half_mirror {DPPF}")
    rowfold("v_max_f32", 20, 21)
    A(f"s_mov_b32 s69, {f2u(LOG2E / 16):#x}")
    A("v_mul_f32 v22, s69, v20")
    for m in range(8):
        A(f"v_fma_f32 v{8 + m}, v{8 + m}, s69, -v22")
    for m in range(8):
        A(f"v_exp_f32 v{8 + m}, v{8 + m}")
    A("v_add_f32 v21, v8, v9")
    A("v_add_f32 v22, v10, v11")
    A("v_add_f32 v23, v12, v13")
    A("v_add_f32 v24, v14, v15")
    A("v_add_f32 v21, v21, v22")
    A("v_add_f32 v23, v23, v24")
    A("v_add_f32 v21, v21, v23")
    for m in range(8):
        A(f"v_cvt_pk_bf16_f32 v{8 + m}, v{8 + m}, v{8 + m}")
    A(f"v_add_f32_dpp v21, v21, v21 quad_perm:[2,3,0,1] {DPPF}")
    A(f"v_add_f32_dpp v21, v21, v21 row_half_mirror {DPPF}")
    rowfold("v_add_f32", 21, 22)
    A("s_lshl_b32 s69, s3, 4")
    A("v_add_u32 v22, s69, v1")
    A("v_mov_b32 v23, 0")
    A("v_mov_b32 v24, 1")
    A("s_mov_b64 exec, 0x101")
    A(f"ds_write_b64 v22, v[20:21] offset:{L_MLL}")
    A("s_mov_b64 exec, 1")
    A(f"ds_add_u32 v23, v24 offset:{L_CNT2}")
    A("s_mov_b64 exec, -1")
    stamp(3)

    def pv_abuild(gm):
        m, x = gm >> 2, gm & 3
        for r in range(4):
            sh = 2 * (x - r)
            d = AB[gm & 1] + r
            if sh == 0:
                A(f"v_and_b32 v{d}, v{8 + m}, v{16 + r}")
            elif sh > 0:
                A(f"v_and_b32_dpp v{d}, v{8 + m}, v{16 + r} row_shl:{sh} {DPPF} bound_ctrl:0")
            else:
                A(f"v_and_b32_dpp v{d}, v{8 + m}, v{16 + r} row_shr:{-sh} {DPPF} bound_ctrl:0")

    heavy_flag()
    last_issue = 32 - RV
    pv_abuild(0)
    for gm in range(32):
        if gm + 1 < 32:
            pv_abuild(gm + 1)
        if 2 * gm < NVS:
            nxt = 2 * gm + 4 < NVS
            if nxt:
                stage_read(8 + 2 * gm + 4, vslot(2 * gm + 4))
                stage_read(8 + 2 * gm + 5, vslot(2 * gm + 5))
            later = (2 if 2 * gm + 2 < NVS else 0) + (2 if nxt else 0)
            A(f"s_waitcnt lgkmcnt({0 if (stamps or dbg) and gm == 0 else later})")
        else:
            wait_for(vidx[2 * gm + 1])
        s0, s1 = slot(vslot(2 * gm)), slot(vslot(2 * gm + 1))
        c0, c1 = ("0", "0") if gm == 0 else ("v[20:23]", "v[24:27]")
        A(f"v_mfma_f32_16x16x32_bf16 v[20:23], {vr(AB[gm & 1])}, {vr(s0)}, {c0}")
        A(f"v_mfma_f32_16x16x32_bf16 v[24:27], {vr(AB[gm & 1])}, {vr(s1)}, {c1}")
        if gm < last_issue:
            mw_next()
        if nv < 64 and 2 * gm >= NVS:
            for c in range(2):
                pace(DV, DVL)
                vidx[nv] = v_issue(nv)
                nv += 1
        if gm == last_issue:
            assert nmw[0] == 16 and nv == 64
            tail_setup("s", False)
            A("s_lshl_b32 s13, s3, 11")
            A("v_add_u32 v30, s13, v31")
            if hint:
                A("s_lshl_b32 s71, s4, 3")
                A("s_add_u32 s71, s71, s7")
                A("s_lshl_b32 s71, s71, 2")
                A("s_add_u32 s71, s71, s5")
                A("s_lshl_b32 s71, s71, 5")
                A("s_add_u32 s71, s71, s3")
                A("s_lshl_b32 s71, s71, 2")
                A(f"s_add_u32 s71, s71, {WS_ML + 32}")
                A("v_mov_b32 v28, s45")
                A("v_mov_b32 v29, 0")
                A("s_and_b32 s13, s4, 1")
                A("s_or_b32 s13, s13, s3")
                A("s_cmp_eq_u32 s13, 0")
                A("s_cselect_b64 s[72:73], -1, 0")
        if hint and gm == GH:
            A("s_mov_b64 exec, 1")
            A("buffer_store_dword v28, v29, s[48:51], s71 offen sc1")
            A("s_mov_b64 exec, -1")
            issued[0] += 1
        if hint and gm == GL:
            A("s_mov_b64 exec, s[72:73]")
            A("buffer_load_dwordx4 v[56:59], v193, s[48:51], s77 offen offset:16 sc1")
            A("s_mov_b64 exec, -1")
            issued[0] += 1
    A(f"ds_write_b128 v30, v[20:23] offset:{L_OB}")
    A(f"ds_write_b128 v30, v[24:27] offset:{L_OB + 1024}")
    A("s_waitcnt lgkmcnt(0)")
    stamp(2)
    A("s_barrier")
    stamp(4)
    A("s_branch L_fin" if "x" in abl else "s_branch L_tail_s")

    A("; ---------------- helper ----------------")
    A("L_helper:")
    A("v_lshlrev_b32 v2, 4, v1")
    A("v_lshrrev_b32 v3, 4, v1")
    A("v_bfe_u32 v5, v1, 1, 3")
    A("v_and_b32 v6, 1, v1")
    A("v_lshlrev_b32 v6, 4, v6")
    A("v_lshl_add_u32 v6, v3, 5, v6")
    A("v_lshl_add_u32 v7, v5, 13, v6")
    A("v_mul_u32_u24 v5, 5376, v5")
    A("v_add_u32 v6, v5, v6")
    A("v_and_b32 v4, 15, v1")
    A("s_mov_b32 s85, 0")
    A("s_or_b32 s13, s9, s12")
    A("s_cbranch_scc0 L_noprio")
    if prio:
        A(f"s_setprio {prio}")
    A("L_noprio:")
    A("s_mov_b32 s50, %d" % WS_SIZE); A("s_mov_b32 s51, 0x20000")
    A("s_mov_b32 s54, %d" % (448 * 5376)); A("s_mov_b32 s55, 0x20000")
    A("s_mov_b32 s58, %d" % (448 * 8192)); A("s_mov_b32 s59, 0x20000")
    A("v_mov_b32 v8, 0"); A("v_mov_b32 v9, 0"); A("v_mov_b32 v10, 0"); A("v_mov_b32 v11, 0")
    A(f"ds_write_b128 v8, v[8:11] offset:{L_CNT1}")
    A(f"ds_write_b64 v8, v[8:9] offset:{L_CNT3}")
    A("s_waitcnt lgkmcnt(0)")
    A("s_load_dword s44, s[42:43], 0")
    A("s_barrier")
    if "x" in abl:
        A("v_mov_b32 v9, 1")
        A(f"ds_write_b32 v8, v9 offset:{L_QF}")
        A("s_waitcnt lgkmcnt(0)")
        if "2s" in abl:
            ldsspin("Z", L_CNT2, 4, 16, 17)
        if "b" in abl:
            A("s_barrier")
        A("s_branch L_fin")
    A("s_mov_b32 s48, s42"); A("s_mov_b32 s49, s43")
    A("s_mov_b32 s52, s36"); A("s_mov_b32 s53, s37")
    A("s_mov_b32 s56, s22"); A("s_mov_b32 s57, s23")
    A("s_cmp_lg_u32 s9, 0")
    A("s_cbranch_scc1 L_p1")
    A("s_cmp_lg_u32 s8, 2")
    A("s_cbranch_scc1 L_np2")
    if assist:
        A("s_lshr_b32 s13, s2, 3")
        A("s_mul_i32 s13, s13, 14")
        A("v_lshrrev_b32 v16, 1, v1")
        A("v_add_u32 v16, s13, v16")
        A("v_mul_u32_u24 v16, 5376, v16")
        A("v_and_b32 v17, 1, v1")
        A("v_mul_u32_u24 v17, 896, v17")
        A("s_lshl_b32 s13, s6, 7")
        A("v_add3_u32 v16, v16, v17, s13")
        A("s_mov_b64 exec, 0xfffffff")
        A("buffer_load_dword v60, v16, s[52:55], 0 offen")
        A("s_mov_b64 exec, -1")
    if pref:
        code_prefetch("a", 16)
    A("L_np2:")
    A("s_cmp_lg_u32 s12, 0")
    A("s_cbranch_scc1 L_p2")
    A("s_branch L_wts")

    def tile_dma(sd, va, rowbytes, so, lds0, pol):
        for t in range(14):
            A(f"s_add_u32 m0, s15, {lds0 + 1024 * t}")
            A(f"buffer_load_dwordx4 v{va}, {sd}, s{so} offen {pol} lds")
            if t < 13:
                A(f"s_add_u32 s{so}, s{so}, {8 * rowbytes}")

    def tile_addr():
        A("v_lshrrev_b32 v24, 1, v3")
        A("v_lshlrev_b32 v24, 10, v24")
        A("v_and_b32 v25, 1, v3")
        A("v_lshl_add_u32 v24, v25, 7, v24")
        A("v_lshl_add_u32 v24, v4, 3, v24")
        A("s_lshl_b32 s13, s8, 8")
        A(f"s_add_u32 s13, s13, {L_W1}")
        A("v_add_u32 v24, s13, v24")
        A(f"v_add_u32 v25, {56 * 1024}, v24")
        A("v_and_b32 v21, 7, v1")
        A(f"v_mul_u32_u24 v20, {SC_RS}, v21")
        A("v_lshl_add_u32 v20, v3, 3, v20")
        A(f"v_add_u32 v20, {L_SC}, v20")

    def tile_reads(kb, nh=2, r0=120):
        for hf in range(nh):
            A(f"ds_read_b64_tr_b16 {vr(r0 + 56 * hf + 4 * kb, 2)}, v{24 + hf} offset:{4096 * kb}")
            A(f"ds_read_b64_tr_b16 {vr(r0 + 2 + 56 * hf + 4 * kb, 2)}, v{24 + hf} offset:{4096 * kb + 2048}")

    def tile_mfma(nh=2, r0=120):
        for kb in range(14):
            A(f"v_mfma_f32_16x16x32_bf16 v[24:27], {vr(r0 + 4 * kb)}, {vr(64 + 4 * kb)}, {'0' if kb == 0 else 'v[24:27]'}")
            if nh == 2:
                A(f"v_mfma_f32_16x16x32_bf16 v[32:35], {vr(176 + 4 * kb)}, {vr(64 + 4 * kb)}, {'0' if kb == 0 else 'v[32:35]'}")
        for r in (29, 31, 37, 39):
            A(f"v_mov_b32 v{r}, s45")

    def tile_pack():
        A("v_cvt_pk_bf16_f32 v28, v24, v25")
        A("v_cvt_pk_bf16_f32 v30, v26, v27")
        A("v_cvt_pk_bf16_f32 v36, v32, v33")
        A("v_cvt_pk_bf16_f32 v38, v34, v35")

    A("L_p1:")
    A("s_mul_i32 s13, s8, 1792")
    A("v_add_u32 v5, s13, v2")
    A("global_load_dwordx4 v[8:11], v5, s[34:35]")
    A("s_mov_b32 exec_hi, 0xffff")
    A("global_load_dwordx4 v[12:15], v5, s[34:35] offset:1024")
    A("s_mov_b32 exec_hi, -1")
    A("v_and_b32 v16, 7, v1")
    A("v_mul_u32_u24 v16, 896, v16")
    A("v_lshl_add_u32 v16, v3, 3, v16")
    A("s_lshl_b32 s13, s6, 7")
    A("s_lshl_b32 s14, s8, 5")
    A("s_add_u32 s13, s13, s14")
    A("s_cmp_eq_u32 s9, 1")
    A("s_cselect_b32 s13, s13, 0")
    A("v_add_u32 v16, s13, v16")
    A("global_load_dwordx2 v[18:19], v16, s[16:17]")
    A("v_lshrrev_b32 v16, 3, v1")
    A("v_mul_u32_u24 v16, 896, v16")
    A("v_and_b32 v17, 7, v1")
    A("v_lshl_add_u32 v16, v17, 4, v16")
    A("s_cmp_lg_u32 s8, 2")
    A("s_cbranch_scc1 L_nox")
    for t in range(7):
        A(f"global_load_dwordx4 {vr(64 + 4 * t)}, v16, s[16:17] offset:{128 * t}")
    A("L_nox:")
    A("s_lshl_b32 s11, s10, 8")
    A("s_lshl_b32 s13, s10, 7")
    A("s_add_u32 s14, s13, 2304")
    A("s_cmp_eq_u32 s9, 3")
    A("s_cselect_b32 s11, s14, s11")
    A("s_add_u32 s14, s11, 1792")
    A("s_movk_i32 s15, 128")
    A("s_cmp_eq_u32 s9, 1")
    A("s_cselect_b32 s13, s13, s14")
    A("s_cselect_b32 s14, 896, s15")
    A(f"s_mul_i32 s15, s8, {14 * 8 * 5376}")
    A("s_add_u32 s13, s13, s15")
    A("s_add_u32 s14, s13, s14")
    A(f"s_mul_i32 s15, s8, {14 * 1024}")
    tile_dma("s[52:55]", 6, 5376, 13, L_W1, ppol)
    A("s_waitcnt vmcnt(14)")
    A("s_cmp_eq_u32 s9, 3")
    A("s_cbranch_scc1 L_onehalf")
    tile_dma("s[52:55]", 6, 5376, 14, L_W1 + 56 * 1024, ppol)
    A("L_onehalf:")
    stamp(1, 2)
    A(f"s_mov_b32 s13, {f2u(-LOG2E):#x}")
    for k in range(8):
        d = 8 + k
        a, b_ = 20 + 4 * k, 21 + 4 * k
        A(f"v_lshlrev_b32 v{a}, 16, v{d}")
        A(f"v_and_b32 v{b_}, s46, v{d}")
        A(f"v_mul_f32 v{a + 2}, s13, v{a}")
        A(f"v_mul_f32 v{a + 3}, s13, v{b_}")
        A(f"v_exp_f32 v{a + 2}, v{a + 2}")
        A(f"v_exp_f32 v{a + 3}, v{a + 3}")
    for k in range(8):
        a = 20 + 4 * k
        A(f"v_add_f32 v{a + 2}, 1.0, v{a + 2}")
        A(f"v_add_f32 v{a + 3}, 1.0, v{a + 3}")
        A(f"v_rcp_f32 v{a + 2}, v{a + 2}")
        A(f"v_rcp_f32 v{a + 3}, v{a + 3}")
    for k in range(8):
        a = 20 + 4 * k
        A(f"v_mul_f32 v{a}, v{a}, v{a + 2}")
        A(f"v_mul_f32 v{a + 1}, v{a + 1}, v{a + 3}")
        A(f"v_cvt_pk_bf16_f32 v{8 + k}, v{a}, v{a + 1}")
    A(f"s_mul_i32 s13, s8, {2 * SC_RS}")
    A("v_add_u32 v16, s13, v2")
    A("v_add_u32 v17, 16, v16")
    A("v_cmp_le_u32 vcc, 56, v1")
    A("v_cndmask_b32 v16, v16, v17, vcc")
    A(f"ds_write_b128 v16, v[8:11] offset:{L_SC}")
    A("s_mov_b32 exec_hi, 0xffff")
    A(f"ds_write_b128 v17, v[12:15] offset:{L_SC + 1024}")
    A("s_mov_b32 exec_hi, -1")
    A("s_cmp_lg_u32 s8, 2")
    A("s_cbranch_scc1 L_nostat")
    A("v_mov_b32 v20, 0"); A("v_mov_b32 v21, 0"); A("v_mov_b32 v22, 0"); A("v_mov_b32 v23, 0")
    A("v_mov_b32 v24, 0x3f803f80")
    for k in range(28):
        A(f"v_dot2c_f32_bf16 v{20 + 2 * (k & 1)}, v{64 + k}, v24")
        A(f"v_dot2c_f32_bf16 v{21 + 2 * (k & 1)}, v{64 + k}, v{64 + k}")
    A("v_add_f32 v20, v20, v22")
    A("v_add_f32 v21, v21, v23")
    for ctl in ("quad_perm:[1,0,3,2]", "quad_perm:[2,3,0,1]", "row_half_mirror"):
        A(f"v_add_f32_dpp v20, v20, v20 {ctl} {DPPF}")
        A(f"v_add_f32_dpp v21, v21, v21 {ctl} {DPPF}")
    A(f"s_mov_b32 s13, {f2u(1.0 / 448):#x}")
    A("v_mul_f32 v20, s13, v20")
    A("v_mul_f32 v21, s13, v21")
    A("v_fma_f32 v21, -v20, v20, v21")
    A("v_max_f32 v21, 0, v21")
    rnd2(20, 21, 22)
    A(f"v_add_f32 v21, {f2u(1e-5):#x}, v21")
    rnd1(21)
    A("v_sqrt_f32 v21, v21")
    rnd1(21)
    A("v_rcp_f32 v21, v21")
    A("v_and_b32 v22, 0x38, v1")
    A(f"ds_write_b64 v22, v[20:21] offset:{L_ST1}")
    A("L_nostat:")
    tile_addr()
    A("v_lshlrev_b32 v21, 3, v21")
    stamp(2, 2)
    A("s_waitcnt vmcnt(0) lgkmcnt(0)")
    stamp(3, 2)
    tag_from_epoch()
    hbar()
    A(f"ds_read_b64 v[22:23], v21 offset:{L_ST1}")
    for kb in range(14):
        A(f"ds_read2_b64 {vr(64 + 4 * kb)}, v20 offset0:{8 * kb} offset1:{8 * kb + 4}")
        tile_reads(kb)
    A("s_waitcnt lgkmcnt(0)")
    ldsinc(L_CNT3, 16, 17)
    tile_mfma()
    A("s_cmp_eq_u32 s9, 1")
    A("s_cbranch_scc1 L_hepi")
    A("v_lshlrev_b32 v16, 13, v4")
    A("v_lshl_add_u32 v16, v3, 4, v16")
    A("s_lshl_b32 s13, s11, 1")
    A("s_lshl_b32 s14, s8, 6")
    A("s_add_u32 s13, s13, s14")
    A(f"s_add_u32 s13, s13, {WS_G}")
    tile_pack()
    A("s_mov_b32 exec_lo, 0x00ff00ff"); A("s_mov_b32 exec_hi, 0x00ff00ff")
    A("buffer_store_dwordx4 v[28:31], v16, s[48:51], s13 offen sc1")
    A("s_cmp_eq_u32 s9, 3")
    A("s_cbranch_scc1 L_p1done")
    A("buffer_store_dwordx4 v[36:39], v16, s[48:51], s13 offen offset:256 sc1")
    A("s_branch L_p1done")
    A("L_hepi:")
    A("v_lshlrev_b32 v40, 16, v18"); A("v_and_b32 v41, s46, v18"); A("v_lshlrev_b32 v42, 16, v19"); A("v_and_b32 v43, s46, v19")
    for r in range(4):
        A(f"v_sub_f32 v{40 + r}, v{40 + r}, v22")
    rnd2(40, 41, 46); rnd2(42, 43, 47)
    for r in range(4):
        A(f"v_mul_f32 v{40 + r}, v{40 + r}, v23")
    rnd2(40, 41, 46); rnd2(42, 43, 47)
    rnd2(32, 33, 46); rnd2(34, 35, 47); rnd2(24, 25, 48); rnd2(26, 27, 49)
    for r in range(4):
        A(f"v_add_f32 v{32 + r}, 1.0, v{32 + r}")
    rnd2(32, 33, 46); rnd2(34, 35, 47)
    for r in range(4):
        A(f"v_mul_f32 v{40 + r}, v{40 + r}, v{32 + r}")
    rnd2(40, 41, 46); rnd2(42, 43, 47)
    for r in range(4):
        A(f"v_add_f32 v{40 + r}, v{40 + r}, v{24 + r}")
    A("v_cvt_pk_bf16_f32 v28, v40, v41")
    A("v_cvt_pk_bf16_f32 v30, v42, v43")
    A("v_lshlrev_b32 v16, 6, v4")
    A("v_lshl_add_u32 v16, v3, 4, v16")
    A("s_lshl_b32 s13, s10, 2")
    A("s_add_u32 s13, s13, s8")
    A("s_lshl_b32 s13, s13, 9")
    A(f"s_add_u32 s13, s13, {WS_H}")
    A("s_mov_b32 exec_lo, 0x00ff00ff"); A("s_mov_b32 exec_hi, 0x00ff00ff")
    A("buffer_store_dwordx4 v[28:31], v16, s[48:51], s13 offen sc1")
    A("L_p1done:")
    A("s_mov_b64 exec, -1")
    stamp(1)
    stamp(4, 2)
    A("s_setprio 0")
    A("s_branch L_wts")

    A("L_p2:")
    A(f"s_add_u32 s11, s7, {qx}")
    A("s_and_b32 s11, s11, 7")
    A("s_lshl_b32 s13, s11, 10")
    A("s_lshl_b32 s14, s4, 7")
    A("s_add_u32 s13, s13, s14")
    A(f"s_mul_i32 s14, s8, {112 * 8192}")
    A("s_add_u32 s13, s13, s14")
    if p2s:
        A("s_and_b32 s14, s5, 1")
        A("s_lshl_b32 s14, s14, 7")
        A("s_add_u32 s13, s13, s14")
    else:
        A("s_add_u32 s14, s13, 128")
    A(f"s_mul_i32 s15, s8, {14 * 1024}")
    tile_dma("s[56:59]", 7, 8192, 13, L_W1, qpol)
    if not p2s:
        tile_dma("s[56:59]", 7, 8192, 14, L_W1 + 56 * 1024, qpol)
    tile_addr()
    A("v_lshlrev_b32 v18, 6, v21")
    A("v_lshl_add_u32 v18, v3, 4, v18")
    A("v_bfe_u32 v21, v1, 3, 1")
    A("v_lshl_add_u32 v19, v21, 9, v18")
    A("s_mul_i32 s13, s8, 224")
    A("v_add_u32 v54, s13, v20")
    A("v_lshl_add_u32 v55, v21, 5, v54")
    A("s_lshl_b32 s15, s11, 5")
    A("s_lshl_b32 s13, s4, 2")
    A("s_add_u32 s15, s15, s13")
    A("s_add_u32 s15, s15, s8")
    if p2s:
        A("s_and_b32 s13, s5, 1")
        A("s_lshl_b32 s13, s13, 2")
        A("s_add_u32 s15, s15, s13")
    A("s_lshl_b32 s15, s15, 9")
    A(f"s_add_u32 s15, s15, {WS_Q}")
    A("s_mul_i32 s11, s8, 3584")
    A(f"s_add_u32 s11, s11, {WS_H}")
    A("s_waitcnt vmcnt(0) lgkmcnt(0)")
    tag_from_epoch()
    hbar()
    stamp(5, 2)
    for kb in range(14):
        tile_reads(kb, 1 if p2s else 2, 192 if p2s == 2 else 120)
    A("s_waitcnt lgkmcnt(0)")
    ldsinc(L_CNT3, 16, 17)
    if p2s == 2:
        A("s_setprio 0")
        A("s_mov_b32 s10, s15")
        mw_setup("q", True)
        for t in range(NE):
            if t >= W2:
                A(f"s_waitcnt vmcnt({W2 - 1})")
            mw_issue(t)
        A("s_mov_b32 s15, s10")
        A("v_and_b32 v4, 15, v1")
        if prio:
            A(f"s_setprio {prio}")

    def issueH():
        for n in range(4):
            A(f"buffer_load_dwordx4 {vr(24 + 4 * n)}, v{19 if n < 3 else 18}, s[48:51], s11 offen offset:{1024 * n} sc1")
    poll("H", issueH, [24 + 4 * n for n in range(4)], 22)
    stamp(2)
    stamp(6, 2)
    for n in range(4):
        A(f"v_mov_b32 v{25 + 4 * n}, v{26 + 4 * n}")
    for n in range(4):
        A(f"ds_write_b64 v{55 if n < 3 else 54}, {vr(24 + 4 * n, 2)} offset:{64 * n}")
    A("s_waitcnt lgkmcnt(0)")
    hbar()
    for kb in range(14):
        A(f"ds_read2_b64 {vr(64 + 4 * kb)}, v20 offset0:{8 * kb} offset1:{8 * kb + 4}")
    A("s_waitcnt lgkmcnt(0)")
    tile_mfma(1 if p2s else 2, 192 if p2s == 2 else 120)
    tile_pack()
    A("s_mov_b32 exec_lo, 0x00ff00ff"); A("s_mov_b32 exec_hi, 0x00ff00ff")
    if "s" not in abl:
        A("buffer_store_dwordx4 v[28:31], v18, s[48:51], s15 offen sc1")
        if not p2s:
            A("buffer_store_dwordx4 v[36:39], v18, s[48:51], s15 offen offset:2048 sc1")
    A("s_mov_b64 exec, -1")
    A("s_setprio 0")
    if p2s == 2:
        A("s_cmp_eq_u32 s8, 3")
        A("s_cbranch_scc1 L_q")
        A("s_branch L_wtE")

    A("L_wts:")
    mw_setup("h", True)
    A("s_cmp_lt_u32 s47, 28")
    A("s_cbranch_scc1 L_wf")
    A("s_cmp_eq_u32 s8, 3")
    A("s_cselect_b32 s13, s12, 0")
    A("s_cmp_lg_u32 s13, 0")
    A("s_cbranch_scc1 L_q")
    A("L_wt1:")
    for t in range(16):
        if p2s == 2 and t == NE:
            A("L_wtE:")
        if t == R1T:
            A("s_cmp_eq_u32 s8, 3")
            A("s_cselect_b32 s13, s12, 1")
            A("s_cmp_eq_u32 s13, 0")
            A("s_cbranch_scc1 L_q")
            A("L_wt2:")
        if t >= W:
            A(f"s_waitcnt vmcnt({W - 1})")
        mw_issue(t)
    if p2s == 2 and NE == 16:
        A("L_wtE:")
    if R1T >= 16:
        A("s_cmp_eq_u32 s8, 3")
        A("s_cselect_b32 s13, s12, 1")
        A("s_cmp_eq_u32 s13, 0")
        A("s_cbranch_scc1 L_q")
        A("L_wt2:")
    A("s_branch L_duty")
    A("L_wf:")
    srd(64, 32, 1792 * 896)
    A("s_cmp_eq_u32 s8, 3")
    A("s_cselect_b32 s13, 7, 15")
    A("v_and_b32 v5, s13, v1")
    A("v_mul_u32_u24 v59, 1792, v3")
    A("v_lshl_add_u32 v59, v5, 4, v59")
    A(f"s_mul_i32 s11, s47, {64 * 896}")
    A("s_lshl_b32 s13, s8, 8")
    A("s_add_u32 s11, s11, s13")
    for n in range(28):
        if n == R1F:
            A("s_cmp_eq_u32 s8, 3")
            A("s_cbranch_scc1 L_q")
            A("L_wf2:")
        if n >= W:
            A(f"s_waitcnt vmcnt({W - 1})")
        if n < 12:
            mw_issue(n)
        elif "w" not in abl:
            t = n - 12
            A(f"buffer_load_dwordx4 {vr(WD(t))}, v59, s[64:67], s11 offen offset:{(t & 1) * 896} {wpol}")
            if t & 1 and t < 15:
                A("s_add_u32 s11, s11, 7168")
    if R1F >= 28:
        A("s_cmp_eq_u32 s8, 3")
        A("s_cbranch_scc1 L_q")
        A("L_wf2:")
    A("s_branch L_duty")
    A("L_q:")
    if prio:
        A(f"s_setprio {prio}")
    A("v_bfe_u32 v52, v1, 3, 1")
    A("v_lshlrev_b32 v52, 13, v52")
    A("v_lshl_add_u32 v52, v3, 11, v52")
    A("v_bfe_u32 v53, v1, 1, 2")
    A("v_lshl_add_u32 v52, v53, 9, v52")
    A("v_and_b32 v53, 1, v1")
    A("v_lshl_add_u32 v52, v53, 5, v52")
    A("s_lshl_b32 s68, s7, 14")
    A("s_lshl_b32 s13, s4, 6")
    A("s_add_u32 s68, s68, s13")
    A(f"s_add_u32 s68, s68, {WS_Q}")
    A("s_waitcnt lgkmcnt(0)")
    tag_from_epoch()
    A("s_getreg_b32 s13, hwreg(HW_REG_XCC_ID, 0, 4)")
    A("v_mov_b32 v16, s13")
    A("v_mov_b32 v17, s45")
    A("s_lshl_b32 s13, s2, 3")
    A(f"s_add_u32 s13, s13, {WS_R}")
    A("v_mov_b32 v18, 0")
    A("s_mov_b64 exec, 1")
    if "r" not in abl:
        A("buffer_store_dwordx2 v[16:17], v18, s[48:51], s13 offen sc1")
    A("s_mov_b64 exec, -1")

    def issueQ():
        A("buffer_load_dwordx4 v[32:35], v52, s[48:51], s68 offen sc1")
        A("buffer_load_dwordx4 v[36:39], v52, s[48:51], s68 offen offset:16 sc1")
    poll("Q", issueQ, [32, 36], 22)
    A("v_mov_b32 v33, v34")
    A("v_mov_b32 v34, v36")
    A("v_mov_b32 v35, v38")
    A("v_mov_b32 v16, 0")
    A("v_mov_b32 v22, 1")
    A("v_mov_b32 v23, s45")
    A(f"ds_write_b128 v2, v[32:35] offset:{L_QL}")
    A(f"ds_write_b64 v16, v[22:23] offset:{L_QF}")
    stamp(3)
    A("s_setprio 0")
    A("s_cmp_lt_u32 s47, 28")
    A("s_cbranch_scc1 L_wf2")
    A("s_cmp_lg_u32 s12, 0")
    A("s_cbranch_scc1 L_wtE" if p2s == 2 else "s_cbranch_scc1 L_wt1")
    A("s_branch L_wt2")

    A("L_duty:")
    ldsspin("T", L_QF, 1, 4, 5)
    A(f"ds_read_b32 v5, v4 offset:{L_TAG}")
    A("s_waitcnt lgkmcnt(0)")
    A("v_readfirstlane_b32 s45, v5")
    masks(16, 4)
    tail_setup("h", True)
    A("v_lshrrev_b32 v240, 5, v1")
    A("v_lshlrev_b32 v241, 4, v240")
    A("v_lshlrev_b32 v240, 9, v240")
    A("v_bfe_u32 v4, v1, 1, 1")
    A("v_lshl_add_u32 v240, v4, 8, v240")
    A("v_bfe_u32 v4, v1, 2, 3")
    A("v_lshl_add_u32 v240, v4, 4, v240")
    A("v_and_b32 v4, 1, v1")
    A("v_lshl_add_u32 v240, v4, 3, v240")
    A("s_lshr_b32 s13, s8, 1")
    A("s_lshl_b32 s13, s13, 10")
    A("s_and_b32 s14, s8, 1")
    A("s_lshl_b32 s14, s14, 7")
    A("s_add_u32 s13, s13, s14")
    A("v_add_u32 v240, s13, v240")
    A("s_lshl_b32 s72, s4, 3")
    A("s_add_u32 s72, s72, s7")
    A("s_lshl_b32 s72, s72, 2")
    A("s_add_u32 s72, s72, s8")
    A("s_lshl_b32 s72, s72, 2")
    A("s_add_u32 s72, s72, s5")
    A("s_lshl_b32 s72, s72, 10")
    A(f"s_add_u32 s72, s72, {WS_OA}")
    A("v_mov_b32 v24, 0"); A("v_mov_b32 v26, 0")
    A("s_not_b32 s13, s45")
    A("v_mov_b32 v25, s13"); A("v_mov_b32 v27, s13")
    if apre:
        A("buffer_load_dwordx4 v[60:63], v2, s[48:51], s72 offen sc1")
    A("s_cmp_lt_u32 s47, 28")
    A("s_cbranch_scc1 L_dutyf")
    if ypre:
        A("s_bitcmp1_b32 s4, 0")
        A("s_cbranch_scc1 L_duty2")
        A("s_cmp_ge_u32 s8, 2")
        A("s_cbranch_scc1 L_duty2")
        A("s_mov_b64 exec, s[78:79]")
        A("buffer_store_dwordx2 v[24:25], v196, s[48:51], s73 offen sc1")
        A("s_mov_b64 exec, -1")
    A("s_branch L_duty2")
    A("L_dutyf:")
    A("v_bfe_u32 v5, v1, 3, 1")
    A("v_and_b32 v6, 7, v1")
    A("v_and_b32 v4, 15, v1")
    A("v_lshlrev_b32 v234, 6, v4")
    A("v_and_b32 v4, 1, v3")
    A("v_lshl_add_u32 v234, v4, 5, v234")
    A("v_lshrrev_b32 v4, 1, v3")
    A("v_lshl_add_u32 v234, v4, 4, v234")
    A("s_sub_u32 s14, s4, 1")
    A("s_lshl_b32 s73, s14, 5")
    A("s_add_u32 s73, s73, s47")
    A("s_lshl_b32 s73, s73, 12")
    A("s_lshl_b32 s13, s8, 10")
    A("s_add_u32 s73, s73, s13")
    A(f"s_add_u32 s73, s73, {WS_C}")
    A("s_add_u32 s71, s73, 0x20000")
    A("s_cmp_eq_u32 s8, 3")
    A("s_cselect_b32 s78, 0x00ff00ff, -1")
    A("s_mov_b32 s79, s78")
    A("v_lshrrev_b32 v235, 3, v1")
    A("v_lshlrev_b32 v235, 12, v235")
    A("v_lshl_add_u32 v235, v6, 4, v235")
    A("v_and_b32 v236, 0x3fff, v235")
    A("s_and_b32 s13, s8, 1")
    A("s_add_u32 s14, s14, s13")
    A("s_lshl_b32 s80, s14, 17")
    A("s_lshl_b32 s15, s47, 7")
    A("s_add_u32 s80, s80, s15")
    A(f"s_add_u32 s80, s80, {WS_C}")
    A("s_add_u32 s81, s80, 0x8000")
    A("s_add_u32 s82, s80, 0x10000")
    A("s_add_u32 s83, s80, 0x18000")
    A("s_lshl_b32 s15, s47, 5")
    A("v_lshl_add_u32 v4, v6, 2, s15")
    A("s_mul_i32 s15, s13, 896")
    A("v_add_u32 v237, s15, v4")
    A("s_lshl_b32 s15, s14, 13")
    A(f"s_add_u32 s15, s15, {WS_G + 1344 * 4}")
    A("v_lshl_add_u32 v238, v4, 1, s15")
    A("s_mul_i32 s15, s14, 896")
    A("v_add_u32 v239, s15, v4")
    if cpre:
        A("s_mov_b64 exec, s[78:79]")
        A("buffer_store_dwordx4 v[24:27], v234, s[48:51], s73 offen sc1")
        A("buffer_store_dwordx4 v[24:27], v234, s[48:51], s71 offen sc1")
        A("s_mov_b64 exec, -1")
    A("L_duty2:")
    if loc:
        A("s_cmp_lg_u32 s8, 1")
        A("s_cbranch_scc1 L_duty3")
        A("s_lshr_b32 s13, s4, 1")
        A("s_lshl_b32 s13, s13, 6")
        A("s_add_u32 s13, s13, s7")
        A("s_lshl_b32 s13, s13, 3")
        A(f"s_add_u32 s14, s13, {WS_R}")
        A("v_and_b32 v4, 3, v1")
        A("v_lshlrev_b32 v4, 6, v4")
        A("s_getreg_b32 s15, hwreg(HW_REG_XCC_ID, 0, 4)")
        A("L_pollX:")
        A("buffer_load_dwordx2 v[28:29], v4, s[48:51], s14 offen sc1")
        A("s_waitcnt vmcnt(0)")
        A("v_cmp_ne_u32 vcc, s45, v29")
        A("s_cbranch_vccz L_gotX")
        spin_fail()
        A("s_branch L_pollX")
        A("L_gotX:")
        A("v_cmp_ne_u32 vcc, s15, v28")
        A("s_cmp_eq_u64 vcc, 0")
        A("s_cselect_b32 s13, 2, 1")
        A("v_mov_b32 v4, 0")
        A("v_mov_b32 v5, s13")
        A(f"ds_write_b32 v4, v5 offset:{L_LOC}")
        A("L_duty3:")
    A("s_cmp_eq_u32 s8, 0")
    A("s_cbranch_scc1 L_ml")
    A("s_cmp_lg_u32 s8, 2")
    A("s_cbranch_scc1 L_pre_x")
    if pref2:
        code_prefetch("b", 54)
    A("s_cmp_lg_u32 s2, 0" if "r" not in abl else "s_cmp_lg_u32 s2, 999")
    A("s_cbranch_scc1 L_pre_x")
    A(f"s_movk_i32 s14, {WS_R}")
    A("L_pollR:")
    A("buffer_load_dwordx4 v[28:31], v2, s[48:51], s14 offen sc1")
    A("buffer_load_dwordx4 v[32:35], v2, s[48:51], s14 offen offset:1024 sc1")
    A("s_waitcnt vmcnt(0)")
    tagacc([28, 32], 36)
    A("s_cbranch_vccz L_gotR")
    spin_fail()
    A("s_branch L_pollR")
    A("L_gotR:")
    A("s_add_u32 s44, s44, 1")
    A("v_mov_b32 v28, 0")
    A("v_mov_b32 v29, s44")
    A("s_mov_b64 exec, 1")
    A("buffer_store_dword v29, v28, s[48:51], 0 offen sc1")
    A("s_mov_b64 exec, -1")
    A("s_branch L_pre_x")
    A("L_ml:")
    ldsspin("2", L_CNT2, 4, 54, 55)
    A("v_lshrrev_b32 v54, 1, v241")
    A(f"v_add_u32 v54, {L_MLL}, v54")
    A("ds_read2_b64 v[36:39], v54 offset0:0 offset1:2")
    A("ds_read2_b64 v[40:43], v54 offset0:4 offset1:6")
    A(f"s_mov_b32 s15, {f2u(LOG2E / 16):#x}")
    A("s_lshl_b32 s13, s4, 3")
    A("s_add_u32 s13, s13, s7")
    A("s_lshl_b32 s13, s13, 2")
    A("s_add_u32 s13, s13, s5")
    A("s_lshl_b32 s13, s13, 7")
    A(f"s_add_u32 s13, s13, {WS_ML}")
    A("s_waitcnt lgkmcnt(0)")
    A("v_max3_f32 v28, v36, v38, v40")
    A("v_max_f32 v28, v28, v42")
    for w in range(4):
        A(f"v_sub_f32 v{32 + w}, v{36 + 2 * w}, v28")
        A(f"v_mul_f32 v{32 + w}, s15, v{32 + w}")
        A(f"v_exp_f32 v{32 + w}, v{32 + w}")
    A("v_mul_f32 v30, v32, v37")
    A("v_fmac_f32 v30, v33, v39")
    A("v_fmac_f32 v30, v34, v41")
    A("v_fmac_f32 v30, v35, v43")
    A("v_mov_b32 v29, s45")
    A("v_mov_b32 v31, s45")
    A("s_mov_b32 exec_lo, 1"); A("s_mov_b32 exec_hi, 1")
    A("buffer_store_dwordx4 v[28:31], v241, s[48:51], s13 offen sc1")
    A("s_mov_b64 exec, -1")
    A(f"ds_write_b128 v241, v[32:35] offset:{L_FL}")
    A("L_pre_x:")
    if loc:
        ldsspin("L", L_LOC, 1, 4, 5)
        A("s_mov_b32 s10, s13")
    A("v_mov_b32 v9, s45")
    A("v_mov_b32 v11, s45")
    A("v_mov_b32 v13, s45")
    A("v_mov_b32 v15, s45")
    A("s_waitcnt vmcnt(0) lgkmcnt(0)")
    stamp(4)
    A("s_barrier")
    stamp(4, 4)

    def issueM():
        A("buffer_load_dwordx4 v[48:51], v193, s[48:51], s77 offen sc1")

    def issueA():
        for k in range(4):
            A(f"buffer_load_dwordx4 {vr(32 + 4 * k)}, v192, s[48:51], s76 offen offset:{128 * k} sc1")

    def issueG():
        for sec in range(3):
            for p in range(2):
                A(f"buffer_load_dwordx4 {vr(32 + 8 * sec + 4 * p)}, v{196 + p}, s[48:51], s67 offen offset:{1792 * sec} sc1")

    def first_loads(tag):
        A("s_cmp_lt_u32 s47, 28")
        A(f"s_cbranch_scc0 L_flj{tag}" if hint else f"s_cbranch_scc1 L_flf{tag}")
        if not hint:
            A("s_bitcmp1_b32 s4, 0")
            A(f"s_cbranch_scc1 L_flj{tag}")
            issueM()
            issueA()
            A(f"s_branch L_flj{tag}")
            A(f"L_flf{tag}:")
        A("global_load_short_d16_hi v212, v194, s[64:65]")
        A("global_load_short_d16_hi v213, v195, s[64:65]")
        issueG()
        A(f"L_flj{tag}:")

    def alltags(base, n, acc):
        A(f"v_xor_b32 v{acc}, s45, v{base}")
        for r in range(1, n):
            A(f"v_bitop3_b32 v{acc}, v{acc}, v{base + r}, s45 bitop3:0xf6")
        A(f"v_cmp_ne_u32 vcc, 0, v{acc}")
    A(f"ds_read_b128 v[24:27], v241 offset:{L_FL}")
    for w in range(4):
        A(f"ds_read_b64 {vr(56 + 2 * w, 2)}, v240 offset:{L_OB + 2048 * w}")
    A("s_waitcnt lgkmcnt(0)")
    A("v_mul_f32 v8, v24, v56")
    A("v_mul_f32 v10, v24, v57")
    for w in range(1, 4):
        A(f"v_fmac_f32 v8, v{24 + w}, v{56 + 2 * w}")
        A(f"v_fmac_f32 v10, v{24 + w}, v{57 + 2 * w}")
    if loc:
        A("s_cmp_eq_u32 s10, 2")
        A("s_cbranch_scc0 L_oafar")
        A("buffer_store_dwordx4 v[8:11], v2, s[48:51], s72 offen")
        A("s_branch L_oadone")
        A("L_oafar:")
    A("buffer_store_dwordx4 v[8:11], v2, s[48:51], s72 offen sc1")
    A("L_oadone:")
    stamp(1, 4)
    A("L_tail_s:")
    A("s_barrier")
    first_loads("s")

    A("L_tail:")
    if "t" in abl:
        A("s_branch L_fin")
    A("s_cmp_lt_u32 s47, 28")
    A("s_cbranch_scc1 L_ffn")
    A("s_bitcmp1_b32 s4, 0")
    A("s_cbranch_scc1 L_fin")
    A(f"s_mov_b32 s69, {f2u(LOG2E / 16):#x}")
    if hint:
        A("s_cmp_lg_u32 s3, 0")
        A("s_cbranch_scc1 L_ah")
        A("L_pollAH:")
        alltags(56, 4, 24)
        A("s_mov_b64 exec, vcc")
        A("s_cbranch_execz L_gotAH")
        spin_fail()
        A("buffer_load_dwordx4 v[56:59], v193, s[48:51], s77 offen offset:16 sc1")
        A("s_waitcnt vmcnt(0)")
        A("s_branch L_pollAH")
        A("L_gotAH:")
        A("s_mov_b64 exec, -1")
        A("L_ah:")
        A("s_barrier")
        issueM()
        issueA()
        A("s_waitcnt vmcnt(4)")
    else:
        A("s_waitcnt vmcnt(4)")
    tagacc([48], 24)
    A("s_cbranch_vccz L_mok")
    poll("M", issueM, [48], 24)
    A("L_mok:")
    A("v_mov_b32 v52, v48")
    rowfold("v_max_f32", 52, 53)
    A("v_sub_f32 v48, v48, v52")
    A("v_mul_f32 v48, s69, v48")
    A("v_exp_f32 v48, v48")
    A("v_mul_f32 v52, v48, v50")
    rowfold("v_add_f32", 52, 53)
    A("v_rcp_f32 v52, v52")
    A("v_mul_f32 v48, v48, v52")
    A("s_waitcnt vmcnt(0)")
    tagacc([32 + 4 * k for k in range(4)], 24)
    A("s_mov_b64 exec, vcc")
    A("s_cbranch_execz L_gotA")
    poll("A", issueA, [32 + 4 * k for k in range(4)], 24)
    stamp(2, 4)
    if hint:
        A("s_cmp_lg_u32 s3, 0")
        A("s_cbranch_scc1 L_nyh")
        A("s_mov_b64 exec, 1")
        A("buffer_store_dword v28, v29, s[48:51], s70 offen sc1")
        A("s_mov_b64 exec, -1")
        A("L_nyh:")
    for k in range(4):
        for c in (0, 2):
            A(f"v_mul_f32 v{32 + 4 * k + c}, v{32 + 4 * k + c}, v48")
    for c in (0, 2):
        A(f"v_permlane16_swap_b32 v{32 + c}, v{36 + c}")
        A(f"v_permlane16_swap_b32 v{40 + c}, v{44 + c}")
    for c in (0, 2):
        A(f"v_add_f32 v{32 + c}, v{32 + c}, v{36 + c}")
        A(f"v_add_f32 v{40 + c}, v{40 + c}, v{44 + c}")
    for c in (0, 2):
        A(f"v_permlane32_swap_b32 v{32 + c}, v{40 + c}")
    for c in (0, 2):
        A(f"v_add_f32 v{32 + c}, v{32 + c}, v{40 + c}")
    A("v_cvt_pk_bf16_f32 v52, v32, v32")
    A("v_cvt_pk_bf16_f32 v54, v34, v34")
    quadswap(53, 52)
    quadswap(55, 54)
    stamp(3, 4)
    gemv([(52 + 2 * (t & 1), 53 + 2 * (t & 1), t >> 1) for t in range(16)], MW)
    A(f"ds_write_b128 v194, v[20:23] offset:{L_PT}")
    A("s_waitcnt lgkmcnt(0)")
    stamp(5, 4)
    A("s_barrier")
    A("s_sub_u32 s13, s3, 4")
    A("s_cmp_ge_u32 s13, 2")
    A("s_cbranch_scc1 L_ypub")
    for w in range(4):
        A(f"ds_read2st64_b64 {vr(32 + 4 * w)}, v195 offset0:{4 * w} offset1:{4 * w + 2}")
    A("s_mov_b64 exec, s[78:79]")
    A("s_waitcnt lgkmcnt(0)")
    for a, b_ in ((32, 34), (36, 38), (40, 42), (44, 46), (32, 36), (40, 44), (32, 40)):
        pkadd(a, b_)
    A("v_cvt_pk_bf16_f32 v8, v32, v33")
    A("buffer_store_dwordx2 v[8:9], v196, s[48:51], s73 offen sc1")
    A("L_ypub:")
    stamp(5)
    stamp(6, 4)
    A("s_branch L_fin")

    A("L_ffn:")
    A("s_waitcnt vmcnt(0)")
    tagacc([32 + 4 * n for n in range(6)], 24)
    A("s_mov_b64 exec, vcc")
    A("s_cbranch_execz L_gotG")
    poll("G", issueG, [32 + 4 * n for n in range(6)], 24)
    for n in range(6):
        A(f"v_perm_b32 v{214 + n}, v{34 + 4 * n}, v{32 + 4 * n}, v201")
    A("v_add_f32 v218, 1.0, v218")
    A("v_add_f32 v219, 1.0, v219")
    rnd2(218, 219, 4)
    A("s_cmp_lt_u32 s3, 6")
    A("s_cbranch_scc1 L_nogb")
    A("L_pollB:")
    A("buffer_load_dwordx2 v[62:63], v238, s[48:51], 0 offen sc1")
    A("s_waitcnt vmcnt(0)")
    A("v_cmp_ne_u32 vcc, s45, v63")
    A("s_cbranch_vccz L_nogb")
    spin_fail()
    A("s_branch L_pollB")
    A("L_nogb:")
    if hint:
        A("s_cmp_lg_u32 s3, 0")
        A("s_cbranch_scc1 L_yh")
        A("L_pollYH:")
        A("buffer_load_dword v56, v202, s[48:51], s70 offen sc1")
        A("s_waitcnt vmcnt(0)")
        A("v_cmp_ne_u32 vcc, s45, v56")
        A("s_cbranch_vccz L_yh")
        spin_fail()
        A("s_branch L_pollYH")
        A("L_yh:")
        A("s_barrier")
    elif probe:
        def issueP():
            A("buffer_load_dwordx4 v[32:35], v192, s[48:51], s70 offen sc1")
        A("s_mov_b64 exec, s[68:69]")
        poll("P", issueP, [32], 24)

    def issueY():
        for U in range(2):
            A(f"buffer_load_dwordx4 {vr(32 + 8 * U)}, v192, s[48:51], s{76 + U} offen sc1")
            A(f"buffer_load_dwordx4 {vr(36 + 8 * U)}, v193, s[48:51], s{76 + U} offen sc1")
    poll("Y", issueY, [32 + 4 * n for n in range(4)], 24)
    stamp(0, 3)
    for U in range(2):
        A(f"v_mfma_f32_16x16x32_bf16 v[24:27], v[204:207], {vr(32 + 8 * U)}, {'0' if U == 0 else 'v[24:27]'}")
        A(f"v_mfma_f32_16x16x32_bf16 v[24:27], v[208:211], {vr(36 + 8 * U)}, v[24:27]")
    stamp(5)
    rnd2(24, 25, 4)
    pkmul(24, 214)
    rnd2(24, 25, 4)
    pkadd(24, 212)
    rnd2(24, 25, 4)
    A("v_cndmask_b32 v5, 0, v25, s[74:75]")
    A("v_add_f32 v6, v24, v5")
    A("v_mul_f32 v7, v24, v24")
    A("v_fmac_f32 v7, v5, v5")
    A(f"ds_write_b16 v194, v4 offset:{L_X1}")
    A(f"ds_write_b16_d16_hi v195, v4 offset:{L_X1}")
    for ctl in ("quad_perm:[1,0,3,2]", "quad_perm:[2,3,0,1]", "row_half_mirror"):
        A(f"v_add_f32_dpp v6, v6, v6 {ctl} {DPPF}")
        A(f"v_add_f32_dpp v7, v7, v7 {ctl} {DPPF}")
    A("v_permlane16_swap_b32 v6, v7")
    A("v_add_f32 v6, v6, v7")
    A("v_mov_b32 v7, v6")
    A("v_permlane32_swap_b32 v6, v7")
    A("v_add_f32 v6, v6, v7")
    A("s_mov_b64 exec, 0x01010101")
    A(f"ds_write_b32 v199, v6 offset:{L_ST2}")
    A("s_mov_b64 exec, -1")
    A("s_waitcnt lgkmcnt(0)")
    stamp(1, 3)
    A("s_barrier")
    for k in range(4):
        A(f"ds_read_b128 {vr(32 + 4 * k)}, v200 offset:{L_ST2 + 16 * k}")
    A(f"s_mov_b32 s69, {f2u(1.0 / 448):#x}")
    A("s_waitcnt lgkmcnt(0)")
    for a, b_ in ((32, 34), (36, 38), (40, 42), (44, 46), (32, 36), (40, 44), (32, 40)):
        pkadd(a, b_)
    A("v_mul_f32 v32, s69, v32")
    A("v_mul_f32 v33, s69, v33")
    A("v_fma_f32 v33, -v32, v32, v33")
    A("v_max_f32 v33, 0, v33")
    rnd2(32, 33, 4)
    A(f"v_add_f32 v33, {f2u(1e-5):#x}, v33")
    A("v_sub_f32 v24, v24, v32")
    A("v_sub_f32 v25, v25, v32")
    rnd1(33)
    rnd2(24, 25, 4)
    A("v_sqrt_f32 v33, v33")
    rnd1(33)
    A("v_rcp_f32 v33, v33")
    A("v_mul_f32 v24, v24, v33")
    A("v_mul_f32 v25, v25, v33")
    rnd2(24, 25, 4)
    pkmul(24, 218)
    rnd2(24, 25, 4)
    pkadd(24, 216)
    A("v_cvt_pk_bf16_f32 v52, v24, v24")
    A("v_cvt_pk_bf16_f32 v54, v25, v25")
    quadswap(53, 52)
    quadswap(55, 54)
    stamp(2, 3)
    A("s_cmp_ge_u32 s3, 4")
    gemv([(52 + 2 * (t >> 3), 53 + 2 * (t >> 3), t & 7) for t in range(16)], MW, skip_at=12, skip_label="L_gu")
    A("L_gu:")
    A("s_nop 7")
    A("ds_write2_b64 v198, v[20:21], v[22:23] offset0:0 offset1:32")
    A("s_waitcnt lgkmcnt(0)")
    stamp(3, 3)
    A("s_barrier")
    stamp(4, 3)
    A("s_cmp_lt_u32 s3, 4")
    if stamps == 1 or dbg:
        A("s_cbranch_scc0 L_t3")
        stamp(6)
        A("s_branch L_fin")
        A("L_t3:")
    else:
        A("s_cbranch_scc1 L_fin")
    for w in range(8):
        A(f"ds_read_b128 {vr(24 + 4 * w)}, v2 offset:{L_PT + 1024 * w}")
    A(f"ds_read_b32 v60, v237 offset:{L_X1}")
    A(f"s_mov_b32 s13, {f2u(-LOG2E):#x}")
    A("s_waitcnt lgkmcnt(0)")
    for a, b_ in ((0, 4), (8, 12), (16, 20), (24, 28), (0, 8), (16, 24), (0, 16)):
        pkadd(24 + a, 24 + b_)
        pkadd(26 + a, 26 + b_)
    rnd2(24, 25, 4)
    A("v_mul_f32 v24, s13, v24")
    A("v_mul_f32 v25, s13, v25")
    A("v_exp_f32 v24, v24")
    A("v_exp_f32 v25, v25")
    rnd2(26, 27, 5)
    A("v_add_f32 v24, 1.0, v24")
    A("v_add_f32 v25, 1.0, v25")
    A("v_rcp_f32 v24, v24")
    A("v_rcp_f32 v25, v25")
    rnd2(24, 25, 4)
    pkmul(24, 26)
    A("v_cvt_pk_bf16_f32 v52, v24, v24")
    A("v_cvt_pk_bf16_f32 v54, v25, v25")
    quadswap(53, 52)
    quadswap(55, 54)
    stamp(5, 3)
    gemv([(52 + 2 * (t & 1), 53 + 2 * (t & 1), t >> 1) for t in range(16)], WD)
    A("v_permlane32_swap_b32 v20, v22")
    A("v_permlane32_swap_b32 v21, v23")
    A("v_mov_b32 v8, v20")
    A("v_mov_b32 v10, v21")
    A("v_mov_b32 v12, v22")
    A("v_mov_b32 v14, v23")
    A("s_mov_b64 exec, s[78:79]")
    A("buffer_store_dwordx4 v[8:11], v234, s[48:51], s73 offen sc1")
    A("buffer_store_dwordx4 v[12:15], v234, s[48:51], s71 offen sc1")
    A("s_mov_b64 exec, -1")
    stamp(6)
    stamp(6, 3)
    A("s_cmp_lt_u32 s8, 2")
    A("s_cbranch_scc1 L_fin")

    def issueC():
        for t in range(4):
            A(f"buffer_load_dwordx4 {vr(28 + 4 * t)}, v{235 if t < 3 else 236}, s[48:51], s{80 + t} offen sc1")
    poll("C", issueC, [28 + 4 * t for t in range(4)], 44)
    A("v_add_f32 v28, v28, v32")
    A("v_add_f32 v30, v30, v34")
    A("s_mov_b32 exec_hi, 0")
    A("v_add_f32 v36, v36, v40")
    A("v_add_f32 v38, v38, v42")
    A("s_mov_b32 exec_hi, -1")
    A("v_add_f32 v28, v28, v36")
    A("v_add_f32 v30, v30, v38")
    A(f"v_add_f32_dpp v28, v28, v28 row_ror:8 {DPPF}")
    A(f"v_add_f32_dpp v30, v30, v30 row_ror:8 {DPPF}")
    A("v_permlane16_swap_b32 v28, v30")
    A("v_add_f32 v28, v28, v30")
    A("v_mov_b32 v30, v28")
    A("v_permlane32_swap_b32 v28, v30")
    A("v_add_f32 v28, v28, v30")
    A("v_mov_b32 v30, v28")
    A("v_permlane16_swap_b32 v28, v30")
    rnd2(28, 30, 29)
    A("v_lshlrev_b32 v32, 16, v62"); A("v_and_b32 v33, s46, v62")
    A("v_mul_f32 v28, v28, v32")
    A("v_mul_f32 v30, v30, v33")
    rnd2(28, 30, 29)
    A("v_lshlrev_b32 v32, 16, v60"); A("v_and_b32 v33, s46, v60")
    A("v_add_f32 v28, v28, v32")
    A("v_add_f32 v30, v30, v33")
    A("v_cvt_pk_bf16_f32 v28, v28, v30")
    A("s_mov_b64 exec, 0xff")
    A("global_store_dword v239, v28, s[38:39]")
    A("L_fin:")
    if padto:
        A("s_cmp_lg_u32 s2, 0")
        A("s_cbranch_scc1 L_end")
        A("L_padloop:")
        A("s_memrealtime s[100:101]")
        A("s_waitcnt lgkmcnt(0)")
        A("s_sub_u32 s14, s100, s86")
        A(f"s_cmp_lt_u32 s14, {padto}")
        A("s_cbranch_scc1 L_padloop")
    if dbg:
        A("s_cmp_lg_u32 s2, 32")
        A("s_cbranch_scc1 L_end")
        A("s_add_u32 s13, s3, 1")
        A("s_and_b32 s13, s13, 6")
        A("s_cmp_lg_u32 s13, 0")
        A("s_cbranch_scc1 L_end")
        A("s_mov_b64 exec, 1")
        A("s_memrealtime s[100:101]")
        A("s_lshr_b32 s13, s3, 2")
        A("s_lshl_b32 s13, s13, 5")
        A("s_waitcnt lgkmcnt(0)")
        A("v_mov_b32 v2, s13")
        for k in range(8):
            A(f"s_sub_u32 s14, s{86 + 2 * k}, s86")
            A(f"v_mov_b32 v{4 + k}, s14")
        for k in range(2):
            A(f"global_store_dwordx4 v2, {vr(4 + 4 * k)}, s[40:41] offset:{16 * k}")
    if stamps:
        A("s_mov_b64 exec, 1")
        A("s_memrealtime s[100:101]" if stamps != 3 else "s_memtime s[100:101]")
        A("s_lshl_b32 s13, s2, 3")
        A("s_add_u32 s13, s13, s3")
        A("s_lshl_b32 s13, s13, 6")
        A(f"s_add_u32 s42, s42, {512 << 20}")
        A("s_addc_u32 s43, s43, 0")
        A("s_waitcnt lgkmcnt(0)")
        A("v_mov_b32 v2, s13")
        A("s_getreg_b32 s14, hwreg(HW_REG_XCC_ID)")
        A("s_and_b32 s14, s14, 15")
        A("s_lshl_b32 s14, s14, 24")
        A("s_add_u32 s101, s101, s14")
        for k in range(16):
            A(f"v_mov_b32 v{4 + k}, s{86 + k}")
        for k in range(4):
            A(f"global_store_dwordx4 v2, {vr(4 + 4 * k)}, s[42:43] offset:{16 * k}")
    A("L_end:")
    A("s_endpgm")
    A("L_codeend:")
    A(f".fill ({NPF * 1024} - (L_codeend - L_start)) / 4, 4, 0xbf800000")
    A('.section .rodata,"a"')
    A(".p2align 6")
    A(f".amdhsa_kernel {NAME}_kernel")
    A("  .amdhsa_next_free_vgpr 256")
    A("  .amdhsa_next_free_sgpr 102")
    A("  .amdhsa_accum_offset 256")
    A("  .amdhsa_group_segment_fixed_size 0")
    A("  .amdhsa_kernarg_size 112")
    A("  .amdhsa_user_sgpr_count 2")
    A("  .amdhsa_user_sgpr_kernarg_segment_ptr 1")
    A("  .amdhsa_system_sgpr_workgroup_id_x 1")
    A(".end_amdhsa_kernel")
    txt = A.finish()
    return txt, A.npad


if __name__ == "__main__":
    out = sys.argv[1]
    kw = {}
    for a in sys.argv[2:]:
        k, v = a.split("=")
        kw[k] = int(v) if v.lstrip("-").isdigit() else v.replace("+", " ")
    txt, npad = gen(**kw)
    open(out, "w").write(txt)
    print(out, "lines", txt.count("\n"), "pads", npad)
```
